```python
import torch

def _softmax(x, axis=-1):
    return torch.softmax(x, dim=axis)
def _gelu(x):
    return torch.nn.functional.gelu(x, approximate="tanh")
def _silu(x):
    return torch.nn.functional.silu(x)
def _sigmoid(x):
    return torch.sigmoid(x)
def _layernorm(x, axis=-1, eps=1e-5):
    m = x.mean(dim=axis, keepdim=True)
    v = x.var(dim=axis, keepdim=True, unbiased=False)
    return (x - m) / torch.sqrt(v + eps)
def _scatter_add(tgt, idx, src, axis=0):
    return tgt.clone().index_add_(axis, idx, src)
def _segment_sum(src, seg, n):
    out = torch.zeros((n,) + src.shape[1:], dtype=src.dtype)
    return out.index_add_(0, seg, src)
def _pad(x, pw):
    flat = tuple(v for pair in reversed(pw) for v in pair)
    return torch.nn.functional.pad(x, flat)

kernel_name = 'parallel_sum__linear_attn_block__geglu_ffn__prompt'

def setup_inputs():

    _w = (lambda a: (lambda t: t.to(torch.bfloat16) if t.is_floating_point() else t)(torch.as_tensor(a)))
    def _A_setup():
        B, S, D = 1, 2048, 448
        return {
            "x": _w((lambda *s: torch.randn(*s, dtype=torch.bfloat16) * 0.05)(B, S, D)),
            "wqkv": _w((lambda *s: torch.randn(*s, dtype=torch.bfloat16) * 0.4)(D, 3 * D)),
            "wo": _w((lambda *s: torch.randn(*s, dtype=torch.bfloat16) * 0.2)(D, D)),
        }
    _A_in = _A_setup()

    def _B_setup():
        B, S, D, F = 1, 2048, 448, 1792
        return {
            "x": _w((lambda *s: torch.randn(*s, dtype=torch.bfloat16) * 0.05)(B, S, D)),
            "w_gate": _w((lambda *s: torch.randn(*s, dtype=torch.bfloat16) * 0.05)(D, F)),
            "w_up": _w((lambda *s: torch.randn(*s, dtype=torch.bfloat16) * 0.05)(D, F)),
            "w_down": _w((lambda *s: torch.randn(*s, dtype=torch.bfloat16) * 0.05)(F, D)),
        }
    _B_in = _B_setup()

    return {
        "A_x": _A_in["x"],
        "A_wqkv": _A_in["wqkv"],
        "A_wo": _A_in["wo"],
        "B_x": _B_in["x"],
        "B_w_gate": _B_in["w_gate"],
        "B_w_up": _B_in["w_up"],
        "B_w_down": _B_in["w_down"],
    }

def reference(A_x, A_wqkv, A_wo, B_x, B_w_gate, B_w_up, B_w_down):
    def _A_ref(x, wqkv, wo):
        B, S, D = x.shape
        H = 16; Dh = D // H
        qkv = (lambda x, *d: x.permute(*d))((x @ wqkv).reshape(B, S, 3, H, Dh), 2, 0, 3, 1, 4)
        q, k, v = qkv[0], qkv[1], qkv[2]
        phi = lambda t: torch.where(t > 0, t + 1, torch.exp(t)) + 1e-6
        pq, pk = phi(q), phi(k)
        kv = torch.einsum("bhsd,bhse->bhde", pk, v)
        z = torch.einsum("bhsd->bhd", pk)
        num = torch.einsum("bhqd,bhde->bhqe", pq, kv)
        den = torch.einsum("bhqd,bhd->bhq", pq, z)[..., None] + 1e-6
        o = num / den
        return (lambda x, *d: x.permute(*d))(o, 0, 2, 1, 3).reshape(B, S, D) @ wo

    def _B_ref(x, w_gate, w_up, w_down):
        return (_gelu(x @ w_gate) * (x @ w_up)) @ w_down

    x = A_x
    xn = _layernorm(x, axis=-1)
    return x + _A_ref(xn, A_wqkv, A_wo) + _B_ref(xn, B_w_gate, B_w_up, B_w_down)
```

```python
import re
TRANS = ("v_exp_f32","v_rcp_f32","v_rsq_f32","v_log_f32","v_sqrt_f32","v_sin_f32","v_cos_f32")
def expand(op):
    op = op.strip()
    m = re.fullmatch(r"-?(?:abs\()?([vas])\[(\d+):(\d+)\]\)?", op)
    if m: return [f"{m.group(1)}{i}" for i in range(int(m.group(2)), int(m.group(3))+1)]
    m = re.fullmatch(r"-?(?:abs\()?([vas])(\d+)\)?", op)
    if m: return [f"{m.group(1)}{m.group(2)}"]
    if op in ("vcc","m0","exec"): return [op]
    if op in ("vcc_lo","vcc_hi"): return ["vcc"]
    if op in ("exec_lo","exec_hi"): return ["exec"]
    return []
class Ins:
    __slots__=("text","kind","R","W","count","waitfor","cost","op","srcC","tag","lds")
    def __init__(s, text, count=True, tag=None):
        s.text=text; s.count=count; s.waitfor=None; s.tag=tag; s.srcC=[]; s.lds=False
        t = text.split(";")[0].strip()
        if t.endswith(":") or t.startswith(".") or t=="":
            s.kind="label" if t.endswith(":") else "dir"; s.R=[]; s.W=[]; s.op=t; s.cost=0; return
        sp = t.split(None,1); op=sp[0]; s.op=op
        rest = sp[1] if len(sp)>1 else ""
        ops = [o.strip() for o in rest.split(",")] if rest else []
        if ops:
            last = ops[-1].split(); mods = last[1:]; ops[-1]=last[0] if last else ""
        else: mods=[]
        ex = [expand(o) for o in ops]
        flat = lambda l: [r for x in l for r in x]
        s.cost=1
        base = op.replace("_e32","").replace("_e64","")
        if op.startswith("v_mfma"):
            s.kind="mfma"; s.W=ex[0]; s.R=flat(ex[1:]); s.srcC=ex[3]; s.cost=2
        elif op.startswith("v_"):
            s.kind="valu"; s.W=ex[0]; s.R=flat(ex[1:])
            if base in TRANS: s.kind="trans"; s.cost=2
            if base.startswith("v_dot2"): s.kind="dot"
            if base.startswith("v_permlane"): s.kind="perm"; s.W=flat(ex); s.R=flat(ex)
            if base.startswith(("v_fmac","v_dot2c","v_pk_fmac")): s.R=s.R+s.W
            if base.startswith("v_cndmask") and len(ops)==3: s.R=s.R+["vcc"]
            if base.startswith(("v_add_co","v_sub_co","v_addc_co")): s.W=ex[0]+ex[1]; s.R=flat(ex[2:])
        elif op.startswith("ds_read"):
            s.kind="ds"; s.W=ex[0]; s.R=flat(ex[1:]); s.cost=1.5
        elif op.startswith("ds_"):
            s.kind="ds"; s.W=[]; s.R=flat(ex); s.cost=2
        elif op.startswith(("buffer_load","global_load")):
            s.kind="vmem"
            if "lds" in mods or "_lds_" in op: s.W=[]; s.R=flat(ex)+["m0"]; s.lds=True
            else: s.W=ex[0]; s.R=flat(ex[1:])
        elif op.startswith(("buffer_store","global_store","buffer_atomic","global_atomic")):
            s.kind="vmem"; s.W=[]; s.R=flat(ex)
        elif op.startswith(("s_load","s_memtime","s_memrealtime")):
            s.kind="smem"; s.W=ex[0]; s.R=flat(ex[1:])
        elif op=="s_waitcnt": s.kind="wait"; s.W=[]; s.R=[]
        elif op=="s_barrier": s.kind="barrier"; s.W=[]; s.R=[]
        elif op=="s_nop": s.kind="nop"; s.W=[]; s.R=[]; s.cost=int(ops[0])+1
        elif op.startswith(("s_cbranch","s_branch","s_endpgm","s_sleep","s_setprio")): s.kind="branch"; s.W=[]; s.R=[]
        elif op.startswith("s_cmp"): s.kind="salu"; s.W=["scc"]; s.R=flat(ex)
        elif op.startswith("s_"):
            s.kind="salu"; s.W=ex[0]; s.R=flat(ex[1:])
            if "saveexec" in op: s.W=s.W+["exec"]
        else: raise ValueError("unknown op "+text)
    def states(s):
        if s.kind in("label","dir"): return 0
        if s.kind=="nop": return s.cost
        return 1
def I(text, **kw): return Ins(text, **kw)
def W(vm=None, lg=None):
    w = Ins("s_waitcnt vmcnt(0)"); w.waitfor=(vm,lg); return w
class Prog:
    def __init__(s): s.L=[]
    def add(s, x):
        if isinstance(x,str):
            for line in x.strip().split("\n"):
                line=line.strip()
                if line: s.L.append(Ins(line))
            return s.L[-1]
        if isinstance(x,(list,tuple)):
            for y in x: s.add(y)
            return s.L[-1] if s.L else None
        s.L.append(x); return x
    __call__=add
    def resolve(s):
        pos={id(x):i for i,x in enumerate(s.L)}
        vmc=[0]; lgc=[0]
        for x in s.L:
            vmc.append(vmc[-1]+(1 if (x.kind=="vmem" and x.count) else 0))
            lgc.append(lgc[-1]+(1 if (x.kind=="ds" and x.count) else 0))
        for i,x in enumerate(s.L):
            if x.waitfor is None: continue
            vm,lg=x.waitfor; parts=[]
            def cnt(tok,c,mx):
                if tok==0: return 0
                tok = tok if isinstance(tok,(list,tuple)) else [tok]
                p=max(pos[id(t)] for t in tok)
                assert p<i, f"wait before producer: {s.L[p].text}"
                n=c[i]-c[p+1]
                return min(n,mx)
            if vm is not None: parts.append(f"vmcnt({cnt(vm,vmc,63)})")
            if lg is not None: parts.append(f"lgkmcnt({cnt(lg,lgc,15)})")
            x.text="s_waitcnt "+" ".join(parts)
    def check(s, fix=False):
        errs=[]; L=s.L; out=[]; s.pads=[]
        last={}
        st=0; hist=[]
        vmq=[]; lgq=[]; smem=[]
        for idx,x in enumerate(L):
            if x.kind in("label","dir"):
                out.append(x); continue
            short=0
            R=set(x.R); Wr=set(x.W)
            isvalu = x.kind in("valu","trans","dot","perm")
            for (pst,p) in reversed(hist[-24:]):
                d=st-pst-p.states()+0
                if d>=20: break
                pW=set(p.W); need=0; why=""
                pv = p.kind in("valu","trans","dot","perm")
                def f(n,w):
                    nonlocal need,why
                    if n>need: need,why=n,w
                if p.kind=="mfma":
                    n = 12 if "32x32" in p.op else 8
                    if x.kind=="mfma":
                        ab=set(x.R)-set(x.srcC)
                        if pW & ab: f(n,"mfma D->AB")
                        if pW & set(x.srcC) and set(x.srcC)!=pW: f(n-2,"mfma D->partial C")
                        if pW & Wr and not (pW & set(x.srcC)): f(n,"mfma D WAW")
                    elif (isvalu or x.kind in("vmem","ds")) and (pW & (R|Wr)): f(n,"mfma D->valu/mem")
                    if isvalu and set(p.srcC)&Wr: f(7 if n==12 else 3,"mfma C WAR")
                if pv:
                    if x.kind=="mfma" and pW&R: f(2,"valu->mfma")
                    if p.kind=="trans" and isvalu and x.kind!="trans" and pW&R: f(1,"trans->valu")
                    if p.kind=="dot" and isvalu and (pW&(R|Wr)) and not (x.op==p.op and not (pW & set(x.R[:-1] if x.op!="v_dot2c_f32_bf16" else x.R[:2]))): f(3,"dot->valu")
                    if x.kind=="perm" and pW&R: f(2,"valu->permlane")
                    if "_dpp" in x.op and pW&R: f(2,"valu->dpp")
                    if x.op.startswith(("v_readfirstlane","v_readlane")) and pW&R: f(1,"valu->readlane")
                    sg={r for r in pW if r[0]=='s' or r=='vcc'}
                    if sg and isvalu and sg&R: f(2,"valu sgpr->valu")
                    if sg and x.kind=="vmem" and sg&R: f(5,"valu sgpr->vmem")
                    if sg and x.kind=="salu" and sg&R: f(1,"valu sgpr->salu (pad)")
                if p.kind=="vmem" and "store" in p.op and ("x4" in p.op or "x3" in p.op) and Wr:
                    data=set(p.R[:4])
                    if data&Wr: f(2 if isvalu else 1,"store data WAR")
                if p.kind=="salu" and "m0" in pW and x.lds: f(1,"m0->dma")
                if p.kind=="salu" and "exec" in pW and False: pass
                if d<need:
                    if fix:
                        if need-d>short: short=need-d; swhy=f"{why}: [{p.text}] -> [{x.text}]"
                    else: errs.append(f"hazard {why}: need {need} have {d}: [{p.text}] -> [{x.text}] @{idx}")
            if fix and x.kind=="vmem" and len([y for y in vmq if y.count])>=62:
                wv=Ins("s_waitcnt vmcnt(61)"); out.append(wv); hist.append((st,wv)); st+=1; short=max(0,short-1)
                c=[y for y in vmq if y.count]; k=vmq.index(c[len(c)-62]); vmq=vmq[k+1:]
            if short:
                n=Ins(f"s_nop {short-1}"); out.append(n); hist.append((st,n)); st+=short; s.pads.append((short,swhy))
            out.append(x)
            if x.kind=="wait":
                m=re.search(r"vmcnt\((\d+)\)",x.text)
                if m:
                    n=int(m.group(1)); c=[y for y in vmq if y.count]
                    done=c[:max(0,len(c)-n)] if n>0 else vmq[:]
                    if n>0 and done:
                        k=vmq.index(done[-1]); vmq=vmq[k+1:]
                    elif n==0: vmq=[]
                m=re.search(r"lgkmcnt\((\d+)\)",x.text)
                if m:
                    n=int(m.group(1))
                    if n==0: lgq=[]; smem=[]
                    else: lgq=lgq[max(0,len(lgq)-n):]
            else:
                for q,nm in((vmq,"vm"),(lgq,"lgkm"),(smem,"smem")):
                    for y in q:
                        if set(y.W)&(R|Wr) and y.W!=["a255"]: errs.append(f"unwaited {nm} result: [{y.text}] used by [{x.text}] @{idx}")
                if x.kind=="vmem": vmq.append(x)
                if x.kind=="ds":
                    lgq.append(x)
                if x.kind=="smem": smem.append(x)
                if len([y for y in vmq if y.count])>63: errs.append(f"vmcnt overflow @{idx} {x.text}")
            hist.append((st,x)); st+=x.states()
        if fix: s.L=out
        return errs
    def text(s): return "\n".join(x.text for x in s.L)+"\n"
```

```python
import sys, struct
from emit import Prog, I, W, Ins
KN = "parallel_sum__linear_attn_block__geglu_ffn__prompt_kernel"
def fb(x): return "0x%08x" % struct.unpack("<I", struct.pack("<f", x))[0]
SLOT=28672; KVX=143360; STAT=159744; KVF=160256; LDS=163840
WS_KVP=0x900000; WS_FL=0xA00000; WS_ST=0xB00000; WS_SZ=0xC00000
LOG2E=1.4426950408889634
K0C=-2*0.7978845608028654*LOG2E; K1C=K0C*0.044715
sA=4; sBd=12; sBo=20
sW,sT=10,11
SX,SW0,SW1,SW4,SWS,SD=24,28,32,36,40,44
SWD,SWO,SOUT=SW0,SW1,SW4
TA,TB=48,62
sMI,sJ,sR,sWB7=76,77,78,79
sH=80; sKVst=83; sKVld=84; sMB,sNB,sV2=88,89,90
sT2=91; MONE=92; MHI=94; sSTMP=96; sOLO,sOHI,sONES,sSPIN=98,99,100,101
sFKst,sFKld,sFHst,sFHld=0,1,2,3
def srd(n): return f"s[{n}:{n+3}]"
vL16,vW0,vW1,vW4=1,2,3,4
vTR=5; vMX=8; vK0,vK1,vV,vS,vC2=10,11,12,13,14; vB2=15; vB=2
X=16; ACC=128
vZ,vONE,vPOLL,vPA15,vPA31=224,225,226,228,229
vSTR,vKXW,vKXR,vKFW=240,241,242,243
vT=244; vP=248
NB=17
def v(a,n=1): return f"v{a}" if n==1 else f"v[{a}:{a+n-1}]"
def a(x,n=1): return f"a{x}" if n==1 else f"a[{x}:{x+n-1}]"
def lines(t): return [I(l.strip()) for l in t.strip().split("\n") if l.strip()]
def kmap(n):
    if n<24: return (n%8)//2, 2*(n//8)+n%2
    return (n-24)//3, 6+(n-24)%3

class Gen:
    def __init__(s, stamps=False, **opt):
        s.p=Prog(); s.ool=[]; s.stamps=stamps; s.stnames=[]; s.opt=opt; s.lbl=0
    def stamp(s, name=""):
        if not s.stamps: return []
        k=len(s.stnames); s.stnames.append(name)
        return [I(f"s_memtime s[{sSTMP}:{sSTMP+1}]"), I("s_waitcnt lgkmcnt(0)"), I(f"v_writelane_b32 v0, s{sSTMP}, {k}")]
    def spin(s, load_text, reg, val):
        n=s.lbl; s.lbl+=1
        ld=I(load_text)
        chk=[W(vm=ld), I(f"v_cmp_ne_u32 vcc, {val}, {reg}"), I(f"s_cbranch_vccnz L_spin{n}"), I(f"L_ok{n}:")]
        s.ool += [I(f"L_spin{n}:"), I(f"s_mov_b32 s{sSPIN}, 0x40000"), I(f"L_spinl{n}:"), I("s_sleep 1"),
                  I(load_text,count=False), I("s_waitcnt vmcnt(0)"), I(f"v_cmp_ne_u32 vcc, {val}, {reg}"),
                  I(f"s_cbranch_vccz L_ok{n}"), I(f"s_sub_u32 s{sSPIN}, s{sSPIN}, 1"), I(f"s_cmp_lg_u32 s{sSPIN}, 0"),
                  I(f"s_cbranch_scc1 L_spinl{n}"), I(f"s_branch L_ok{n}")]
        return ld, chk
    def wdma(s, sg):
        ps=sg>>1; hf=sg&1; L=[]
        sr={0:SW0,4:SW4}.get(ps,SW1); vo={0:vW0,4:vW4}.get(ps,vW1); tb=TB if ps in(1,2,3) else TA
        if ps in (2,3) and hf==0: L.append(I(f"v_add_u32 v{vW1}, 64, v{vW1}"))
        for i in range(7):
            if i in (0,4): L.append(I(f"s_add_u32 m0, s{sWB7}, {(sg%5)*SLOT+(4096 if i==4 else 0)}"))
            L.append(I(f"buffer_load_dwordx4 v{vo}, {srd(sr)}, s{tb+7*hf+i} offen offset:{(i%4)*1024} lds"))
        s.tok_w[sg]=L[-1]
        return L
    def bdma(s, n):
        jj,i=kmap(n)
        base,sr,k=(sBd+jj,SWD,i) if i<7 else (sBo+jj,SWO,i-7)
        L=[I(f"s_add_u32 m0, s{sWB7}, {(n%NB)*8192}"), I(f"s_add_u32 s{sT}, s{base}, {k*14336}"),
           I(f"buffer_load_dwordx4 v{vB}, {srd(sr)}, s{sT} offen lds"),
           I(f"buffer_load_dwordx4 v{vB2}, {srd(sr)}, s{sT} offen offset:1024 lds")]
        s.tok_b[n]=L[-1]
        return L
    def prologue(s):
        p=s.p; s.tok_w={}; s.tok_b={}
        p(f"""
        s_cmp_ge_u32 s2, 256
        s_cbranch_scc1 L_end
        s_load_dwordx4 s[4:7], s[0:1], 0
        s_load_dwordx4 s[20:23], s[0:1], 64
        s_load_dwordx2 s[8:9], s[0:1], 16
        s_load_dwordx4 s[12:15], s[0:1], 32
        s_load_dwordx4 s[16:19], s[0:1], 48
        s_getpc_b64 s[{SD}:{SD+1}]
        L_pc:
        v_lshrrev_b32 v192, 6, v0
        v_and_b32 v193, 63, v0
        v_readfirstlane_b32 s{sW}, v192
        s_and_b32 s{SD+1}, s{SD+1}, 0xffff
        s_mov_b32 s{SD+2}, L_codeend-L_pc
        s_mov_b32 s{SD+3}, 0x20000
        v_lshlrev_b32 v194, 7, v0
        v_lshlrev_b32 v{vL16}, 4, v193
        buffer_load_dword v255, v194, {srd(SD)}, 0 offen
        s_and_b32 s{sT}, s2, 7
        s_lshr_b32 s{sT2}, s2, 3
        s_and_b32 s{sMI}, s{sT}, 1
        s_lshl_b32 s{sMI}, s{sMI}, 3
        s_and_b32 s{sR}, s{sT2}, 7
        s_add_u32 s{sMI}, s{sMI}, s{sR}
        s_lshr_b32 s{sJ}, s{sT}, 1
        s_lshl_b32 s{sJ}, s{sJ}, 2
        s_lshr_b32 s3, s{sT2}, 3
        s_add_u32 s{sJ}, s{sJ}, s3
        s_lshl_b32 s3, s3, 1
        s_add_u32 s{sR}, s{sR}, s3
        s_cmp_ge_u32 s{sR}, 7
        s_cselect_b32 s3, 7, 0
        s_sub_u32 s{sR}, s{sR}, s3
        s_mul_i32 s{sMB}, s{sT2}, 37
        s_lshr_b32 s{sMB}, s{sMB}, 8
        s_mul_i32 s3, s{sMB}, 7
        s_sub_u32 s{sNB}, s{sT2}, s3
        s_cmp_lt_u32 s{sT2}, 28
        s_cselect_b32 s{sV2}, 1, 0
        s_lshl_b32 s{sT}, s{sT}, 2
        s_add_u32 s{sMB}, s{sMB}, s{sT}
        s_mul_i32 s{sWB7}, s{sW}, 7168
        v_lshrrev_b32 v195, 3, v193
        v_mul_u32_u24 v195, 896, v195
        v_lshrrev_b32 v196, 4, v193
        v_and_b32 v197, 7, v193
        v_xor_b32 v196, v196, v197
        v_lshl_add_u32 v195, v196, 4, v195
        v_xor_b32 v196, 64, v195
        s_lshl_b32 s{sT}, s{sMI}, 2
        s_add_u32 s{sT}, s{sT}, s{sW}
        s_mul_i32 s{sT2}, s{sT}, {32*896}
        s_mul_i32 s{sH}, s{sT}, {16*9216}
        s_add_u32 s3, s{sW}, 1
        s_mul_i32 s3, s3, {SLOT}
        s_waitcnt lgkmcnt(0)
        s_mov_b32 s{SX}, s4
        s_and_b32 s{SX+1}, s5, 0xffff
        s_mov_b32 s{SX+2}, {2048*896}
        s_mov_b32 s{SX+3}, 0x20000
        s_mov_b32 s4, s{sR}
        """)
        if s.stamps: p("v_mov_b32 v0, 0"); p(s.stamp("start"))
        nfl=s.opt.get("nstage",1)+1
        p("s_cmp_lg_u32 s2, 0"); p("s_cbranch_scc1 L_noclr")
        p(f"s_mov_b32 s{SWS}, s22\ns_and_b32 s{SWS+1}, s23, 0xffff\ns_mov_b32 s{SWS+2}, {WS_SZ}\ns_mov_b32 s{SWS+3}, 0x20000")
        p(f"v_mov_b32 v200, 0\nv_mov_b32 v201, 0\nv_mov_b32 v202, 0\nv_mov_b32 v203, 0")
        p(f"s_lshl_b32 s5, s{sW}, 10"); p(f"s_add_u32 s5, s5, {WS_FL}")
        for k in range(nfl):
            p(I(f"buffer_store_dwordx4 v[200:203], v{vL16}, {srd(SWS)}, s5 offen sc1", count=False))
            p("s_add_u32 s5, s5, 4096")
        p("L_noclr:")
        tok_x=[]
        for P in range(7):
            p(f"s_add_u32 m0, s3, {P*4096}")
            p(f"s_lshl_b32 s5, s4, 7"); p(f"s_add_u32 s5, s5, s{sT2}")
            for t in range(4):
                tk=p(f"buffer_load_dwordx4 v{195+(t&1)}, {srd(SX)}, s5 offen offset:{t*1024} lds")
                if t<3: p(f"s_add_u32 s5, s5, 6144")
            tok_x.append(tk)
            if P<6:
                p(f"s_add_u32 s4, s4, 1"); p("s_cmp_eq_u32 s4, 7"); p("s_cselect_b32 s4, 0, s4")
        p(f"""
        s_lshl_b32 s{sR}, s{sR}, 2
        s_sub_u32 s{SW0}, s6, 3072
        s_subb_u32 s{SW0+1}, s7, 0
        s_and_b32 s{SW0+1}, s{SW0+1}, 0xffff
        s_mov_b32 s{SW0+2}, {448*2688+3072}
        s_mov_b32 s{SW0+3}, 0x20000
        s_mov_b32 s4, s{sR}
        """)
        for i in range(14):
            bias=3072-1024*((i%7)%4)
            p(f"s_mul_i32 s{TA+i}, s4, {16*2688}"); p(f"s_mul_i32 s{TB+i}, s4, {16*3584}")
            if bias:
                p(f"s_add_u32 s{TA+i}, s{TA+i}, {bias}"); p(f"s_add_u32 s{TB+i}, s{TB+i}, {bias}")
            if i<13:
                p("s_add_u32 s4, s4, 2"); p("s_cmp_eq_u32 s4, 28"); p("s_cselect_b32 s4, 0, s4")
        p(f"""
        s_lshr_b32 s4, s{sW}, 1
        s_lshl_b32 s4, s4, 4
        s_and_b32 s5, s{sW}, 1
        v_lshrrev_b32 v197, 2, v193
        v_and_b32 v198, 3, v193
        v_lshlrev_b32 v198, 4, v198
        v_add_u32 v199, s4, v197
        s_mul_i32 s3, s5, 896
        s_mul_i32 s4, s{sJ}, 56
        s_add_u32 s3, s3, s4
        s_add_u32 s3, s3, 896
        v_mul_u32_u24 v{vW0}, 2688, v199
        v_add3_u32 v{vW0}, v{vW0}, v198, s3
        """)
        p(s.wdma(0))
        p(f"""
        s_mul_i32 s3, s{sJ}, 224
        v_mul_u32_u24 v{vW1}, 3584, v199
        v_add3_u32 v{vW1}, v{vW1}, v198, s3
        s_cmp_eq_u32 s5, 0
        s_cselect_b32 s{SW1}, s12, s14
        s_cselect_b32 s{SW1+1}, s13, s15
        s_sub_u32 s{SW1}, s{SW1}, 3072
        s_subb_u32 s{SW1+1}, s{SW1+1}, 0
        s_and_b32 s{SW1+1}, s{SW1+1}, 0xffff
        s_mov_b32 s{SW1+2}, {448*3584+3072}
        s_mov_b32 s{SW1+3}, 0x20000
        s_lshl_b32 s6, s5, 4
        v_add_u32 v199, s6, v197
        v_mul_u32_u24 v199, 2688, v199
        v_add3_u32 v199, v199, v198, s4
        s_lshl_b32 s6, s5, 2
        v_lshrrev_b32 v197, 1, v193
        v_xor_b32 v197, s6, v197
        v_mul_u32_u24 v197, 3584, v197
        v_and_b32 v198, 1, v193
        v_lshlrev_b32 v198, 4, v198
        s_add_u32 s3, s3, 192
        v_add3_u32 v197, v197, v198, s3
        s_cmp_lt_u32 s{sW}, 2
        s_cselect_b32 s{SW4}, s{SW1}, s{SW0}
        s_cselect_b32 s{SW4+1}, s{SW1+1}, s{SW0+1}
        s_cselect_b32 s{SW4+2}, s{SW1+2}, s{SW0+2}
        s_cselect_b64 vcc, -1, 0
        s_mov_b32 s{SW4+3}, 0x20000
        s_mov_b32 s{SWS}, s22
        s_and_b32 s{SWS+1}, s23, 0xffff
        s_mov_b32 s{SWS+2}, {WS_SZ}
        s_mov_b32 s{SWS+3}, 0x20000
        v_cndmask_b32 v{vW4}, v199, v197, vcc
        s_mov_b32 s{SD}, s20
        s_and_b32 s{SD+1}, s21, 0xffff
        s_mov_b32 s{SD+2}, 256
        s_mov_b32 s{SD+3}, 0x20000
        """)
        p(f"""
        s_mul_i32 s3, s{sJ}, 9216
        s_add_u32 s{sH}, s{sH}, s3
        s_add_u32 s{sH+1}, s{sH}, 4096
        s_add_u32 s{sH+2}, s{sH}, 8192
        s_lshl_b32 s3, s{sJ}, 2
        s_add_u32 s3, s3, s{sW}
        s_lshl_b32 s{sFKld}, s3, 6
        s_add_u32 s{sFKld}, s{sFKld}, {WS_FL}
        s_lshl_b32 s3, s3, 14
        s_add_u32 s{sKVld}, s3, {WS_KVP}
        s_add_u32 s{sKVld+1}, s{sKVld}, 4096
        s_add_u32 s{sKVld+2}, s{sKVld}, 8192
        s_add_u32 s{sKVld+3}, s{sKVld}, 12288
        s_lshl_b32 s3, s{sMI}, 10
        s_add_u32 s{sKVst}, s{sKVld}, s3
        s_lshl_b32 s3, s{sMI}, 2
        s_add_u32 s{sFKst}, s{sFKld}, s3
        s_mov_b32 s{MONE}, 0x10000000
        s_mov_b32 s{MONE+1}, 0x10000000
        s_mov_b32 s{MHI}, 0
        s_mov_b32 s{MHI+1}, -1
        s_mov_b32 s{sOLO}, 0x3f80
        s_mov_b32 s{sOHI}, 0x3f800000
        s_mov_b32 s{sONES}, 0x3f803f80
        s_add_u32 s{sT}, s{sMB}, s{sNB}
        s_lshl_b32 s{sT2}, s{sW}, 2
        """)
        for jj in range(4):
            p(f"""
            s_add_u32 s3, s{sT}, {jj}
            s_and_b32 s3, s3, 3
            s_add_u32 s3, s3, s{sT2}
            s_mul_i32 s{sBd+jj}, s3, {112*896}
            s_mul_i32 s{sBo+jj}, s3, {28*896}
            s_lshl_b32 s{sA+jj}, s{sMB}, 5
            s_add_u32 s{sA+jj}, s{sA+jj}, s3
            s_mul_i32 s{sA+jj}, s{sA+jj}, 9216
            """)
        p(f"""
        v_lshrrev_b32 v197, 5, v193
        v_bfe_u32 v198, v193, 2, 2
        v_bfe_u32 v199, v193, 4, 1
        v_and_b32 v200, 3, v193
        v_lshlrev_b32 v200, 3, v200
        v_lshl_add_u32 v201, v197, 3, v198
        v_lshl_add_u32 v{vTR}, v201, 6, v200
        v_lshl_add_u32 v{vTR}, v199, 5, v{vTR}
        v_add_u32 v{vTR+1}, {2*SLOT}, v{vTR}
        v_add_u32 v{vTR+2}, {4*SLOT}, v{vTR}
        v_mul_u32_u24 v202, 7296, v199
        v_lshl_add_u32 v{vMX}, v201, 5, v200
        v_add_u32 v{vMX}, {3*SLOT}, v{vMX}
        v_add_u32 v{vMX}, v{vMX}, v202
        v_lshlrev_b32 v202, 8, v199
        v_sub_u32 v{vMX+1}, v{vMX}, v202
        v_add_u32 v{vMX+1}, 128, v{vMX+1}
        v_and_b32 v198, 31, v193
        v_bfe_u32 v199, v193, 1, 3
        v_xor_b32 v199, v199, v197
        v_lshlrev_b32 v199, 4, v199
        v_lshl_add_u32 v199, v198, 7, v199
        s_add_u32 s3, s{sW}, 1
        s_mul_i32 s3, s3, {SLOT}
        v_add_u32 v204, s3, v199
        v_xor_b32 v205, 32, v204
        v_xor_b32 v206, 64, v204
        v_xor_b32 v207, 0x60, v204
        s_lshl_b32 s3, s{sW}, 7
        s_add_u32 s3, s3, {STAT}
        v_lshl_add_u32 v{vSTR}, v197, 4, s3
        v_lshl_add_u32 v220, v198, 2, s3
        s_lshl_b32 s3, s{sW}, 12
        s_add_u32 s3, s3, {KVX}
        v_add_u32 v{vKXW}, s3, v{vL16}
        s_lshl_b32 s3, s{sW}, 10
        s_add_u32 s3, s3, {KVX}
        v_add_u32 v{vKXR}, s3, v{vL16}
        s_lshl_b32 s3, s{sW}, 3
        s_add_u32 s3, s3, {KVF}
        v_lshl_add_u32 v{vKFW}, v193, 5, s3
        v_cmp_eq_u32 vcc, 0, v193
        v_mov_b32 v{vONE}, 1
        v_bfrev_b32 v{vZ}, -2
        v_and_b32 v{vPA15}, 15, v193
        v_cndmask_b32 v{vZ}, v{vZ}, 0, vcc
        v_lshlrev_b32 v{vPA15}, 2, v{vPA15}
        v_lshlrev_b32 v{vPA31}, 2, v198
        v_mov_b32 v208, 0
        v_mov_b32 v209, 0
        v_mov_b32 v210, 0
        v_mov_b32 v211, 0
        s_or_b32 s{sT}, s2, s{sW}
        s_lshl_b32 s{sFHld}, s{sMB}, 7
        s_add_u32 s{sFHld}, s{sFHld}, {WS_FL+4096}
        s_lshl_b32 s{sFHst}, s{sMI}, 2
        s_add_u32 s{sFHst}, s{sFHst}, s{sW}
        s_lshl_b32 s{sFHst}, s{sFHst}, 4
        s_add_u32 s{sFHst}, s{sFHst}, s{sJ}
        s_lshl_b32 s{sFHst}, s{sFHst}, 2
        s_add_u32 s{sFHst}, s{sFHst}, {WS_FL+4096}
        """)
        def stats(P):
            for q in range(4):
                for r in range(4):
                    x=X+(P*4+q)*4+r
                    p(f"v_dot2_f32_bf16 v{208+(r&1)}, v{x}, s{sONES}, v{208+(r&1)}")
                    p(f"v_dot2_f32_bf16 v{210+(r&1)}, v{x}, v{x}, v{210+(r&1)}")
        prev=None
        for P in range(7):
            p(W(vm=tok_x[P]))
            for q in range(4):
                tk=p(f"ds_read_b128 {v(X+(P*4+q)*4,4)}, v{204+q} offset:{P*4096}")
            if prev is not None:
                p(W(lg=prev)); stats(P-1)
            prev=tk
        p(W(lg=0))
        p(s.stamp("x_in_regs"))
        p("s_barrier")
        p(f"s_cmp_lg_u32 s{sT}, 0"); p("s_cbranch_scc1 L_nogo")
        p(I(f"buffer_store_dword v{vONE}, v{vZ}, {srd(SD)}, 0 offen sc1", count=False))
        p("L_nogo:")
        p(s.wdma(1))
        p(f"s_cmp_lt_u32 s{sW}, 2")
        for i in range(7): p(f"s_cselect_b64 s[{TA+2*i}:{TA+2*i+1}], s[{TB+2*i}:{TB+2*i+1}], s[{TA+2*i}:{TA+2*i+1}]")
        stats(6)
        p(f"""
        v_add_f32 v208, v208, v209
        v_add_f32 v210, v210, v211
        v_mov_b32 v209, v208
        v_mov_b32 v211, v210
        v_permlane32_swap_b32 v208, v209
        v_permlane32_swap_b32 v210, v211
        v_add_f32 v208, v208, v209
        v_add_f32 v210, v210, v211
        v_mul_f32 v208, {fb(1/448)}, v208
        v_mul_f32 v210, {fb(1/448)}, v210
        v_fma_f32 v210, -v208, v208, v210
        v_max_f32 v210, 0, v210
        v_add_f32 v{vV}, {fb(1e-5)}, v210
        v_rsq_f32 v{vS}, v{vV}
        v_mul_f32 v{vK0}, {fb(K0C)}, v{vS}
        v_mul_f32 v{vC2}, {fb(LOG2E)}, v{vS}
        v_mul_f32 v209, v{vS}, v{vS}
        v_mul_f32 v209, v209, v{vS}
        v_mul_f32 v{vK1}, {fb(K1C)}, v209
        ds_write_b32 v220, v{vS}
        """)
        dm=s.wdma(2)+s.wdma(3)+s.wdma(4); di=0
        for g in range(57):
            x0=X+g*2; bk=212+4*(g&1); pb=212+4*((g+1)&1)
            if g<56:
                p(f"v_dot2_f32_bf16 v{bk}, v{x0}, s{sOLO}, v208 neg_lo:[0,0,1]")
                p(f"v_dot2_f32_bf16 v{bk+1}, v{x0}, s{sOHI}, v208 neg_lo:[0,0,1]")
                p(f"v_dot2_f32_bf16 v{bk+2}, v{x0+1}, s{sOLO}, v208 neg_lo:[0,0,1]")
                p(f"v_dot2_f32_bf16 v{bk+3}, v{x0+1}, s{sOHI}, v208 neg_lo:[0,0,1]")
            if g>0:
                p(f"v_cvt_pk_bf16_f32 v{x0-2}, v{pb}, v{pb+1}"); p(f"v_cvt_pk_bf16_f32 v{x0-1}, v{pb+2}, v{pb+3}")
            if di<len(dm): p(dm[di]); di+=1
        assert di==len(dm)
        p(s.stamp("centered"))
    def gelu(s, G, U, n, i0):
        L=[]
        for f in range(n//8):
            P=vP+4*(f&1)
            for h in range(2):
                r=[f*8+h*4+k for k in range(4)]
                L+=[I(f"v_mul_f32 v{vT+k}, v{G+r[k]}, v{G+r[k]}") for k in range(4)]
                L+=[I(f"v_fma_f32 v{vT+k}, v{vT+k}, v{vK1}, v{vK0}") for k in range(4)]
                L+=[I(f"v_mul_f32 v{vT+k}, v{vT+k}, v{G+r[k]}") for k in range(4)]
                L+=[I(f"v_exp_f32 v{vT+k}, v{vT+k}") for k in range(4)]
                L+=[I(f"v_mul_f32 v{G+r[k]}, v{G+r[k]}, v{U+r[k]}") for k in range(4)]
                L+=[I(f"v_fma_f32 v{vT+k}, v{vT+k}, v{vV}, v{vV}") for k in range(4)]
                L+=[I(f"v_rcp_f32 v{vT+k}, v{vT+k}") for k in range(4)]
                L+=[I(f"v_mul_f32 v{G+r[k]}, v{G+r[k]}, v{vT+k}") for k in range(4)]
                L+=[I(f"v_cvt_pk_bf16_f32 v{P+2*h+k}, v{G+r[2*k]}, v{G+r[2*k+1]}") for k in range(2)]
            i=i0+f
            st=I(f"buffer_store_dwordx4 {v(P,4)}, v{vL16}, {srd(SWS)}, s{sH+i//4} offen offset:{(i%4)*1024} sc1")
            s.tok_h[i]=st; L.append(st)
        return L
    def kv_epi(s):
        K=ACC; V=ACC+16; S=192; PK=208; PV=216; L=[]
        rd=[I(f"ds_read_b128 {v(S+4*i,4)}, v{vSTR} offset:{32*i}") for i in range(4)]
        L+=rd+[W(lg=rd[-1])]
        for h in range(4):
            r=[4*h+k for k in range(4)]
            L+=[I(f"v_mul_f32 v{K+x}, v{K+x}, v{S+x}") for x in r]
            L+=[I(f"v_min_f32 v{vT+k}, 0, v{K+r[k]}") for k in range(4)]
            L+=[I(f"v_mul_f32 v{vT+k}, {fb(LOG2E)}, v{vT+k}") for k in range(4)]
            L+=[I(f"v_exp_f32 v{vT+k}, v{vT+k}") for k in range(4)]
            L+=[I(f"v_max_f32 v{K+x}, 0, v{K+x}") for x in r]
            L+=[I(f"v_add_f32 v{K+r[k]}, v{K+r[k]}, v{vT+k}") for k in range(4)]
            L+=[I(f"v_add_f32 v{K+x}, {fb(1e-6)}, v{K+x}") for x in r]
            L+=[I(f"v_mul_f32 v{V+x}, v{V+x}, v{S+x}") for x in r]
            L+=[I(f"v_cvt_pk_bf16_f32 v{PK+2*h+k}, v{K+r[2*k]}, v{K+r[2*k+1]}") for k in range(2)]
            L+=[I(f"v_cvt_pk_bf16_f32 v{PV+2*h+k}, v{V+r[2*k]}, v{V+r[2*k+1]}") for k in range(2)]
        L+=[I(f"v_mov_b32 v{vT}, s{sONES}")]
        L+=[I(f"v_cndmask_b32 v{PV+k}, v{PV+k}, v{vT}, s[{MONE}:{MONE+1}]") for k in range(8)]
        M=[I(f"v_mfma_f32_32x32x16_bf16 {v(K,16)}, {v(PK,4)}, {v(PV,4)}, 0"),
           I(f"v_mfma_f32_32x32x16_bf16 {v(K,16)}, {v(PK+4,4)}, {v(PV+4,4)}, {v(K,16)}")]
        Wr=[I(f"ds_write_b128 v{vKXW}, {v(K+4*q,4)} offset:{q*1024}") for q in range(4)]
        rd2=[I(f"ds_read_b128 {v(S+4*q,4)}, v{vKXR} offset:{q*4096}") for q in range(4)]
        R=rd2+[W(lg=rd2[-1])]
        R+=[I(f"v_add_f32 v{S+k}, v{S+k}, v{S+4+k}") for k in range(4)]
        R+=[I(f"v_add_f32 v{S+8+k}, v{S+8+k}, v{S+12+k}") for k in range(4)]
        R+=[I(f"v_add_f32 v{S+k}, v{S+k}, v{S+8+k}") for k in range(4)]
        st=I(f"buffer_store_dwordx4 {v(S,4)}, v{vL16}, {srd(SWS)}, s{sKVst} offen sc1"); R.append(st); s.tok_kvst=st
        return L,M,Wr,R
    def kv_loads(s):
        L=[]
        for m in range(16):
            dst=v(192+4*m,4) if m<8 else a(32+4*(m-8),4)
            L.append(I(f"buffer_load_dwordx4 {dst}, v{vL16}, {srd(SWS)}, s{sKVld+m//4} offen offset:{(m%4)*1024} sc1"))
        return L
    def kv_reduce(s, lds):
        L=[W(vm=lds[7])]
        for st in (16,8,4):
            for b in range(0,st,4):
                L+=[I(f"v_add_f32 v{192+b+k}, v{192+b+k}, v{192+b+st+k}") for k in range(4)]
        L+=[W(vm=lds[15])]
        for m in range(8):
            t=232+4*(m&1)
            L+=[I(f"v_accvgpr_read_b32 v{t+k}, a{32+4*m+k}") for k in range(4)]
            L+=[I(f"v_add_f32 v{192+4*(m&1)+k}, v{192+4*(m&1)+k}, v{t+k}") if m!=1 else I(f"v_mov_b32 v{196+k}, v{t+k}") for k in range(4)]
        L+=[I(f"v_add_f32 v{192+k}, v{192+k}, v{196+k}") for k in range(4)]
        L+=[I(f"v_cvt_pk_bf16_f32 v196, v192, v193"), I(f"v_cvt_pk_bf16_f32 v197, v194, v195")]
        L+=[I(f"ds_write_b64 v{vKFW}, v[196:197]")]
        return L
    def trd(s, g):
        P=g>>1; u=g&1; ps=P//28; pos=P%28; sg=P//14; pl=P%14; slot=sg%5
        dst=(P%4)*8+u*4; L=[]
        for t in range(2):
            if ps==4 and u==0:
                L.append(I(f"ds_read_b64_tr_b16 {a(dst+2*t,2)}, v{vMX+t} offset:{(slot-3)*SLOT+(pl>>1)*1024+(pl&1)*512}"))
            else:
                wv=(u+2*(pl&1)) if ps<4 else 2+(pl&1)
                off=(slot&1)*SLOT+wv*7168+(pl>>1)*1024+t*256
                L.append(I(f"ds_read_b64_tr_b16 {a(dst+2*t,2)}, v{vTR+slot//2} offset:{off}"))
        return L
    def phase1(s):
        p=s.p; s.tok_h={}
        segs=[]
        def seg(g0,g1,L): segs.append([g0,g1,list(L),0])
        B=lambda k: 28*k-4
        for k in range(1,6): seg(B(k)+1,B(k)+24,s.wdma(k+4))
        gold,gochk=s.spin(f"buffer_load_dword v{vPOLL+1}, off, {srd(SD)}, 0 sc1", f"v{vPOLL+1}", 1)
        e1,eM,eW,eR=s.kv_epi()
        seg(58,96,e1); seg(97,99,eM[:1]); seg(99,100,eM[1:]); seg(104,107,eW); seg(B(4)+1,B(4)+8,eR)
        seg(116,166,s.gelu(ACC+32,ACC+48,16,0))
        seg(172,222,s.gelu(ACC,ACC+16,16,2))
        seg(228,272,s.gelu(ACC+32,ACC+48,16,4))
        s.goL=(gold,gochk)
        seg(60,61,[gold])
        seg(160,161,gochk+[W(vm=s.tok_kvst), I(f"buffer_store_dword v{vONE}, v{vZ}, {srd(SWS)}, s{sFKst} offen sc1")])
        kld,kchk=s.spin(f"buffer_load_dword v{vPOLL}, v{vPA15}, {srd(SWS)}, s{sFKld} offen sc1", f"v{vPOLL}", 1)
        kl=s.kv_loads()
        seg(196,197,[kld]); seg(222,223,kchk); seg(223,231,kl); seg(258,274,s.kv_reduce(kl))
        seg(B(6)-3,B(6),lines(f"""
        s_mov_b32 s{SWD}, s16
        s_and_b32 s{SWD+1}, s17, 0xffff
        s_mul_i32 s{SWD+2}, s{sV2}, {1792*896}
        s_mov_b32 s{SWO}, s8
        s_and_b32 s{SWO+1}, s9, 0xffff
        s_mul_i32 s{SWO+2}, s{sV2}, {448*896}
        s_mov_b32 s{SOUT}, s18
        s_and_b32 s{SOUT+1}, s19, 0xffff
        s_mov_b32 s{SOUT+2}, {2048*896}
        s_lshl_b32 s{sWB7}, s{sW}, 11
        v_lshrrev_b32 v232, 7, v{vL16}
        v_bfe_u32 v233, v{vL16}, 8, 1
        v_lshlrev_b32 v233, 6, v233
        v_and_b32 v234, 0x70, v{vL16}
        v_xor_b32 v233, v233, v234
        s_lshl_b32 s{sT}, s{sNB}, 7
        v_mul_u32_u24 v232, 896, v232
        v_add3_u32 v{vB}, v232, v233, s{sT}
        v_add_u32 v{vB2}, 6144, v{vB}
        """))
        for k,(n0,n1) in {6:(0,3),7:(3,7),8:(7,10),9:(10,14)}.items():
            L=[]
            for n in range(n0,n1): L+=s.bdma(n)
            seg(B(k)+1,B(k)+24,L)
        p(W(vm=s.tok_w[0])); p("s_barrier")
        rd={}
        for g in range(4):
            rd[g]=s.trd(g); p(rd[g])
        for g in range(280):
            P=g>>1; u=g&1; ps=P//28; pos=P%28
            if u==0: p(W(lg=rd[g+1][-1]))
            D=ACC+32*(ps&1)+16*u; fr=a((P%4)*8+u*4,4); xr=v(X+4*pos,4); C=v(D,16) if pos else "0"
            if ps==0: p(f"v_mfma_f32_32x32x16_bf16 {v(D,16)}, {xr}, {fr}, {C}")
            else: p(f"v_mfma_f32_32x32x16_bf16 {v(D,16)}, {fr}, {xr}, {C}")
            if (g+4)%28==0:
                k=(g+4)//28
                p(W(vm=s.tok_w[k], lg=0) if k<10 else W(lg=0)); p("s_barrier")
                if k%2==0: p(s.stamp(f"B{k}"))
            if g+4<280:
                rd[g+4]=s.trd(g+4); p(rd[g+4])
            for sgm in segs:
                g0,g1,L,done=sgm
                if g<g0 or done>=len(L): continue
                tot=sum(x.cost for x in L); tgt=tot*(g-g0+1)/(g1-g0) if g<g1-1 else tot+1
                acc=sum(x.cost for x in L[:done])
                while done<len(L) and (acc<tgt or L[done].kind=="label"):
                    p(L[done]); acc+=L[done].cost; done+=1
                sgm[3]=done
        assert all(x[3]==len(x[2]) for x in segs)
        p(s.stamp("p1_mfma_done"))
        Q=ACC+16; PQ=208; N=ACC+32; PO=216
        p(f"v_lshlrev_b32 v232, 1, v{vL16}"); p(f"v_add_u32 v232, {KVF}, v232")
        r0=p(f"ds_read_b128 a[64:67], v232"); r1=p(f"ds_read_b128 a[68:71], v232 offset:16")
        L=[]
        for n in range(14,17): L+=s.bdma(n)
        p(L)
        for h in range(4):
            r=[4*h+k for k in range(4)]
            p([I(f"v_mul_f32 v{vT+k}, v{Q+r[k]}, v{vC2}") for k in range(4)])
            p([I(f"v_min_f32 v{vT+k}, 0, v{vT+k}") for k in range(4)])
            p([I(f"v_exp_f32 v{vT+k}, v{vT+k}") for k in range(4)])
            p([I(f"v_max_f32 v{Q+x}, 0, v{Q+x}") for x in r])
            p([I(f"v_fma_f32 v{Q+r[k]}, v{Q+r[k]}, v{vS}, v{vT+k}") for k in range(4)])
            p([I(f"v_add_f32 v{Q+x}, {fb(1e-6)}, v{Q+x}") for x in r])
            p([I(f"v_cvt_pk_bf16_f32 v{PQ+2*h+k}, v{Q+r[2*k]}, v{Q+r[2*k+1]}") for k in range(2)])
        p([I(f"v_cndmask_b32 v{PQ+6+k}, v{PQ+6+k}, 0, s[{MHI}:{MHI+1}]") for k in range(2)])
        p(W(lg=r1))
        p(f"v_mfma_f32_32x32x16_bf16 {v(N,16)}, a[64:67], {v(PQ,4)}, 0")
        p(f"v_mfma_f32_32x32x16_bf16 {v(N,16)}, a[68:71], {v(PQ+4,4)}, {v(N,16)}")
        p(s.gelu(ACC,ACC+8,8,6))
        p(f"""
        v_mov_b32 v232, v{N+12}
        v_mov_b32 v233, v{N+12}
        v_permlane32_swap_b32 v232, v233
        v_add_f32 v233, {fb(1e-6)}, v233
        v_rcp_f32 v233, v233
        """)
        p([I(f"v_mul_f32 v{N+k}, v{N+k}, v233") for k in range(16)])
        p([I(f"v_cvt_pk_bf16_f32 v{PO+k}, v{N+2*k}, v{N+2*k+1}") for k in range(8)])
        p([I(f"v_cndmask_b32 v{PO+6+k}, v{PO+6+k}, 0, s[{MHI}:{MHI+1}]") for k in range(2)])
        p(f"buffer_store_dwordx4 {v(PO,4)}, v{vL16}, {srd(SWS)}, s{sH+1} offen offset:3072 sc1")
        last=p(f"buffer_store_dwordx4 {v(PO+4,4)}, v{vL16}, {srd(SWS)}, s{sH+2} offen sc1")
        p(s.stamp("tail_done"))
        p(W(vm=last))
        p(f"buffer_store_dword v{vONE}, v{vZ}, {srd(SWS)}, s{sFHst} offen sc1")
        p(s.stamp("published"))
        p(f"s_cmp_eq_u32 s{sV2}, 0"); p("s_cbranch_scc1 L_fin")
    def phase2(s):
        p=s.p
        vBT=192; vA=198; vXR=204; NA=14
        p(f"""
        v_lshrrev_b32 v232, 9, v{vL16}
        v_bfe_u32 v233, v{vL16}, 6, 2
        v_lshl_add_u32 v232, v232, 2, v233
        v_lshlrev_b32 v232, 7, v232
        v_bfe_u32 v233, v{vL16}, 7, 1
        v_lshl_add_u32 v232, v233, 6, v232
        v_bfe_u32 v233, v{vL16}, 8, 1
        v_lshl_add_u32 v232, v233, 5, v232
        v_bfe_u32 v233, v{vL16}, 4, 2
        v_lshl_add_u32 v232, v233, 3, v232
        v_add_u32 v{vBT}, s{sWB7}, v232
        v_xor_b32 v{vBT+1}, 64, v{vBT}
        v_add_u32 v{vBT+2}, 0x10000, v{vBT}
        v_add_u32 v{vBT+3}, 0x10000, v{vBT+1}
        v_add_u32 v{vBT+4}, 0x20000, v{vBT}
        v_add_u32 v{vBT+5}, 0x20000, v{vBT+1}
        v_mov_b32 v{vA}, v{vL16}
        v_add_u32 v{vA+1}, 4096, v{vL16}
        v_add_u32 v{vA+2}, 8192, v{vL16}
        v_add_u32 v{vA+3}, {16*9216}, v{vL16}
        v_add_u32 v{vA+4}, {16*9216+4096}, v{vL16}
        v_add_u32 v{vA+5}, {16*9216+8192}, v{vL16}
        v_lshrrev_b32 v232, 6, v{vL16}
        s_lshl_b32 s{sT}, s{sW}, 4
        v_add_u32 v232, s{sT}, v232
        v_bfe_u32 v233, v{vL16}, 4, 2
        v_mul_u32_u24 v234, 272, v232
        v_lshl_add_u32 v214, v233, 6, v234
        v_mul_u32_u24 v232, 896, v232
        v_lshl_add_u32 v212, v233, 5, v232
        s_mul_i32 s{sT2}, s{sMB}, {64*896}
        s_lshl_b32 s{sT}, s{sNB}, 7
        s_add_u32 s{sT2}, s{sT2}, s{sT}
        """)
        xr0=p(f"buffer_load_dwordx4 {v(vXR,4)}, v212, {srd(SX)}, s{sT2} offen")
        xr1=p(f"buffer_load_dwordx4 {v(vXR+4,4)}, v212, {srd(SX)}, s{sT2} offen offset:16")
        ld,chk=s.spin(f"buffer_load_dword v{vPOLL}, v{vPA31}, {srd(SWS)}, s{sFHld} offen sc1", f"v{vPOLL}", 1)
        p(ld); p(chk)
        p(s.stamp("flags_seen"))
        ta={}
        def aload(n):
            jj,i=kmap(n); L=[]
            for mb in range(2):
                L.append(I(f"buffer_load_dwordx4 {v(X+(n%NA)*8+4*mb,4)}, v{vA+3*mb+i//4}, {srd(SWS)}, s{sA+jj} offen offset:{(i%4)*1024} sc1"))
            ta[n]=L[-1]; return L
        def btr(n,q):
            nbk,t=q>>1,q&1; e=n%NB
            return I(f"ds_read_b64_tr_b16 {a((n%4)*8+nbk*4+2*t,2)}, v{vBT+2*(e//8)+nbk} offset:{(e%8)*8192+t*1024}")
        for n in range(NA): p(aload(n))
        rb={}
        p(W(vm=s.tok_b[0]))
        for q in range(4): rb[0]=p(btr(0,q))
        for n in range(36):
            p(W(vm=ta[n], lg=rb[n]))
            for q in range(4):
                nbk,mb=q>>1,q&1; D=ACC+16*q
                p(f"v_mfma_f32_32x32x16_bf16 {v(D,16)}, {a((n%4)*8+nbk*4,4)}, {v(X+(n%NA)*8+4*mb,4)}, {v(D,16) if n else 0}")
                if n+1<36:
                    if q==0:
                        p(W(vm=s.tok_b[n+1])); p(btr(n+1,0)); p(btr(n+1,1))
                    if q==1:
                        p(btr(n+1,2)); rb[n+1]=p(btr(n+1,3))
                if q==2 and n+NB<36: p(s.bdma(n+NB))
                if q==3 and n+NA<36: p(aload(n+NA))
        p(s.stamp("p2_mfma_done"))
        p("s_barrier")
        p(f"""
        v_bfe_u32 v232, v{vL16}, 4, 5
        v_mul_u32_u24 v232, 272, v232
        v_lshrrev_b32 v233, 9, v{vL16}
        v_lshl_add_u32 v232, v233, 4, v232
        s_mul_i32 s{sT}, s{sW}, 17408
        v_add_u32 v232, s{sT}, v232
        """)
        for q in range(4):
            nbk,mb=q>>1,q&1
            for i in range(4):
                p(f"ds_write_b128 v232, {v(ACC+16*q+4*i,4)} offset:{mb*32*272+nbk*128+i*32}")
        p(W(lg=0)); p("s_barrier")
        rr=[]
        for w in range(4):
            for c in range(4): rr.append(p(f"ds_read_b128 {v(16+16*w+4*c,4)}, v214 offset:{w*17408+c*16}"))
        p(W(vm=xr1))
        for k in range(8):
            p(f"v_lshlrev_b32 v{80+2*k}, 16, v{vXR+k}"); p(f"v_and_b32 v{81+2*k}, 0xffff0000, v{vXR+k}")
        p(W(lg=rr[7]))
        for k in range(8): p(f"v_pk_add_f32 {v(16+2*k,2)}, {v(16+2*k,2)}, {v(32+2*k,2)}")
        p(W(lg=rr[15]))
        for k in range(8): p(f"v_pk_add_f32 {v(48+2*k,2)}, {v(48+2*k,2)}, {v(64+2*k,2)}")
        for k in range(8): p(f"v_pk_add_f32 {v(16+2*k,2)}, {v(16+2*k,2)}, {v(80+2*k,2)}")
        for k in range(8): p(f"v_pk_add_f32 {v(16+2*k,2)}, {v(16+2*k,2)}, {v(48+2*k,2)}")
        for k in range(8): p(f"v_cvt_pk_bf16_f32 v{96+k}, v{16+2*k}, v{17+2*k}")
        p(f"buffer_store_dwordx4 v[96:99], v212, {srd(SOUT)}, s{sT2} offen")
        p(f"buffer_store_dwordx4 v[100:103], v212, {srd(SOUT)}, s{sT2} offen offset:16")
        p("L_fin:")
        if s.stamps:
            p(W(vm=0)); p(s.stamp("end"))
            p(f"s_lshl_b32 s{sT}, s{sMI}, 4\ns_add_u32 s{sT}, s{sT}, s{sJ}\ns_lshl_b32 s{sT}, s{sT}, 2\ns_add_u32 s{sT}, s{sT}, s{sW}\ns_lshl_b32 s{sT}, s{sT}, 8\ns_add_u32 s{sT}, s{sT}, {WS_ST}")
            p(f"v_lshrrev_b32 v232, 2, v{vL16}")
            p(f"buffer_store_dword v0, v232, {srd(SWS)}, s{sT} offen")
        p("L_end:"); p("s_endpgm")
    def build(s):
        s.prologue(); s.phase1(); s.phase2()
        s.p.add(s.ool); s.p("L_codeend:")
        s.p.resolve()
        s.p.check(fix=True)
        errs=s.p.check()
        hdr=f"""; Fused LayerNorm + linear attention + GEGLU FFN + residual, one persistent launch (generated by dev/gen.py)
; @launch grid=(256,1,1) block=(256,1,1) lds={LDS}
.amdgcn_target "amdgcn-amd-amdhsa--gfx950"
.text
.globl {KN}
.p2align 8
.type {KN},@function
{KN}:
"""
        body=s.p.text().replace("CODEBYTES", str(s.opt.get("codebytes",32768)))
        ftr=f""".section .rodata,"a"
.p2align 6
.amdhsa_kernel {KN}
  .amdhsa_next_free_vgpr 512
  .amdhsa_next_free_sgpr 102
  .amdhsa_accum_offset 256
  .amdhsa_group_segment_fixed_size 0
  .amdhsa_kernarg_size 80
  .amdhsa_user_sgpr_count 2
  .amdhsa_user_sgpr_kernarg_segment_ptr 1
  .amdhsa_system_sgpr_workgroup_id_x 1
.end_amdhsa_kernel
"""
        return hdr+body+ftr, errs
if __name__=="__main__":
    import argparse
    ap=argparse.ArgumentParser(); ap.add_argument("-o",default="k.s"); ap.add_argument("--stamps",action="store_true"); ap.add_argument("-v",action="store_true")
    ar=ap.parse_args()
    g=Gen(stamps=ar.stamps); txt,errs=g.build()
    for e in errs: print("ERR",e)
    open(ar.o,"w").write(txt)
    print("instrs",len(g.p.L),"errors",len(errs))
    from build import build
    build(ar.o)
```

```python
import sys, struct
from emit import Prog, I, W, Ins
KN = "parallel_sum__linear_attn_block__geglu_ffn__prompt_kernel"
def fb(x): return "0x%08x" % struct.unpack("<I", struct.pack("<f", x))[0]
SLOT=28672; KVX=143360; STAT=159744; KVF=160256; LDS=163840
WS_KVP=0x900000; WS_FL=0xA00000; WS_ST=0xB00000; WS_SZ=0xC00000
LOG2E=1.4426950408889634
K0C=-2*0.7978845608028654*LOG2E; K1C=K0C*0.044715
sA=4; sBd=12; sBo=20
sW,sT=10,11
SX,SW0,SW1,SW4,SWS,SD=24,28,32,36,40,44
SWD,SWO,SOUT=SW0,SW1,SW4
TA,TB=48,62
sMI,sJ,sR,sWB7=76,77,78,79
sH=80; sKVst=83; sKVld=84; sMB,sNB,sV2=88,89,90
sT2=91; MONE=92; MHI=94; sSTMP=96; sOLO,sOHI,sONES,sSPIN=98,99,100,101
sFKst,sFKld,sFHst,sFHld=0,1,2,3
def srd(n): return f"s[{n}:{n+3}]"
vL16,vW0,vW1,vW4=1,2,3,4
vTR=5; vMX=8; vK0,vK1,vV,vS,vC2=10,11,12,13,14; vB2=15; vB=2
X=16; ACC=128
vZ,vONE,vPOLL,vPA15,vPA31=224,225,226,228,229
vSTR,vKXW,vKXR,vKFW=240,241,242,243
vT=244; vP=248
NB=17
def v(a,n=1): return f"v{a}" if n==1 else f"v[{a}:{a+n-1}]"
def a(x,n=1): return f"a{x}" if n==1 else f"a[{x}:{x+n-1}]"
def lines(t): return [I(l.strip()) for l in t.strip().split("\n") if l.strip()]
def kmap(n):
    if n<24: return (n%8)//2, 2*(n//8)+n%2
    return (n-24)//3, 6+(n-24)%3

class Gen:
    def __init__(s, stamps=False, **opt):
        s.p=Prog(); s.ool=[]; s.stamps=stamps; s.stnames=[]; s.opt=opt; s.lbl=0
    def stamp(s, name=""):
        if not s.stamps: return []
        k=len(s.stnames); s.stnames.append(name)
        return [I(f"s_memtime s[{sSTMP}:{sSTMP+1}]"), I("s_waitcnt lgkmcnt(0)"), I(f"v_writelane_b32 v0, s{sSTMP}, {k}")]
    def spin(s, load_text, reg, val):
        n=s.lbl; s.lbl+=1
        ld=I(load_text)
        chk=[W(vm=ld), I(f"v_cmp_ne_u32 vcc, {val}, {reg}"), I(f"s_cbranch_vccnz L_spin{n}"), I(f"L_ok{n}:")]
        s.ool += [I(f"L_spin{n}:"), I(f"s_mov_b32 s{sSPIN}, 0x40000"), I(f"L_spinl{n}:"), I("s_sleep 1"),
                  I(load_text,count=False), I("s_waitcnt vmcnt(0)"), I(f"v_cmp_ne_u32 vcc, {val}, {reg}"),
                  I(f"s_cbranch_vccz L_ok{n}"), I(f"s_sub_u32 s{sSPIN}, s{sSPIN}, 1"), I(f"s_cmp_lg_u32 s{sSPIN}, 0"),
                  I(f"s_cbranch_scc1 L_spinl{n}"), I(f"s_branch L_ok{n}")]
        return ld, chk
    def wdma(s, sg):
        ps=sg>>1; hf=sg&1; L=[]
        sr={0:SW0,4:SW4}.get(ps,SW1); vo={0:vW0,4:vW4}.get(ps,vW1); tb=TB if ps in(1,2,3) else TA
        if ps in (2,3) and hf==0: L.append(I(f"v_add_u32 v{vW1}, 64, v{vW1}"))
        for i in range(7):
            if i in (0,4): L.append(I(f"s_add_u32 m0, s{sWB7}, {(sg%5)*SLOT+(4096 if i==4 else 0)}"))
            L.append(I(f"buffer_load_dwordx4 v{vo}, {srd(sr)}, s{tb+7*hf+i} offen offset:{(i%4)*1024} lds"))
        s.tok_w[sg]=L[-1]
        return L
    def bdma(s, n):
        jj,i=kmap(n)
        base,sr,k=(sBd+jj,SWD,i) if i<7 else (sBo+jj,SWO,i-7)
        L=[I(f"s_add_u32 m0, s{sWB7}, {(n%NB)*8192}"), I(f"s_add_u32 s{sT}, s{base}, {k*14336}"),
           I(f"buffer_load_dwordx4 v{vB}, {srd(sr)}, s{sT} offen lds"),
           I(f"buffer_load_dwordx4 v{vB2}, {srd(sr)}, s{sT} offen offset:1024 lds")]
        s.tok_b[n]=L[-1]
        return L
    def prologue(s):
        p=s.p; s.tok_w={}; s.tok_b={}
        p(f"""
        s_cmp_ge_u32 s2, 256
        s_cbranch_scc1 L_end
        s_load_dwordx4 s[4:7], s[0:1], 0
        s_load_dwordx4 s[20:23], s[0:1], 64
        s_load_dwordx2 s[8:9], s[0:1], 16
        s_load_dwordx4 s[12:15], s[0:1], 32
        s_load_dwordx4 s[16:19], s[0:1], 48
        s_getpc_b64 s[{SD}:{SD+1}]
        L_pc:
        v_lshrrev_b32 v192, 6, v0
        v_and_b32 v193, 63, v0
        v_readfirstlane_b32 s{sW}, v192
        s_and_b32 s{SD+1}, s{SD+1}, 0xffff
        s_mov_b32 s{SD+2}, L_codeend-L_pc
        s_mov_b32 s{SD+3}, 0x20000
        v_lshlrev_b32 v194, 7, v0
        v_lshlrev_b32 v{vL16}, 4, v193
        buffer_load_dword v255, v194, {srd(SD)}, 0 offen
        s_and_b32 s{sT}, s2, 7
        s_lshr_b32 s{sT2}, s2, 3
        s_and_b32 s{sMI}, s{sT}, 1
        s_lshl_b32 s{sMI}, s{sMI}, 3
        s_and_b32 s{sR}, s{sT2}, 7
        s_add_u32 s{sMI}, s{sMI}, s{sR}
        s_lshr_b32 s{sJ}, s{sT}, 1
        s_lshl_b32 s{sJ}, s{sJ}, 2
        s_lshr_b32 s3, s{sT2}, 3
        s_add_u32 s{sJ}, s{sJ}, s3
        s_lshl_b32 s3, s3, 1
        s_add_u32 s{sR}, s{sR}, s3
        s_cmp_ge_u32 s{sR}, 7
        s_cselect_b32 s3, 7, 0
        s_sub_u32 s{sR}, s{sR}, s3
        s_mul_i32 s{sMB}, s{sT2}, 37
        s_lshr_b32 s{sMB}, s{sMB}, 8
        s_mul_i32 s3, s{sMB}, 7
        s_sub_u32 s{sNB}, s{sT2}, s3
        s_cmp_lt_u32 s{sT2}, 28
        s_cselect_b32 s{sV2}, 1, 0
        s_lshl_b32 s{sT}, s{sT}, 2
        s_add_u32 s{sMB}, s{sMB}, s{sT}
        s_mul_i32 s{sWB7}, s{sW}, 7168
        v_lshrrev_b32 v195, 3, v193
        v_mul_u32_u24 v195, 896, v195
        v_lshrrev_b32 v196, 4, v193
        v_and_b32 v197, 7, v193
        v_xor_b32 v196, v196, v197
        v_lshl_add_u32 v195, v196, 4, v195
        v_xor_b32 v196, 64, v195
        s_lshl_b32 s{sT}, s{sMI}, 2
        s_add_u32 s{sT}, s{sT}, s{sW}
        s_mul_i32 s{sT2}, s{sT}, {32*896}
        s_mul_i32 s{sH}, s{sT}, {16*9216}
        s_add_u32 s3, s{sW}, 1
        s_mul_i32 s3, s3, {SLOT}
        s_waitcnt lgkmcnt(0)
        s_mov_b32 s{SX}, s4
        s_and_b32 s{SX+1}, s5, 0xffff
        s_mov_b32 s{SX+2}, {2048*896}
        s_mov_b32 s{SX+3}, 0x20000
        s_mov_b32 s4, s{sR}
        """)
        if s.stamps: p("v_mov_b32 v0, 0"); p(s.stamp("start"))
        if s.opt.get("fixspan"): p(f"s_memrealtime s[{sSTMP}:{sSTMP+1}]\ns_waitcnt lgkmcnt(0)\nv_mov_b32 v0, s{sSTMP}")
        if s.opt.get("dbgspan"): p(f"s_memrealtime s[{sSTMP}:{sSTMP+1}]\ns_waitcnt lgkmcnt(0)\ns_not_b32 s{sSTMP}, s{sSTMP}\nv_mov_b32 v0, s{sSTMP}")
        nfl=s.opt.get("nstage",1)+1
        p("s_cmp_lg_u32 s2, 0"); p("s_cbranch_scc1 L_noclr")
        p(f"s_mov_b32 s{SWS}, s22\ns_and_b32 s{SWS+1}, s23, 0xffff\ns_mov_b32 s{SWS+2}, {WS_SZ}\ns_mov_b32 s{SWS+3}, 0x20000")
        p(f"v_mov_b32 v200, 0\nv_mov_b32 v201, 0\nv_mov_b32 v202, 0\nv_mov_b32 v203, 0")
        p(f"s_lshl_b32 s5, s{sW}, 10"); p(f"s_add_u32 s5, s5, {WS_FL}")
        for k in range(nfl):
            p(I(f"buffer_store_dwordx4 v[200:203], v{vL16}, {srd(SWS)}, s5 offen sc1", count=False))
            p("s_add_u32 s5, s5, 4096")
        p("L_noclr:")
        tok_x=[]
        for P in range(7):
            p(f"s_add_u32 m0, s3, {P*4096}")
            p(f"s_lshl_b32 s5, s4, 7"); p(f"s_add_u32 s5, s5, s{sT2}")
            for t in range(4):
                tk=p(f"buffer_load_dwordx4 v{195+(t&1)}, {srd(SX)}, s5 offen offset:{t*1024} lds")
                if t<3: p(f"s_add_u32 s5, s5, 6144")
            tok_x.append(tk)
            if P<6:
                p(f"s_add_u32 s4, s4, 1"); p("s_cmp_eq_u32 s4, 7"); p("s_cselect_b32 s4, 0, s4")
        p(f"""
        s_lshl_b32 s{sR}, s{sR}, 2
        s_sub_u32 s{SW0}, s6, 3072
        s_subb_u32 s{SW0+1}, s7, 0
        s_and_b32 s{SW0+1}, s{SW0+1}, 0xffff
        s_mov_b32 s{SW0+2}, {448*2688+3072}
        s_mov_b32 s{SW0+3}, 0x20000
        s_mov_b32 s4, s{sR}
        """)
        for i in range(14):
            bias=3072-1024*((i%7)%4)
            p(f"s_mul_i32 s{TA+i}, s4, {16*2688}"); p(f"s_mul_i32 s{TB+i}, s4, {16*3584}")
            if bias:
                p(f"s_add_u32 s{TA+i}, s{TA+i}, {bias}"); p(f"s_add_u32 s{TB+i}, s{TB+i}, {bias}")
            if i<13:
                p("s_add_u32 s4, s4, 2"); p("s_cmp_eq_u32 s4, 28"); p("s_cselect_b32 s4, 0, s4")
        p(f"""
        s_lshr_b32 s4, s{sW}, 1
        s_lshl_b32 s4, s4, 4
        s_and_b32 s5, s{sW}, 1
        v_lshrrev_b32 v197, 2, v193
        v_and_b32 v198, 3, v193
        v_lshlrev_b32 v198, 4, v198
        v_add_u32 v199, s4, v197
        s_mul_i32 s3, s5, 896
        s_mul_i32 s4, s{sJ}, 56
        s_add_u32 s3, s3, s4
        s_add_u32 s3, s3, 896
        v_mul_u32_u24 v{vW0}, 2688, v199
        v_add3_u32 v{vW0}, v{vW0}, v198, s3
        """)
        p(s.wdma(0))
        p(f"""
        s_mul_i32 s3, s{sJ}, 224
        v_mul_u32_u24 v{vW1}, 3584, v199
        v_add3_u32 v{vW1}, v{vW1}, v198, s3
        s_cmp_eq_u32 s5, 0
        s_cselect_b32 s{SW1}, s12, s14
        s_cselect_b32 s{SW1+1}, s13, s15
        s_sub_u32 s{SW1}, s{SW1}, 3072
        s_subb_u32 s{SW1+1}, s{SW1+1}, 0
        s_and_b32 s{SW1+1}, s{SW1+1}, 0xffff
        s_mov_b32 s{SW1+2}, {448*3584+3072}
        s_mov_b32 s{SW1+3}, 0x20000
        s_lshl_b32 s6, s5, 4
        v_add_u32 v199, s6, v197
        v_mul_u32_u24 v199, 2688, v199
        v_add3_u32 v199, v199, v198, s4
        s_lshl_b32 s6, s5, 2
        v_lshrrev_b32 v197, 1, v193
        v_xor_b32 v197, s6, v197
        v_mul_u32_u24 v197, 3584, v197
        v_and_b32 v198, 1, v193
        v_lshlrev_b32 v198, 4, v198
        s_add_u32 s3, s3, 192
        v_add3_u32 v197, v197, v198, s3
        s_cmp_lt_u32 s{sW}, 2
        s_cselect_b32 s{SW4}, s{SW1}, s{SW0}
        s_cselect_b32 s{SW4+1}, s{SW1+1}, s{SW0+1}
        s_cselect_b32 s{SW4+2}, s{SW1+2}, s{SW0+2}
        s_cselect_b64 vcc, -1, 0
        s_mov_b32 s{SW4+3}, 0x20000
        s_mov_b32 s{SWS}, s22
        s_and_b32 s{SWS+1}, s23, 0xffff
        s_mov_b32 s{SWS+2}, {WS_SZ}
        s_mov_b32 s{SWS+3}, 0x20000
        v_cndmask_b32 v{vW4}, v199, v197, vcc
        s_mov_b32 s{SD}, s20
        s_and_b32 s{SD+1}, s21, 0xffff
        s_mov_b32 s{SD+2}, 256
        s_mov_b32 s{SD+3}, 0x20000
        """)
        p(f"""
        s_mul_i32 s3, s{sJ}, 9216
        s_add_u32 s{sH}, s{sH}, s3
        s_add_u32 s{sH+1}, s{sH}, 4096
        s_add_u32 s{sH+2}, s{sH}, 8192
        s_lshl_b32 s3, s{sJ}, 2
        s_add_u32 s3, s3, s{sW}
        s_lshl_b32 s{sFKld}, s3, 6
        s_add_u32 s{sFKld}, s{sFKld}, {WS_FL}
        s_lshl_b32 s3, s3, 14
        s_add_u32 s{sKVld}, s3, {WS_KVP}
        s_add_u32 s{sKVld+1}, s{sKVld}, 4096
        s_add_u32 s{sKVld+2}, s{sKVld}, 8192
        s_add_u32 s{sKVld+3}, s{sKVld}, 12288
        s_lshl_b32 s3, s{sMI}, 10
        s_add_u32 s{sKVst}, s{sKVld}, s3
        s_lshl_b32 s3, s{sMI}, 2
        s_add_u32 s{sFKst}, s{sFKld}, s3
        s_mov_b32 s{MONE}, 0x10000000
        s_mov_b32 s{MONE+1}, 0x10000000
        s_mov_b32 s{MHI}, 0
        s_mov_b32 s{MHI+1}, -1
        s_mov_b32 s{sOLO}, 0x3f80
        s_mov_b32 s{sOHI}, 0x3f800000
        s_mov_b32 s{sONES}, 0x3f803f80
        s_add_u32 s{sT}, s{sMB}, s{sNB}
        s_lshl_b32 s{sT2}, s{sW}, 2
        """)
        for jj in range(4):
            p(f"""
            s_add_u32 s3, s{sT}, {jj}
            s_and_b32 s3, s3, 3
            s_add_u32 s3, s3, s{sT2}
            s_mul_i32 s{sBd+jj}, s3, {112*896}
            s_mul_i32 s{sBo+jj}, s3, {28*896}
            s_lshl_b32 s{sA+jj}, s{sMB}, 5
            s_add_u32 s{sA+jj}, s{sA+jj}, s3
            s_mul_i32 s{sA+jj}, s{sA+jj}, 9216
            """)
        p(f"""
        v_lshrrev_b32 v197, 5, v193
        v_bfe_u32 v198, v193, 2, 2
        v_bfe_u32 v199, v193, 4, 1
        v_and_b32 v200, 3, v193
        v_lshlrev_b32 v200, 3, v200
        v_lshl_add_u32 v201, v197, 3, v198
        v_lshl_add_u32 v{vTR}, v201, 6, v200
        v_lshl_add_u32 v{vTR}, v199, 5, v{vTR}
        v_add_u32 v{vTR+1}, {2*SLOT}, v{vTR}
        v_add_u32 v{vTR+2}, {4*SLOT}, v{vTR}
        v_mul_u32_u24 v202, 7296, v199
        v_lshl_add_u32 v{vMX}, v201, 5, v200
        v_add_u32 v{vMX}, {3*SLOT}, v{vMX}
        v_add_u32 v{vMX}, v{vMX}, v202
        v_lshlrev_b32 v202, 8, v199
        v_sub_u32 v{vMX+1}, v{vMX}, v202
        v_add_u32 v{vMX+1}, 128, v{vMX+1}
        v_and_b32 v198, 31, v193
        v_bfe_u32 v199, v193, 1, 3
        v_xor_b32 v199, v199, v197
        v_lshlrev_b32 v199, 4, v199
        v_lshl_add_u32 v199, v198, 7, v199
        s_add_u32 s3, s{sW}, 1
        s_mul_i32 s3, s3, {SLOT}
        v_add_u32 v204, s3, v199
        v_xor_b32 v205, 32, v204
        v_xor_b32 v206, 64, v204
        v_xor_b32 v207, 0x60, v204
        s_lshl_b32 s3, s{sW}, 7
        s_add_u32 s3, s3, {STAT}
        v_lshl_add_u32 v{vSTR}, v197, 4, s3
        v_lshl_add_u32 v220, v198, 2, s3
        s_lshl_b32 s3, s{sW}, 12
        s_add_u32 s3, s3, {KVX}
        v_add_u32 v{vKXW}, s3, v{vL16}
        s_lshl_b32 s3, s{sW}, 10
        s_add_u32 s3, s3, {KVX}
        v_add_u32 v{vKXR}, s3, v{vL16}
        s_lshl_b32 s3, s{sW}, 3
        s_add_u32 s3, s3, {KVF}
        v_lshl_add_u32 v{vKFW}, v193, 5, s3
        v_cmp_eq_u32 vcc, 0, v193
        v_mov_b32 v{vONE}, 1
        v_bfrev_b32 v{vZ}, 2
        v_and_b32 v{vPA15}, 15, v193
        v_cndmask_b32 v{vZ}, v{vZ}, 0, vcc
        v_lshlrev_b32 v{vPA15}, 2, v{vPA15}
        v_lshlrev_b32 v{vPA31}, 2, v198
        v_mov_b32 v208, 0
        v_mov_b32 v209, 0
        v_mov_b32 v210, 0
        v_mov_b32 v211, 0
        s_or_b32 s{sT}, s2, s{sW}
        s_lshl_b32 s{sFHld}, s{sMB}, 7
        s_add_u32 s{sFHld}, s{sFHld}, {WS_FL+4096}
        s_lshl_b32 s{sFHst}, s{sMI}, 2
        s_add_u32 s{sFHst}, s{sFHst}, s{sW}
        s_lshl_b32 s{sFHst}, s{sFHst}, 4
        s_add_u32 s{sFHst}, s{sFHst}, s{sJ}
        s_lshl_b32 s{sFHst}, s{sFHst}, 2
        s_add_u32 s{sFHst}, s{sFHst}, {WS_FL+4096}
        """)
        def stats(P):
            for q in range(4):
                for r in range(4):
                    x=X+(P*4+q)*4+r
                    p(f"v_dot2_f32_bf16 v{208+(r&1)}, v{x}, s{sONES}, v{208+(r&1)}")
                    p(f"v_dot2_f32_bf16 v{210+(r&1)}, v{x}, v{x}, v{210+(r&1)}")
        prev=None
        for P in range(7):
            p(W(vm=tok_x[P]))
            for q in range(4):
                tk=p(f"ds_read_b128 {v(X+(P*4+q)*4,4)}, v{204+q} offset:{P*4096}")
            if prev is not None:
                p(W(lg=prev)); stats(P-1)
            prev=tk
        p(W(lg=0))
        p(s.stamp("x_in_regs"))
        p("s_barrier")
        p(f"s_cmp_lg_u32 s{sT}, 0"); p("s_cbranch_scc1 L_nogo")
        p(I(f"buffer_store_dword v{vONE}, v{vZ}, {srd(SD)}, 0 offen sc1", count=False))
        p("L_nogo:")
        p(s.wdma(1))
        p(f"s_cmp_lt_u32 s{sW}, 2")
        for i in range(7): p(f"s_cselect_b64 s[{TA+2*i}:{TA+2*i+1}], s[{TB+2*i}:{TB+2*i+1}], s[{TA+2*i}:{TA+2*i+1}]")
        stats(6)
        p(f"""
        v_add_f32 v208, v208, v209
        v_add_f32 v210, v210, v211
        v_mov_b32 v209, v208
        v_mov_b32 v211, v210
        v_permlane32_swap_b32 v208, v209
        v_permlane32_swap_b32 v210, v211
        v_add_f32 v208, v208, v209
        v_add_f32 v210, v210, v211
        v_mul_f32 v208, {fb(1/448)}, v208
        v_mul_f32 v210, {fb(1/448)}, v210
        v_fma_f32 v210, -v208, v208, v210
        v_max_f32 v210, 0, v210
        v_add_f32 v{vV}, {fb(1e-5)}, v210
        v_rsq_f32 v{vS}, v{vV}
        v_mul_f32 v{vK0}, {fb(K0C)}, v{vS}
        v_mul_f32 v{vC2}, {fb(LOG2E)}, v{vS}
        v_mul_f32 v209, v{vS}, v{vS}
        v_mul_f32 v209, v209, v{vS}
        v_mul_f32 v{vK1}, {fb(K1C)}, v209
        ds_write_b32 v220, v{vS}
        """)
        dm=s.wdma(2)+s.wdma(3)+s.wdma(4); di=0
        for g in range(57):
            x0=X+g*2; bk=212+4*(g&1); pb=212+4*((g+1)&1)
            if g<56:
                p(f"v_dot2_f32_bf16 v{bk}, v{x0}, s{sOLO}, v208 neg_lo:[0,0,1]")
                p(f"v_dot2_f32_bf16 v{bk+1}, v{x0}, s{sOHI}, v208 neg_lo:[0,0,1]")
                p(f"v_dot2_f32_bf16 v{bk+2}, v{x0+1}, s{sOLO}, v208 neg_lo:[0,0,1]")
                p(f"v_dot2_f32_bf16 v{bk+3}, v{x0+1}, s{sOHI}, v208 neg_lo:[0,0,1]")
            if g>0:
                p(f"v_cvt_pk_bf16_f32 v{x0-2}, v{pb}, v{pb+1}"); p(f"v_cvt_pk_bf16_f32 v{x0-1}, v{pb+2}, v{pb+3}")
            if di<len(dm): p(dm[di]); di+=1
        assert di==len(dm)
        p(s.stamp("centered"))
    def gelu(s, G, U, n, i0):
        L=[]
        for f in range(n//8):
            P=vP+4*(f&1)
            for h in range(2):
                r=[f*8+h*4+k for k in range(4)]
                L+=[I(f"v_mul_f32 v{vT+k}, v{G+r[k]}, v{G+r[k]}") for k in range(4)]
                L+=[I(f"v_fma_f32 v{vT+k}, v{vT+k}, v{vK1}, v{vK0}") for k in range(4)]
                L+=[I(f"v_mul_f32 v{vT+k}, v{vT+k}, v{G+r[k]}") for k in range(4)]
                L+=[I(f"v_exp_f32 v{vT+k}, v{vT+k}") for k in range(4)]
                L+=[I(f"v_mul_f32 v{G+r[k]}, v{G+r[k]}, v{U+r[k]}") for k in range(4)]
                L+=[I(f"v_fma_f32 v{vT+k}, v{vT+k}, v{vV}, v{vV}") for k in range(4)]
                L+=[I(f"v_rcp_f32 v{vT+k}, v{vT+k}") for k in range(4)]
                L+=[I(f"v_mul_f32 v{G+r[k]}, v{G+r[k]}, v{vT+k}") for k in range(4)]
                L+=[I(f"v_cvt_pk_bf16_f32 v{P+2*h+k}, v{G+r[2*k]}, v{G+r[2*k+1]}") for k in range(2)]
            i=i0+f
            st=I(f"buffer_store_dwordx4 {v(P,4)}, v{vL16}, {srd(SWS)}, s{sH+i//4} offen offset:{(i%4)*1024} sc1")
            s.tok_h[i]=st; L.append(st)
        return L
    def kv_epi(s):
        K=ACC; V=ACC+16; S=192; PK=208; PV=216; L=[]
        rd=[I(f"ds_read_b128 {v(S+4*i,4)}, v{vSTR} offset:{32*i}") for i in range(4)]
        L+=rd+[W(lg=rd[-1])]
        for h in range(4):
            r=[4*h+k for k in range(4)]
            L+=[I(f"v_mul_f32 v{K+x}, v{K+x}, v{S+x}") for x in r]
            L+=[I(f"v_min_f32 v{vT+k}, 0, v{K+r[k]}") for k in range(4)]
            L+=[I(f"v_mul_f32 v{vT+k}, {fb(LOG2E)}, v{vT+k}") for k in range(4)]
            L+=[I(f"v_exp_f32 v{vT+k}, v{vT+k}") for k in range(4)]
            L+=[I(f"v_max_f32 v{K+x}, 0, v{K+x}") for x in r]
            L+=[I(f"v_add_f32 v{K+r[k]}, v{K+r[k]}, v{vT+k}") for k in range(4)]
            L+=[I(f"v_add_f32 v{K+x}, {fb(1e-6)}, v{K+x}") for x in r]
            L+=[I(f"v_mul_f32 v{V+x}, v{V+x}, v{S+x}") for x in r]
            L+=[I(f"v_cvt_pk_bf16_f32 v{PK+2*h+k}, v{K+r[2*k]}, v{K+r[2*k+1]}") for k in range(2)]
            L+=[I(f"v_cvt_pk_bf16_f32 v{PV+2*h+k}, v{V+r[2*k]}, v{V+r[2*k+1]}") for k in range(2)]
        L+=[I(f"v_mov_b32 v{vT}, s{sONES}")]
        L+=[I(f"v_cndmask_b32 v{PV+k}, v{PV+k}, v{vT}, s[{MONE}:{MONE+1}]") for k in range(8)]
        M=[I(f"v_mfma_f32_32x32x16_bf16 {v(K,16)}, {v(PK,4)}, {v(PV,4)}, 0"),
           I(f"v_mfma_f32_32x32x16_bf16 {v(K,16)}, {v(PK+4,4)}, {v(PV+4,4)}, {v(K,16)}")]
        Wr=[I(f"ds_write_b128 v{vKXW}, {v(K+4*q,4)} offset:{q*1024}") for q in range(4)]
        rd2=[I(f"ds_read_b128 {v(S+4*q,4)}, v{vKXR} offset:{q*4096}") for q in range(4)]
        R=rd2+[W(lg=rd2[-1])]
        R+=[I(f"v_add_f32 v{S+k}, v{S+k}, v{S+4+k}") for k in range(4)]
        R+=[I(f"v_add_f32 v{S+8+k}, v{S+8+k}, v{S+12+k}") for k in range(4)]
        R+=[I(f"v_add_f32 v{S+k}, v{S+k}, v{S+8+k}") for k in range(4)]
        st=I(f"buffer_store_dwordx4 {v(S,4)}, v{vL16}, {srd(SWS)}, s{sKVst} offen sc1"); R.append(st); s.tok_kvst=st
        return L,M,Wr,R
    def kv_loads(s):
        L=[]
        for m in range(16):
            dst=v(192+4*m,4) if m<8 else a(32+4*(m-8),4)
            L.append(I(f"buffer_load_dwordx4 {dst}, v{vL16}, {srd(SWS)}, s{sKVld+m//4} offen offset:{(m%4)*1024} sc1"))
        return L
    def kv_reduce(s, lds):
        L=[W(vm=lds[7])]
        for st in (16,8,4):
            for b in range(0,st,4):
                L+=[I(f"v_add_f32 v{192+b+k}, v{192+b+k}, v{192+b+st+k}") for k in range(4)]
        L+=[W(vm=lds[15])]
        for m in range(8):
            t=232+4*(m&1)
            L+=[I(f"v_accvgpr_read_b32 v{t+k}, a{32+4*m+k}") for k in range(4)]
            L+=[I(f"v_add_f32 v{192+4*(m&1)+k}, v{192+4*(m&1)+k}, v{t+k}") if m!=1 else I(f"v_mov_b32 v{196+k}, v{t+k}") for k in range(4)]
        L+=[I(f"v_add_f32 v{192+k}, v{192+k}, v{196+k}") for k in range(4)]
        L+=[I(f"v_cvt_pk_bf16_f32 v196, v192, v193"), I(f"v_cvt_pk_bf16_f32 v197, v194, v195")]
        L+=[I(f"ds_write_b64 v{vKFW}, v[196:197]")]
        return L
    def trd(s, g):
        P=g>>1; u=g&1; ps=P//28; pos=P%28; sg=P//14; pl=P%14; slot=sg%5
        dst=(P%4)*8+u*4; L=[]
        for t in range(2):
            if ps==4 and u==0:
                L.append(I(f"ds_read_b64_tr_b16 {a(dst+2*t,2)}, v{vMX+t} offset:{(slot-3)*SLOT+(pl>>1)*1024+(pl&1)*512}"))
            else:
                wv=(u+2*(pl&1)) if ps<4 else 2+(pl&1)
                off=(slot&1)*SLOT+wv*7168+(pl>>1)*1024+t*256
                L.append(I(f"ds_read_b64_tr_b16 {a(dst+2*t,2)}, v{vTR+slot//2} offset:{off}"))
        return L
    def phase1(s):
        p=s.p; s.tok_h={}
        segs=[]
        def seg(g0,g1,L): segs.append([g0,g1,list(L),0])
        B=lambda k: 28*k-4
        for k in range(1,6): seg(B(k)+1,B(k)+24,s.wdma(k+4))
        gold,gochk=s.spin(f"buffer_load_dword v{vPOLL+1}, off, {srd(SD)}, 0 sc1", f"v{vPOLL+1}", 1)
        e1,eM,eW,eR=s.kv_epi()
        seg(58,96,e1); seg(97,99,eM[:1]); seg(99,100,eM[1:]); seg(104,107,eW); seg(B(4)+1,B(4)+8,eR)
        seg(116,166,s.gelu(ACC+32,ACC+48,16,0))
        seg(172,222,s.gelu(ACC,ACC+16,16,2))
        seg(228,272,s.gelu(ACC+32,ACC+48,16,4))
        s.goL=(gold,gochk)
        seg(60,61,[gold])
        seg(160,161,gochk+[W(vm=s.tok_kvst), I(f"buffer_store_dword v{vONE}, v{vZ}, {srd(SWS)}, s{sFKst} offen sc1")])
        kld,kchk=s.spin(f"buffer_load_dword v{vPOLL}, v{vPA15}, {srd(SWS)}, s{sFKld} offen sc1", f"v{vPOLL}", 1)
        kl=s.kv_loads()
        seg(196,197,[kld]); seg(222,223,kchk); seg(223,231,kl); seg(258,274,s.kv_reduce(kl))
        seg(B(6)-3,B(6),lines(f"""
        s_mov_b32 s{SWD}, s16
        s_and_b32 s{SWD+1}, s17, 0xffff
        s_mul_i32 s{SWD+2}, s{sV2}, {1792*896}
        s_mov_b32 s{SWO}, s8
        s_and_b32 s{SWO+1}, s9, 0xffff
        s_mul_i32 s{SWO+2}, s{sV2}, {448*896}
        s_mov_b32 s{SOUT}, s18
        s_and_b32 s{SOUT+1}, s19, 0xffff
        s_mov_b32 s{SOUT+2}, {2048*896}
        s_lshl_b32 s{sWB7}, s{sW}, 11
        v_lshrrev_b32 v232, 7, v{vL16}
        v_bfe_u32 v233, v{vL16}, 8, 1
        v_lshlrev_b32 v233, 6, v233
        v_and_b32 v234, 0x70, v{vL16}
        v_xor_b32 v233, v233, v234
        s_lshl_b32 s{sT}, s{sNB}, 7
        v_mul_u32_u24 v232, 896, v232
        v_add3_u32 v{vB}, v232, v233, s{sT}
        v_add_u32 v{vB2}, 6144, v{vB}
        """))
        for k,(n0,n1) in {6:(0,3),7:(3,7),8:(7,10),9:(10,14)}.items():
            L=[]
            for n in range(n0,n1): L+=s.bdma(n)
            seg(B(k)+1,B(k)+24,L)
        p(W(vm=s.tok_w[0])); p("s_barrier")
        rd={}
        for g in range(4):
            rd[g]=s.trd(g); p(rd[g])
        for g in range(280):
            P=g>>1; u=g&1; ps=P//28; pos=P%28
            if u==0: p(W(lg=rd[g+1][-1]))
            D=ACC+32*(ps&1)+16*u; fr=a((P%4)*8+u*4,4); xr=v(X+4*pos,4); C=v(D,16) if pos else "0"
            if ps==0: p(f"v_mfma_f32_32x32x16_bf16 {v(D,16)}, {xr}, {fr}, {C}")
            else: p(f"v_mfma_f32_32x32x16_bf16 {v(D,16)}, {fr}, {xr}, {C}")
            if (g+4)%28==0:
                k=(g+4)//28
                p(W(vm=s.tok_w[k], lg=0) if k<10 else W(lg=0)); p("s_barrier")
                if k%2==0: p(s.stamp(f"B{k}"))
            if g+4<280:
                rd[g+4]=s.trd(g+4); p(rd[g+4])
            for sgm in segs:
                g0,g1,L,done=sgm
                if g<g0 or done>=len(L): continue
                tot=sum(x.cost for x in L); tgt=tot*(g-g0+1)/(g1-g0) if g<g1-1 else tot+1
                acc=sum(x.cost for x in L[:done])
                while done<len(L) and (acc<tgt or L[done].kind=="label"):
                    p(L[done]); acc+=L[done].cost; done+=1
                sgm[3]=done
        assert all(x[3]==len(x[2]) for x in segs)
        p(s.stamp("p1_mfma_done"))
        Q=ACC+16; PQ=208; N=ACC+32; PO=216
        p(f"v_lshlrev_b32 v232, 1, v{vL16}"); p(f"v_add_u32 v232, {KVF}, v232")
        r0=p(f"ds_read_b128 a[64:67], v232"); r1=p(f"ds_read_b128 a[68:71], v232 offset:16")
        L=[]
        for n in range(14,17): L+=s.bdma(n)
        p(L)
        for h in range(4):
            r=[4*h+k for k in range(4)]
            p([I(f"v_mul_f32 v{vT+k}, v{Q+r[k]}, v{vC2}") for k in range(4)])
            p([I(f"v_min_f32 v{vT+k}, 0, v{vT+k}") for k in range(4)])
            p([I(f"v_exp_f32 v{vT+k}, v{vT+k}") for k in range(4)])
            p([I(f"v_max_f32 v{Q+x}, 0, v{Q+x}") for x in r])
            p([I(f"v_fma_f32 v{Q+r[k]}, v{Q+r[k]}, v{vS}, v{vT+k}") for k in range(4)])
            p([I(f"v_add_f32 v{Q+x}, {fb(1e-6)}, v{Q+x}") for x in r])
            p([I(f"v_cvt_pk_bf16_f32 v{PQ+2*h+k}, v{Q+r[2*k]}, v{Q+r[2*k+1]}") for k in range(2)])
        p([I(f"v_cndmask_b32 v{PQ+6+k}, v{PQ+6+k}, 0, s[{MHI}:{MHI+1}]") for k in range(2)])
        p(W(lg=r1))
        p(f"v_mfma_f32_32x32x16_bf16 {v(N,16)}, a[64:67], {v(PQ,4)}, 0")
        p(f"v_mfma_f32_32x32x16_bf16 {v(N,16)}, a[68:71], {v(PQ+4,4)}, {v(N,16)}")
        p(s.gelu(ACC,ACC+8,8,6))
        p(f"""
        v_mov_b32 v232, v{N+12}
        v_mov_b32 v233, v{N+12}
        v_permlane32_swap_b32 v232, v233
        v_add_f32 v233, {fb(1e-6)}, v233
        v_rcp_f32 v233, v233
        """)
        p([I(f"v_mul_f32 v{N+k}, v{N+k}, v233") for k in range(16)])
        p([I(f"v_cvt_pk_bf16_f32 v{PO+k}, v{N+2*k}, v{N+2*k+1}") for k in range(8)])
        p([I(f"v_cndmask_b32 v{PO+6+k}, v{PO+6+k}, 0, s[{MHI}:{MHI+1}]") for k in range(2)])
        p(f"buffer_store_dwordx4 {v(PO,4)}, v{vL16}, {srd(SWS)}, s{sH+1} offen offset:3072 sc1")
        last=p(f"buffer_store_dwordx4 {v(PO+4,4)}, v{vL16}, {srd(SWS)}, s{sH+2} offen sc1")
        p(s.stamp("tail_done"))
        p(W(vm=last))
        p(f"buffer_store_dword v{vONE}, v{vZ}, {srd(SWS)}, s{sFHst} offen sc1")
        p(s.stamp("published"))
        p(f"s_cmp_eq_u32 s{sV2}, 0"); p("s_cbranch_scc1 L_fin")
    def phase2(s):
        p=s.p
        vBT=192; vA=198; vXR=204; NA=14
        p(f"""
        v_lshrrev_b32 v232, 9, v{vL16}
        v_bfe_u32 v233, v{vL16}, 6, 2
        v_lshl_add_u32 v232, v232, 2, v233
        v_lshlrev_b32 v232, 7, v232
        v_bfe_u32 v233, v{vL16}, 7, 1
        v_lshl_add_u32 v232, v233, 6, v232
        v_bfe_u32 v233, v{vL16}, 8, 1
        v_lshl_add_u32 v232, v233, 5, v232
        v_bfe_u32 v233, v{vL16}, 4, 2
        v_lshl_add_u32 v232, v233, 3, v232
        v_add_u32 v{vBT}, s{sWB7}, v232
        v_xor_b32 v{vBT+1}, 64, v{vBT}
        v_add_u32 v{vBT+2}, 0x10000, v{vBT}
        v_add_u32 v{vBT+3}, 0x10000, v{vBT+1}
        v_add_u32 v{vBT+4}, 0x20000, v{vBT}
        v_add_u32 v{vBT+5}, 0x20000, v{vBT+1}
        v_mov_b32 v{vA}, v{vL16}
        v_add_u32 v{vA+1}, 4096, v{vL16}
        v_add_u32 v{vA+2}, 8192, v{vL16}
        v_add_u32 v{vA+3}, {16*9216}, v{vL16}
        v_add_u32 v{vA+4}, {16*9216+4096}, v{vL16}
        v_add_u32 v{vA+5}, {16*9216+8192}, v{vL16}
        v_lshrrev_b32 v232, 6, v{vL16}
        s_lshl_b32 s{sT}, s{sW}, 4
        v_add_u32 v232, s{sT}, v232
        v_bfe_u32 v233, v{vL16}, 4, 2
        v_mul_u32_u24 v234, 272, v232
        v_lshl_add_u32 v214, v233, 6, v234
        v_mul_u32_u24 v232, 896, v232
        v_lshl_add_u32 v212, v233, 5, v232
        s_mul_i32 s{sT2}, s{sMB}, {64*896}
        s_lshl_b32 s{sT}, s{sNB}, 7
        s_add_u32 s{sT2}, s{sT2}, s{sT}
        """)
        xr0=p(f"buffer_load_dwordx4 {v(vXR,4)}, v212, {srd(SX)}, s{sT2} offen")
        xr1=p(f"buffer_load_dwordx4 {v(vXR+4,4)}, v212, {srd(SX)}, s{sT2} offen offset:16")
        ld,chk=s.spin(f"buffer_load_dword v{vPOLL}, v{vPA31}, {srd(SWS)}, s{sFHld} offen sc1", f"v{vPOLL}", 1)
        p(ld); p(chk)
        p(s.stamp("flags_seen"))
        ta={}
        def aload(n):
            jj,i=kmap(n); L=[]
            for mb in range(2):
                L.append(I(f"buffer_load_dwordx4 {v(X+(n%NA)*8+4*mb,4)}, v{vA+3*mb+i//4}, {srd(SWS)}, s{sA+jj} offen offset:{(i%4)*1024} sc1"))
            ta[n]=L[-1]; return L
        def btr(n,q):
            nbk,t=q>>1,q&1; e=n%NB
            return I(f"ds_read_b64_tr_b16 {a((n%4)*8+nbk*4+2*t,2)}, v{vBT+2*(e//8)+nbk} offset:{(e%8)*8192+t*1024}")
        for n in range(NA): p(aload(n))
        rb={}
        p(W(vm=s.tok_b[0]))
        for q in range(4): rb[0]=p(btr(0,q))
        for n in range(36):
            p(W(vm=ta[n], lg=rb[n]))
            for q in range(4):
                nbk,mb=q>>1,q&1; D=ACC+16*q
                p(f"v_mfma_f32_32x32x16_bf16 {v(D,16)}, {a((n%4)*8+nbk*4,4)}, {v(X+(n%NA)*8+4*mb,4)}, {v(D,16) if n else 0}")
                if n+1<36:
                    if q==0:
                        p(W(vm=s.tok_b[n+1])); p(btr(n+1,0)); p(btr(n+1,1))
                    if q==1:
                        p(btr(n+1,2)); rb[n+1]=p(btr(n+1,3))
                if q==2 and n+NB<36: p(s.bdma(n+NB))
                if q==3 and n+NA<36: p(aload(n+NA))
        p(s.stamp("p2_mfma_done"))
        p("s_barrier")
        p(f"""
        v_bfe_u32 v232, v{vL16}, 4, 5
        v_mul_u32_u24 v232, 272, v232
        v_lshrrev_b32 v233, 9, v{vL16}
        v_lshl_add_u32 v232, v233, 4, v232
        s_mul_i32 s{sT}, s{sW}, 17408
        v_add_u32 v232, s{sT}, v232
        """)
        for q in range(4):
            nbk,mb=q>>1,q&1
            for i in range(4):
                p(f"ds_write_b128 v232, {v(ACC+16*q+4*i,4)} offset:{mb*32*272+nbk*128+i*32}")
        p(W(lg=0)); p("s_barrier")
        rr=[]
        for w in range(4):
            for c in range(4): rr.append(p(f"ds_read_b128 {v(16+16*w+4*c,4)}, v214 offset:{w*17408+c*16}"))
        p(W(vm=xr1))
        for k in range(8):
            p(f"v_lshlrev_b32 v{80+2*k}, 16, v{vXR+k}"); p(f"v_and_b32 v{81+2*k}, 0xffff0000, v{vXR+k}")
        p(W(lg=rr[7]))
        for k in range(8): p(f"v_pk_add_f32 {v(16+2*k,2)}, {v(16+2*k,2)}, {v(32+2*k,2)}")
        p(W(lg=rr[15]))
        for k in range(8): p(f"v_pk_add_f32 {v(48+2*k,2)}, {v(48+2*k,2)}, {v(64+2*k,2)}")
        for k in range(8): p(f"v_pk_add_f32 {v(16+2*k,2)}, {v(16+2*k,2)}, {v(80+2*k,2)}")
        for k in range(8): p(f"v_pk_add_f32 {v(16+2*k,2)}, {v(16+2*k,2)}, {v(48+2*k,2)}")
        for k in range(8): p(f"v_cvt_pk_bf16_f32 v{96+k}, v{16+2*k}, v{17+2*k}")
        p(f"buffer_store_dwordx4 v[96:99], v212, {srd(SOUT)}, s{sT2} offen")
        p(f"buffer_store_dwordx4 v[100:103], v212, {srd(SOUT)}, s{sT2} offen offset:16")
        p("L_fin:")
        if s.stamps:
            p(W(vm=0)); p(s.stamp("end"))
            p(f"s_lshl_b32 s{sT}, s{sMI}, 4\ns_add_u32 s{sT}, s{sT}, s{sJ}\ns_lshl_b32 s{sT}, s{sT}, 2\ns_add_u32 s{sT}, s{sT}, s{sW}\ns_lshl_b32 s{sT}, s{sT}, 8\ns_add_u32 s{sT}, s{sT}, {WS_ST}")
            p(f"v_lshrrev_b32 v232, 2, v{vL16}")
            p(f"buffer_store_dword v0, v232, {srd(SWS)}, s{sT} offen")
        if s.opt.get("fixspan"):
            p(W(vm=0)); p(f"v_readfirstlane_b32 s{sT}, v0\nL_fix:\ns_memrealtime s[{sSTMP}:{sSTMP+1}]\ns_waitcnt lgkmcnt(0)\ns_sub_u32 s{sSTMP}, s{sSTMP}, s{sT}\ns_cmp_lt_u32 s{sSTMP}, {s.opt['fixspan']}\ns_cbranch_scc1 L_fix")
        if s.opt.get("dbgspan"):
            p(W(vm=0)); p(f"s_memrealtime s[{sSTMP}:{sSTMP+1}]\ns_waitcnt lgkmcnt(0)\nv_mov_b32 v232, s{sSTMP}")
            p("s_mov_b64 exec, 1"); p(f"buffer_atomic_umax v0, off, {srd(SD)}, 0 offset:16"); p(f"buffer_atomic_umax v232, off, {srd(SD)}, 0 offset:20")
        p("L_end:"); p("s_endpgm")
    def build(s):
        s.prologue(); s.phase1(); s.phase2()
        s.p.add(s.ool); s.p("L_codeend:")
        s.p.resolve()
        s.p.check(fix=True)
        errs=s.p.check()
        hdr=f"""; Fused LayerNorm + linear attention + GEGLU FFN + residual, one persistent launch (generated by dev/gen.py)
; @launch grid=(256,1,1) block=(256,1,1) lds={LDS}
.amdgcn_target "amdgcn-amd-amdhsa--gfx950"
.text
.globl {KN}
.p2align 8
.type {KN},@function
{KN}:
"""
        body=s.p.text().replace("CODEBYTES", str(s.opt.get("codebytes",32768)))
        ftr=f""".section .rodata,"a"
.p2align 6
.amdhsa_kernel {KN}
  .amdhsa_next_free_vgpr 512
  .amdhsa_next_free_sgpr 102
  .amdhsa_accum_offset 256
  .amdhsa_group_segment_fixed_size 0
  .amdhsa_kernarg_size 80
  .amdhsa_user_sgpr_count 2
  .amdhsa_user_sgpr_kernarg_segment_ptr 1
  .amdhsa_system_sgpr_workgroup_id_x 1
.end_amdhsa_kernel
"""
        return hdr+body+ftr, errs
if __name__=="__main__":
    import argparse
    ap=argparse.ArgumentParser(); ap.add_argument("-o",default="k.s"); ap.add_argument("--stamps",action="store_true"); ap.add_argument("-v",action="store_true"); ap.add_argument("--opt",default="{}")
    ar=ap.parse_args()
    g=Gen(stamps=ar.stamps, **eval(ar.opt)); txt,errs=g.build()
    for e in errs: print("ERR",e)
    open(ar.o,"w").write(txt)
    print("instrs",len(g.p.L),"errors",len(errs))
    from build import build
    build(ar.o)
```

```python
import sys, struct
from emit import Prog, I, W, Ins
KN = "parallel_sum__linear_attn_block__geglu_ffn__prompt_kernel"
def fb(x): return "0x%08x" % struct.unpack("<I", struct.pack("<f", x))[0]
SLOT=28672; KVX=143360; STAT=159744; KVF=160256; LDS=163840
WS_KVP=0x900000; WS_FL=0xA00000; WS_ST=0xB00000; WS_SZ=0xC00000
LOG2E=1.4426950408889634
K0C=-2*0.7978845608028654*LOG2E; K1C=K0C*0.044715
sA=4; sBd=12; sBo=20
sW,sT=10,11
SX,SW0,SW1,SW4,SWS,SD=24,28,32,36,40,44
SWD,SWO,SOUT=SW0,SW1,SW4
TA,TB=48,62
sMI,sJ,sR,sWB7=76,77,78,79
sH=80; sKVst=83; sKVld=84; sMB,sNB,sV2=88,89,90
sT2=91; MONE=92; MHI=94; sSTMP=96; sOLO,sOHI,sONES,sSPIN=98,99,100,101
sFKst,sFKld,sFHst,sFHld=0,1,2,3
def srd(n): return f"s[{n}:{n+3}]"
vL16,vW0,vW1,vW4=1,2,3,4
vTR=5; vMX=8; vK0,vK1,vV,vS,vC2=10,11,12,13,14; vB2=15; vB=2
X=16; ACC=128
vZ,vONE,vPOLL,vPA15,vPA31=224,225,226,228,229
vSTR,vKXW,vKXR,vKFW=240,241,242,243
vT=244; vP=248
NB=17
def v(a,n=1): return f"v{a}" if n==1 else f"v[{a}:{a+n-1}]"
def a(x,n=1): return f"a{x}" if n==1 else f"a[{x}:{x+n-1}]"
def lines(t): return [I(l.strip()) for l in t.strip().split("\n") if l.strip()]
def kmap(n):
    if n<24: return (n%8)//2, 2*(n//8)+n%2
    return (n-24)//3, 6+(n-24)%3

class Gen:
    def __init__(s, stamps=False, **opt):
        s.p=Prog(); s.ool=[]; s.stamps=stamps; s.stnames=[]; s.opt=opt; s.lbl=0
    def stamp(s, name=""):
        if not s.stamps: return []
        k=len(s.stnames); s.stnames.append(name)
        return [I(f"s_memtime s[{sSTMP}:{sSTMP+1}]"), I("s_waitcnt lgkmcnt(0)"), I(f"v_writelane_b32 v0, s{sSTMP}, {k}")]
    def spin(s, load_text, reg, val):
        n=s.lbl; s.lbl+=1
        ld=I(load_text)
        chk=[W(vm=ld), I(f"v_cmp_ne_u32 vcc, {val}, {reg}"), I(f"s_cbranch_vccnz L_spin{n}"), I(f"L_ok{n}:")]
        s.ool += [I(f"L_spin{n}:"), I(f"s_mov_b32 s{sSPIN}, 0x40000"), I(f"L_spinl{n}:"), I("s_sleep 1"),
                  I(load_text,count=False), I("s_waitcnt vmcnt(0)"), I(f"v_cmp_ne_u32 vcc, {val}, {reg}"),
                  I(f"s_cbranch_vccz L_ok{n}"), I(f"s_sub_u32 s{sSPIN}, s{sSPIN}, 1"), I(f"s_cmp_lg_u32 s{sSPIN}, 0"),
                  I(f"s_cbranch_scc1 L_spinl{n}"), I(f"s_branch L_ok{n}")]
        return ld, chk
    def wdma(s, sg):
        ps=sg>>1; hf=sg&1; L=[]
        sr={0:SW0,4:SW4}.get(ps,SW1); vo={0:vW0,4:vW4}.get(ps,vW1); tb=TB if ps in(1,2,3) else TA
        if ps in (2,3) and hf==0: L.append(I(f"v_add_u32 v{vW1}, 64, v{vW1}"))
        for i in range(7):
            if i in (0,4): L.append(I(f"s_add_u32 m0, s{sWB7}, {(sg%5)*SLOT+(4096 if i==4 else 0)}"))
            L.append(I(f"buffer_load_dwordx4 v{vo}, {srd(sr)}, s{tb+7*hf+i} offen offset:{(i%4)*1024} lds"))
        s.tok_w[sg]=L[-1]
        return L
    def bdma(s, n):
        jj,i=kmap(n)
        base,sr,k=(sBd+jj,SWD,i) if i<7 else (sBo+jj,SWO,i-7)
        L=[I(f"s_add_u32 m0, s{sWB7}, {(n%NB)*8192}"), I(f"s_add_u32 s{sT}, s{base}, {k*14336}"),
           I(f"buffer_load_dwordx4 v{vB}, {srd(sr)}, s{sT} offen lds"),
           I(f"buffer_load_dwordx4 v{vB2}, {srd(sr)}, s{sT} offen offset:1024 lds")]
        s.tok_b[n]=L[-1]
        return L
    def prologue(s):
        p=s.p; s.tok_w={}; s.tok_b={}
        if s.opt.get("fix0"): p(f"s_memrealtime s[{sSTMP}:{sSTMP+1}]")
        p(f"""
        s_cmp_ge_u32 s2, 256
        s_cbranch_scc1 L_end
        s_load_dwordx4 s[4:7], s[0:1], 0
        s_load_dwordx4 s[20:23], s[0:1], 64
        s_load_dwordx2 s[8:9], s[0:1], 16
        s_load_dwordx4 s[12:15], s[0:1], 32
        s_load_dwordx4 s[16:19], s[0:1], 48
        s_getpc_b64 s[{SD}:{SD+1}]
        L_pc:
        v_lshrrev_b32 v192, 6, v0
        v_and_b32 v193, 63, v0
        v_readfirstlane_b32 s{sW}, v192
        s_and_b32 s{SD+1}, s{SD+1}, 0xffff
        s_mov_b32 s{SD+2}, L_codeend-L_pc
        s_mov_b32 s{SD+3}, 0x20000
        v_lshlrev_b32 v194, 7, v0
        v_lshlrev_b32 v{vL16}, 4, v193
        buffer_load_dword v255, v194, {srd(SD)}, 0 offen
        s_and_b32 s{sT}, s2, 7
        s_lshr_b32 s{sT2}, s2, 3
        s_and_b32 s{sMI}, s{sT}, 1
        s_lshl_b32 s{sMI}, s{sMI}, 3
        s_and_b32 s{sR}, s{sT2}, 7
        s_add_u32 s{sMI}, s{sMI}, s{sR}
        s_lshr_b32 s{sJ}, s{sT}, 1
        s_lshl_b32 s{sJ}, s{sJ}, 2
        s_lshr_b32 s3, s{sT2}, 3
        s_add_u32 s{sJ}, s{sJ}, s3
        s_lshl_b32 s3, s3, 1
        s_add_u32 s{sR}, s{sR}, s3
        s_cmp_ge_u32 s{sR}, 7
        s_cselect_b32 s3, 7, 0
        s_sub_u32 s{sR}, s{sR}, s3
        s_mul_i32 s{sMB}, s{sT2}, 37
        s_lshr_b32 s{sMB}, s{sMB}, 8
        s_mul_i32 s3, s{sMB}, 7
        s_sub_u32 s{sNB}, s{sT2}, s3
        s_cmp_lt_u32 s{sT2}, 28
        s_cselect_b32 s{sV2}, 1, 0
        s_lshl_b32 s{sT}, s{sT}, 2
        s_add_u32 s{sMB}, s{sMB}, s{sT}
        s_mul_i32 s{sWB7}, s{sW}, 7168
        v_lshrrev_b32 v195, 3, v193
        v_mul_u32_u24 v195, 896, v195
        v_lshrrev_b32 v196, 4, v193
        v_and_b32 v197, 7, v193
        v_xor_b32 v196, v196, v197
        v_lshl_add_u32 v195, v196, 4, v195
        v_xor_b32 v196, 64, v195
        s_lshl_b32 s{sT}, s{sMI}, 2
        s_add_u32 s{sT}, s{sT}, s{sW}
        s_mul_i32 s{sT2}, s{sT}, {32*896}
        s_mul_i32 s{sH}, s{sT}, {16*9216}
        s_add_u32 s3, s{sW}, 1
        s_mul_i32 s3, s3, {SLOT}
        s_waitcnt lgkmcnt(0)
        s_mov_b32 s{SX}, s4
        s_and_b32 s{SX+1}, s5, 0xffff
        s_mov_b32 s{SX+2}, {2048*896}
        s_mov_b32 s{SX+3}, 0x20000
        s_mov_b32 s4, s{sR}
        """)
        if s.stamps: p("v_mov_b32 v0, 0"); p(s.stamp("start"))
        if s.opt.get("fixspan"):
            if not s.opt.get("fix0"): p(f"s_memrealtime s[{sSTMP}:{sSTMP+1}]\ns_waitcnt lgkmcnt(0)")
            p(f"v_mov_b32 v0, s{sSTMP}")
        if s.opt.get("dbgspan"): p(f"s_memrealtime s[{sSTMP}:{sSTMP+1}]\ns_waitcnt lgkmcnt(0)\ns_not_b32 s{sSTMP}, s{sSTMP}\nv_mov_b32 v0, s{sSTMP}")
        nfl=s.opt.get("nstage",1)+1
        p("s_cmp_lg_u32 s2, 0"); p("s_cbranch_scc1 L_noclr")
        p(f"s_mov_b32 s{SWS}, s22\ns_and_b32 s{SWS+1}, s23, 0xffff\ns_mov_b32 s{SWS+2}, {WS_SZ}\ns_mov_b32 s{SWS+3}, 0x20000")
        p(f"v_mov_b32 v200, 0\nv_mov_b32 v201, 0\nv_mov_b32 v202, 0\nv_mov_b32 v203, 0")
        p(f"s_lshl_b32 s5, s{sW}, 10"); p(f"s_add_u32 s5, s5, {WS_FL}")
        for k in range(nfl):
            p(I(f"buffer_store_dwordx4 v[200:203], v{vL16}, {srd(SWS)}, s5 offen sc1", count=False))
            p("s_add_u32 s5, s5, 4096")
        p("L_noclr:")
        tok_x=[]
        for P in range(7):
            p(f"s_add_u32 m0, s3, {P*4096}")
            p(f"s_lshl_b32 s5, s4, 7"); p(f"s_add_u32 s5, s5, s{sT2}")
            for t in range(4):
                tk=p(f"buffer_load_dwordx4 v{195+(t&1)}, {srd(SX)}, s5 offen offset:{t*1024} lds")
                if t<3: p(f"s_add_u32 s5, s5, 6144")
            tok_x.append(tk)
            if P<6:
                p(f"s_add_u32 s4, s4, 1"); p("s_cmp_eq_u32 s4, 7"); p("s_cselect_b32 s4, 0, s4")
        p(f"""
        s_lshl_b32 s{sR}, s{sR}, 2
        s_sub_u32 s{SW0}, s6, 3072
        s_subb_u32 s{SW0+1}, s7, 0
        s_and_b32 s{SW0+1}, s{SW0+1}, 0xffff
        s_mov_b32 s{SW0+2}, {448*2688+3072}
        s_mov_b32 s{SW0+3}, 0x20000
        s_mov_b32 s4, s{sR}
        """)
        for i in range(14):
            bias=3072-1024*((i%7)%4)
            p(f"s_mul_i32 s{TA+i}, s4, {16*2688}"); p(f"s_mul_i32 s{TB+i}, s4, {16*3584}")
            if bias:
                p(f"s_add_u32 s{TA+i}, s{TA+i}, {bias}"); p(f"s_add_u32 s{TB+i}, s{TB+i}, {bias}")
            if i<13:
                p("s_add_u32 s4, s4, 2"); p("s_cmp_eq_u32 s4, 28"); p("s_cselect_b32 s4, 0, s4")
        p(f"""
        s_lshr_b32 s4, s{sW}, 1
        s_lshl_b32 s4, s4, 4
        s_and_b32 s5, s{sW}, 1
        v_lshrrev_b32 v197, 2, v193
        v_and_b32 v198, 3, v193
        v_lshlrev_b32 v198, 4, v198
        v_add_u32 v199, s4, v197
        s_mul_i32 s3, s5, 896
        s_mul_i32 s4, s{sJ}, 56
        s_add_u32 s3, s3, s4
        s_add_u32 s3, s3, 896
        v_mul_u32_u24 v{vW0}, 2688, v199
        v_add3_u32 v{vW0}, v{vW0}, v198, s3
        """)
        p(s.wdma(0))
        p(f"""
        s_mul_i32 s3, s{sJ}, 224
        v_mul_u32_u24 v{vW1}, 3584, v199
        v_add3_u32 v{vW1}, v{vW1}, v198, s3
        s_cmp_eq_u32 s5, 0
        s_cselect_b32 s{SW1}, s12, s14
        s_cselect_b32 s{SW1+1}, s13, s15
        s_sub_u32 s{SW1}, s{SW1}, 3072
        s_subb_u32 s{SW1+1}, s{SW1+1}, 0
        s_and_b32 s{SW1+1}, s{SW1+1}, 0xffff
        s_mov_b32 s{SW1+2}, {448*3584+3072}
        s_mov_b32 s{SW1+3}, 0x20000
        s_lshl_b32 s6, s5, 4
        v_add_u32 v199, s6, v197
        v_mul_u32_u24 v199, 2688, v199
        v_add3_u32 v199, v199, v198, s4
        s_lshl_b32 s6, s5, 2
        v_lshrrev_b32 v197, 1, v193
        v_xor_b32 v197, s6, v197
        v_mul_u32_u24 v197, 3584, v197
        v_and_b32 v198, 1, v193
        v_lshlrev_b32 v198, 4, v198
        s_add_u32 s3, s3, 192
        v_add3_u32 v197, v197, v198, s3
        s_cmp_lt_u32 s{sW}, 2
        s_cselect_b32 s{SW4}, s{SW1}, s{SW0}
        s_cselect_b32 s{SW4+1}, s{SW1+1}, s{SW0+1}
        s_cselect_b32 s{SW4+2}, s{SW1+2}, s{SW0+2}
        s_cselect_b64 vcc, -1, 0
        s_mov_b32 s{SW4+3}, 0x20000
        s_mov_b32 s{SWS}, s22
        s_and_b32 s{SWS+1}, s23, 0xffff
        s_mov_b32 s{SWS+2}, {WS_SZ}
        s_mov_b32 s{SWS+3}, 0x20000
        v_cndmask_b32 v{vW4}, v199, v197, vcc
        s_mov_b32 s{SD}, s20
        s_and_b32 s{SD+1}, s21, 0xffff
        s_mov_b32 s{SD+2}, 256
        s_mov_b32 s{SD+3}, 0x20000
        """)
        p(f"""
        s_mul_i32 s3, s{sJ}, 9216
        s_add_u32 s{sH}, s{sH}, s3
        s_add_u32 s{sH+1}, s{sH}, 4096
        s_add_u32 s{sH+2}, s{sH}, 8192
        s_lshl_b32 s3, s{sJ}, 2
        s_add_u32 s3, s3, s{sW}
        s_lshl_b32 s{sFKld}, s3, 6
        s_add_u32 s{sFKld}, s{sFKld}, {WS_FL}
        s_lshl_b32 s3, s3, 14
        s_add_u32 s{sKVld}, s3, {WS_KVP}
        s_add_u32 s{sKVld+1}, s{sKVld}, 4096
        s_add_u32 s{sKVld+2}, s{sKVld}, 8192
        s_add_u32 s{sKVld+3}, s{sKVld}, 12288
        s_lshl_b32 s3, s{sMI}, 10
        s_add_u32 s{sKVst}, s{sKVld}, s3
        s_lshl_b32 s3, s{sMI}, 2
        s_add_u32 s{sFKst}, s{sFKld}, s3
        s_mov_b32 s{MONE}, 0x10000000
        s_mov_b32 s{MONE+1}, 0x10000000
        s_mov_b32 s{MHI}, 0
        s_mov_b32 s{MHI+1}, -1
        s_mov_b32 s{sOLO}, 0x3f80
        s_mov_b32 s{sOHI}, 0x3f800000
        s_mov_b32 s{sONES}, 0x3f803f80
        s_add_u32 s{sT}, s{sMB}, s{sNB}
        s_lshl_b32 s{sT2}, s{sW}, 2
        """)
        for jj in range(4):
            p(f"""
            s_add_u32 s3, s{sT}, {jj}
            s_and_b32 s3, s3, 3
            s_add_u32 s3, s3, s{sT2}
            s_mul_i32 s{sBd+jj}, s3, {112*896}
            s_mul_i32 s{sBo+jj}, s3, {28*896}
            s_lshl_b32 s{sA+jj}, s{sMB}, 5
            s_add_u32 s{sA+jj}, s{sA+jj}, s3
            s_mul_i32 s{sA+jj}, s{sA+jj}, 9216
            """)
        p(f"""
        v_lshrrev_b32 v197, 5, v193
        v_bfe_u32 v198, v193, 2, 2
        v_bfe_u32 v199, v193, 4, 1
        v_and_b32 v200, 3, v193
        v_lshlrev_b32 v200, 3, v200
        v_lshl_add_u32 v201, v197, 3, v198
        v_lshl_add_u32 v{vTR}, v201, 6, v200
        v_lshl_add_u32 v{vTR}, v199, 5, v{vTR}
        v_add_u32 v{vTR+1}, {2*SLOT}, v{vTR}
        v_add_u32 v{vTR+2}, {4*SLOT}, v{vTR}
        v_mul_u32_u24 v202, 7296, v199
        v_lshl_add_u32 v{vMX}, v201, 5, v200
        v_add_u32 v{vMX}, {3*SLOT}, v{vMX}
        v_add_u32 v{vMX}, v{vMX}, v202
        v_lshlrev_b32 v202, 8, v199
        v_sub_u32 v{vMX+1}, v{vMX}, v202
        v_add_u32 v{vMX+1}, 128, v{vMX+1}
        v_and_b32 v198, 31, v193
        v_bfe_u32 v199, v193, 1, 3
        v_xor_b32 v199, v199, v197
        v_lshlrev_b32 v199, 4, v199
        v_lshl_add_u32 v199, v198, 7, v199
        s_add_u32 s3, s{sW}, 1
        s_mul_i32 s3, s3, {SLOT}
        v_add_u32 v204, s3, v199
        v_xor_b32 v205, 32, v204
        v_xor_b32 v206, 64, v204
        v_xor_b32 v207, 0x60, v204
        s_lshl_b32 s3, s{sW}, 7
        s_add_u32 s3, s3, {STAT}
        v_lshl_add_u32 v{vSTR}, v197, 4, s3
        v_lshl_add_u32 v220, v198, 2, s3
        s_lshl_b32 s3, s{sW}, 12
        s_add_u32 s3, s3, {KVX}
        v_add_u32 v{vKXW}, s3, v{vL16}
        s_lshl_b32 s3, s{sW}, 10
        s_add_u32 s3, s3, {KVX}
        v_add_u32 v{vKXR}, s3, v{vL16}
        s_lshl_b32 s3, s{sW}, 3
        s_add_u32 s3, s3, {KVF}
        v_lshl_add_u32 v{vKFW}, v193, 5, s3
        v_cmp_eq_u32 vcc, 0, v193
        v_mov_b32 v{vONE}, 1
        v_bfrev_b32 v{vZ}, 2
        v_and_b32 v{vPA15}, 15, v193
        v_cndmask_b32 v{vZ}, v{vZ}, 0, vcc
        v_lshlrev_b32 v{vPA15}, 2, v{vPA15}
        v_lshlrev_b32 v{vPA31}, 2, v198
        v_mov_b32 v208, 0
        v_mov_b32 v209, 0
        v_mov_b32 v210, 0
        v_mov_b32 v211, 0
        s_or_b32 s{sT}, s2, s{sW}
        s_lshl_b32 s{sFHld}, s{sMB}, 7
        s_add_u32 s{sFHld}, s{sFHld}, {WS_FL+4096}
        s_lshl_b32 s{sFHst}, s{sMI}, 2
        s_add_u32 s{sFHst}, s{sFHst}, s{sW}
        s_lshl_b32 s{sFHst}, s{sFHst}, 4
        s_add_u32 s{sFHst}, s{sFHst}, s{sJ}
        s_lshl_b32 s{sFHst}, s{sFHst}, 2
        s_add_u32 s{sFHst}, s{sFHst}, {WS_FL+4096}
        """)
        def stats(P):
            for q in range(4):
                for r in range(4):
                    x=X+(P*4+q)*4+r
                    p(f"v_dot2_f32_bf16 v{208+(r&1)}, v{x}, s{sONES}, v{208+(r&1)}")
                    p(f"v_dot2_f32_bf16 v{210+(r&1)}, v{x}, v{x}, v{210+(r&1)}")
        prev=None
        for P in range(7):
            p(W(vm=tok_x[P]))
            for q in range(4):
                tk=p(f"ds_read_b128 {v(X+(P*4+q)*4,4)}, v{204+q} offset:{P*4096}")
            if prev is not None:
                p(W(lg=prev)); stats(P-1)
            prev=tk
        p(W(lg=0))
        p(s.stamp("x_in_regs"))
        p("s_barrier")
        p(f"s_cmp_lg_u32 s{sT}, 0"); p("s_cbranch_scc1 L_nogo")
        p(I(f"buffer_store_dword v{vONE}, v{vZ}, {srd(SD)}, 0 offen sc1", count=False))
        p("L_nogo:")
        p(s.wdma(1))
        p(f"s_cmp_lt_u32 s{sW}, 2")
        for i in range(7): p(f"s_cselect_b64 s[{TA+2*i}:{TA+2*i+1}], s[{TB+2*i}:{TB+2*i+1}], s[{TA+2*i}:{TA+2*i+1}]")
        stats(6)
        p(f"""
        v_add_f32 v208, v208, v209
        v_add_f32 v210, v210, v211
        v_mov_b32 v209, v208
        v_mov_b32 v211, v210
        v_permlane32_swap_b32 v208, v209
        v_permlane32_swap_b32 v210, v211
        v_add_f32 v208, v208, v209
        v_add_f32 v210, v210, v211
        v_mul_f32 v208, {fb(1/448)}, v208
        v_mul_f32 v210, {fb(1/448)}, v210
        v_fma_f32 v210, -v208, v208, v210
        v_max_f32 v210, 0, v210
        v_add_f32 v{vV}, {fb(1e-5)}, v210
        v_rsq_f32 v{vS}, v{vV}
        v_mul_f32 v{vK0}, {fb(K0C)}, v{vS}
        v_mul_f32 v{vC2}, {fb(LOG2E)}, v{vS}
        v_mul_f32 v209, v{vS}, v{vS}
        v_mul_f32 v209, v209, v{vS}
        v_mul_f32 v{vK1}, {fb(K1C)}, v209
        ds_write_b32 v220, v{vS}
        """)
        dm=s.wdma(2)+s.wdma(3)+s.wdma(4); di=0
        for g in range(57):
            x0=X+g*2; bk=212+4*(g&1); pb=212+4*((g+1)&1)
            if g<56:
                p(f"v_dot2_f32_bf16 v{bk}, v{x0}, s{sOLO}, v208 neg_lo:[0,0,1]")
                p(f"v_dot2_f32_bf16 v{bk+1}, v{x0}, s{sOHI}, v208 neg_lo:[0,0,1]")
                p(f"v_dot2_f32_bf16 v{bk+2}, v{x0+1}, s{sOLO}, v208 neg_lo:[0,0,1]")
                p(f"v_dot2_f32_bf16 v{bk+3}, v{x0+1}, s{sOHI}, v208 neg_lo:[0,0,1]")
            if g>0:
                p(f"v_cvt_pk_bf16_f32 v{x0-2}, v{pb}, v{pb+1}"); p(f"v_cvt_pk_bf16_f32 v{x0-1}, v{pb+2}, v{pb+3}")
            if di<len(dm): p(dm[di]); di+=1
        assert di==len(dm)
        p(s.stamp("centered"))
    def gelu(s, G, U, n, i0):
        L=[]
        for f in range(n//8):
            P=vP+4*(f&1)
            for h in range(2):
                r=[f*8+h*4+k for k in range(4)]
                L+=[I(f"v_mul_f32 v{vT+k}, v{G+r[k]}, v{G+r[k]}") for k in range(4)]
                L+=[I(f"v_fma_f32 v{vT+k}, v{vT+k}, v{vK1}, v{vK0}") for k in range(4)]
                L+=[I(f"v_mul_f32 v{vT+k}, v{vT+k}, v{G+r[k]}") for k in range(4)]
                L+=[I(f"v_exp_f32 v{vT+k}, v{vT+k}") for k in range(4)]
                L+=[I(f"v_mul_f32 v{G+r[k]}, v{G+r[k]}, v{U+r[k]}") for k in range(4)]
                L+=[I(f"v_fma_f32 v{vT+k}, v{vT+k}, v{vV}, v{vV}") for k in range(4)]
                L+=[I(f"v_rcp_f32 v{vT+k}, v{vT+k}") for k in range(4)]
                L+=[I(f"v_mul_f32 v{G+r[k]}, v{G+r[k]}, v{vT+k}") for k in range(4)]
                L+=[I(f"v_cvt_pk_bf16_f32 v{P+2*h+k}, v{G+r[2*k]}, v{G+r[2*k+1]}") for k in range(2)]
            i=i0+f
            st=I(f"buffer_store_dwordx4 {v(P,4)}, v{vL16}, {srd(SWS)}, s{sH+i//4} offen offset:{(i%4)*1024} sc1")
            s.tok_h[i]=st; L.append(st)
        return L
    def kv_epi(s):
        K=ACC; V=ACC+16; S=192; PK=208; PV=216; L=[]
        rd=[I(f"ds_read_b128 {v(S+4*i,4)}, v{vSTR} offset:{32*i}") for i in range(4)]
        L+=rd+[W(lg=rd[-1])]
        for h in range(4):
            r=[4*h+k for k in range(4)]
            L+=[I(f"v_mul_f32 v{K+x}, v{K+x}, v{S+x}") for x in r]
            L+=[I(f"v_min_f32 v{vT+k}, 0, v{K+r[k]}") for k in range(4)]
            L+=[I(f"v_mul_f32 v{vT+k}, {fb(LOG2E)}, v{vT+k}") for k in range(4)]
            L+=[I(f"v_exp_f32 v{vT+k}, v{vT+k}") for k in range(4)]
            L+=[I(f"v_max_f32 v{K+x}, 0, v{K+x}") for x in r]
            L+=[I(f"v_add_f32 v{K+r[k]}, v{K+r[k]}, v{vT+k}") for k in range(4)]
            L+=[I(f"v_add_f32 v{K+x}, {fb(1e-6)}, v{K+x}") for x in r]
            L+=[I(f"v_mul_f32 v{V+x}, v{V+x}, v{S+x}") for x in r]
            L+=[I(f"v_cvt_pk_bf16_f32 v{PK+2*h+k}, v{K+r[2*k]}, v{K+r[2*k+1]}") for k in range(2)]
            L+=[I(f"v_cvt_pk_bf16_f32 v{PV+2*h+k}, v{V+r[2*k]}, v{V+r[2*k+1]}") for k in range(2)]
        L+=[I(f"v_mov_b32 v{vT}, s{sONES}")]
        L+=[I(f"v_cndmask_b32 v{PV+k}, v{PV+k}, v{vT}, s[{MONE}:{MONE+1}]") for k in range(8)]
        M=[I(f"v_mfma_f32_32x32x16_bf16 {v(K,16)}, {v(PK,4)}, {v(PV,4)}, 0"),
           I(f"v_mfma_f32_32x32x16_bf16 {v(K,16)}, {v(PK+4,4)}, {v(PV+4,4)}, {v(K,16)}")]
        Wr=[I(f"ds_write_b128 v{vKXW}, {v(K+4*q,4)} offset:{q*1024}") for q in range(4)]
        rd2=[I(f"ds_read_b128 {v(S+4*q,4)}, v{vKXR} offset:{q*4096}") for q in range(4)]
        R=rd2+[W(lg=rd2[-1])]
        R+=[I(f"v_add_f32 v{S+k}, v{S+k}, v{S+4+k}") for k in range(4)]
        R+=[I(f"v_add_f32 v{S+8+k}, v{S+8+k}, v{S+12+k}") for k in range(4)]
        R+=[I(f"v_add_f32 v{S+k}, v{S+k}, v{S+8+k}") for k in range(4)]
        st=I(f"buffer_store_dwordx4 {v(S,4)}, v{vL16}, {srd(SWS)}, s{sKVst} offen sc1"); R.append(st); s.tok_kvst=st
        return L,M,Wr,R
    def kv_loads(s):
        L=[]
        for m in range(16):
            dst=v(192+4*m,4) if m<8 else a(32+4*(m-8),4)
            L.append(I(f"buffer_load_dwordx4 {dst}, v{vL16}, {srd(SWS)}, s{sKVld+m//4} offen offset:{(m%4)*1024} sc1"))
        return L
    def kv_reduce(s, lds):
        L=[W(vm=lds[7])]
        for st in (16,8,4):
            for b in range(0,st,4):
                L+=[I(f"v_add_f32 v{192+b+k}, v{192+b+k}, v{192+b+st+k}") for k in range(4)]
        L+=[W(vm=lds[15])]
        for m in range(8):
            t=232+4*(m&1)
            L+=[I(f"v_accvgpr_read_b32 v{t+k}, a{32+4*m+k}") for k in range(4)]
            L+=[I(f"v_add_f32 v{192+4*(m&1)+k}, v{192+4*(m&1)+k}, v{t+k}") if m!=1 else I(f"v_mov_b32 v{196+k}, v{t+k}") for k in range(4)]
        L+=[I(f"v_add_f32 v{192+k}, v{192+k}, v{196+k}") for k in range(4)]
        L+=[I(f"v_cvt_pk_bf16_f32 v196, v192, v193"), I(f"v_cvt_pk_bf16_f32 v197, v194, v195")]
        L+=[I(f"ds_write_b64 v{vKFW}, v[196:197]")]
        return L
    def trd(s, g):
        P=g>>1; u=g&1; ps=P//28; pos=P%28; sg=P//14; pl=P%14; slot=sg%5
        dst=(P%4)*8+u*4; L=[]
        for t in range(2):
            if ps==4 and u==0:
                L.append(I(f"ds_read_b64_tr_b16 {a(dst+2*t,2)}, v{vMX+t} offset:{(slot-3)*SLOT+(pl>>1)*1024+(pl&1)*512}"))
            else:
                wv=(u+2*(pl&1)) if ps<4 else 2+(pl&1)
                off=(slot&1)*SLOT+wv*7168+(pl>>1)*1024+t*256
                L.append(I(f"ds_read_b64_tr_b16 {a(dst+2*t,2)}, v{vTR+slot//2} offset:{off}"))
        return L
    def phase1(s):
        p=s.p; s.tok_h={}
        segs=[]
        def seg(g0,g1,L): segs.append([g0,g1,list(L),0])
        B=lambda k: 28*k-4
        for k in range(1,6): seg(B(k)+1,B(k)+24,s.wdma(k+4))
        gold,gochk=s.spin(f"buffer_load_dword v{vPOLL+1}, off, {srd(SD)}, 0 sc1", f"v{vPOLL+1}", 1)
        e1,eM,eW,eR=s.kv_epi()
        seg(58,96,e1); seg(97,99,eM[:1]); seg(99,100,eM[1:]); seg(104,107,eW); seg(B(4)+1,B(4)+8,eR)
        seg(116,166,s.gelu(ACC+32,ACC+48,16,0))
        seg(172,222,s.gelu(ACC,ACC+16,16,2))
        seg(228,272,s.gelu(ACC+32,ACC+48,16,4))
        s.goL=(gold,gochk)
        seg(60,61,[gold])
        seg(160,161,gochk+[W(vm=s.tok_kvst), I(f"buffer_store_dword v{vONE}, v{vZ}, {srd(SWS)}, s{sFKst} offen sc1")])
        kld,kchk=s.spin(f"buffer_load_dword v{vPOLL}, v{vPA15}, {srd(SWS)}, s{sFKld} offen sc1", f"v{vPOLL}", 1)
        kl=s.kv_loads()
        seg(196,197,[kld]); seg(222,223,kchk); seg(223,231,kl); seg(258,274,s.kv_reduce(kl))
        seg(B(6)-3,B(6),lines(f"""
        s_mov_b32 s{SWD}, s16
        s_and_b32 s{SWD+1}, s17, 0xffff
        s_mul_i32 s{SWD+2}, s{sV2}, {1792*896}
        s_mov_b32 s{SWO}, s8
        s_and_b32 s{SWO+1}, s9, 0xffff
        s_mul_i32 s{SWO+2}, s{sV2}, {448*896}
        s_mov_b32 s{SOUT}, s18
        s_and_b32 s{SOUT+1}, s19, 0xffff
        s_mov_b32 s{SOUT+2}, {2048*896}
        s_lshl_b32 s{sWB7}, s{sW}, 11
        v_lshrrev_b32 v232, 7, v{vL16}
        v_bfe_u32 v233, v{vL16}, 8, 1
        v_lshlrev_b32 v233, 6, v233
        v_and_b32 v234, 0x70, v{vL16}
        v_xor_b32 v233, v233, v234
        s_lshl_b32 s{sT}, s{sNB}, 7
        v_mul_u32_u24 v232, 896, v232
        v_add3_u32 v{vB}, v232, v233, s{sT}
        v_add_u32 v{vB2}, 6144, v{vB}
        """))
        for k,(n0,n1) in {6:(0,3),7:(3,7),8:(7,10),9:(10,14)}.items():
            L=[]
            for n in range(n0,n1): L+=s.bdma(n)
            seg(B(k)+1,B(k)+24,L)
        p(W(vm=s.tok_w[0])); p("s_barrier")
        rd={}
        for g in range(4):
            rd[g]=s.trd(g); p(rd[g])
        for g in range(280):
            P=g>>1; u=g&1; ps=P//28; pos=P%28
            if u==0: p(W(lg=rd[g+1][-1]))
            D=ACC+32*(ps&1)+16*u; fr=a((P%4)*8+u*4,4); xr=v(X+4*pos,4); C=v(D,16) if pos else "0"
            if ps==0: p(f"v_mfma_f32_32x32x16_bf16 {v(D,16)}, {xr}, {fr}, {C}")
            else: p(f"v_mfma_f32_32x32x16_bf16 {v(D,16)}, {fr}, {xr}, {C}")
            if (g+4)%28==0:
                k=(g+4)//28
                p(W(vm=s.tok_w[k], lg=0) if k<10 else W(lg=0)); p("s_barrier")
                if k%2==0: p(s.stamp(f"B{k}"))
            if g+4<280:
                rd[g+4]=s.trd(g+4); p(rd[g+4])
            for sgm in segs:
                g0,g1,L,done=sgm
                if g<g0 or done>=len(L): continue
                tot=sum(x.cost for x in L); tgt=tot*(g-g0+1)/(g1-g0) if g<g1-1 else tot+1
                acc=sum(x.cost for x in L[:done])
                while done<len(L) and (acc<tgt or L[done].kind=="label"):
                    p(L[done]); acc+=L[done].cost; done+=1
                sgm[3]=done
        assert all(x[3]==len(x[2]) for x in segs)
        p(s.stamp("p1_mfma_done"))
        Q=ACC+16; PQ=208; N=ACC+32; PO=216
        p(f"v_lshlrev_b32 v232, 1, v{vL16}"); p(f"v_add_u32 v232, {KVF}, v232")
        r0=p(f"ds_read_b128 a[64:67], v232"); r1=p(f"ds_read_b128 a[68:71], v232 offset:16")
        L=[]
        for n in range(14,17): L+=s.bdma(n)
        p(L)
        for h in range(4):
            r=[4*h+k for k in range(4)]
            p([I(f"v_mul_f32 v{vT+k}, v{Q+r[k]}, v{vC2}") for k in range(4)])
            p([I(f"v_min_f32 v{vT+k}, 0, v{vT+k}") for k in range(4)])
            p([I(f"v_exp_f32 v{vT+k}, v{vT+k}") for k in range(4)])
            p([I(f"v_max_f32 v{Q+x}, 0, v{Q+x}") for x in r])
            p([I(f"v_fma_f32 v{Q+r[k]}, v{Q+r[k]}, v{vS}, v{vT+k}") for k in range(4)])
            p([I(f"v_add_f32 v{Q+x}, {fb(1e-6)}, v{Q+x}") for x in r])
            p([I(f"v_cvt_pk_bf16_f32 v{PQ+2*h+k}, v{Q+r[2*k]}, v{Q+r[2*k+1]}") for k in range(2)])
        p([I(f"v_cndmask_b32 v{PQ+6+k}, v{PQ+6+k}, 0, s[{MHI}:{MHI+1}]") for k in range(2)])
        p(W(lg=r1))
        p(f"v_mfma_f32_32x32x16_bf16 {v(N,16)}, a[64:67], {v(PQ,4)}, 0")
        p(f"v_mfma_f32_32x32x16_bf16 {v(N,16)}, a[68:71], {v(PQ+4,4)}, {v(N,16)}")
        p(s.gelu(ACC,ACC+8,8,6))
        p(f"""
        v_mov_b32 v232, v{N+12}
        v_mov_b32 v233, v{N+12}
        v_permlane32_swap_b32 v232, v233
        v_add_f32 v233, {fb(1e-6)}, v233
        v_rcp_f32 v233, v233
        """)
        p([I(f"v_mul_f32 v{N+k}, v{N+k}, v233") for k in range(16)])
        p([I(f"v_cvt_pk_bf16_f32 v{PO+k}, v{N+2*k}, v{N+2*k+1}") for k in range(8)])
        p([I(f"v_cndmask_b32 v{PO+6+k}, v{PO+6+k}, 0, s[{MHI}:{MHI+1}]") for k in range(2)])
        p(f"buffer_store_dwordx4 {v(PO,4)}, v{vL16}, {srd(SWS)}, s{sH+1} offen offset:3072 sc1")
        last=p(f"buffer_store_dwordx4 {v(PO+4,4)}, v{vL16}, {srd(SWS)}, s{sH+2} offen sc1")
        p(s.stamp("tail_done"))
        p(W(vm=last))
        p(f"buffer_store_dword v{vONE}, v{vZ}, {srd(SWS)}, s{sFHst} offen sc1")
        p(s.stamp("published"))
        p(f"s_cmp_eq_u32 s{sV2}, 0"); p("s_cbranch_scc1 L_fin")
    def phase2(s):
        p=s.p
        vBT=192; vA=198; vXR=204; NA=14
        p(f"""
        v_lshrrev_b32 v232, 9, v{vL16}
        v_bfe_u32 v233, v{vL16}, 6, 2
        v_lshl_add_u32 v232, v232, 2, v233
        v_lshlrev_b32 v232, 7, v232
        v_bfe_u32 v233, v{vL16}, 7, 1
        v_lshl_add_u32 v232, v233, 6, v232
        v_bfe_u32 v233, v{vL16}, 8, 1
        v_lshl_add_u32 v232, v233, 5, v232
        v_bfe_u32 v233, v{vL16}, 4, 2
        v_lshl_add_u32 v232, v233, 3, v232
        v_add_u32 v{vBT}, s{sWB7}, v232
        v_xor_b32 v{vBT+1}, 64, v{vBT}
        v_add_u32 v{vBT+2}, 0x10000, v{vBT}
        v_add_u32 v{vBT+3}, 0x10000, v{vBT+1}
        v_add_u32 v{vBT+4}, 0x20000, v{vBT}
        v_add_u32 v{vBT+5}, 0x20000, v{vBT+1}
        v_mov_b32 v{vA}, v{vL16}
        v_add_u32 v{vA+1}, 4096, v{vL16}
        v_add_u32 v{vA+2}, 8192, v{vL16}
        v_add_u32 v{vA+3}, {16*9216}, v{vL16}
        v_add_u32 v{vA+4}, {16*9216+4096}, v{vL16}
        v_add_u32 v{vA+5}, {16*9216+8192}, v{vL16}
        v_lshrrev_b32 v232, 6, v{vL16}
        s_lshl_b32 s{sT}, s{sW}, 4
        v_add_u32 v232, s{sT}, v232
        v_bfe_u32 v233, v{vL16}, 4, 2
        v_mul_u32_u24 v234, 272, v232
        v_lshl_add_u32 v214, v233, 6, v234
        v_mul_u32_u24 v232, 896, v232
        v_lshl_add_u32 v212, v233, 5, v232
        s_mul_i32 s{sT2}, s{sMB}, {64*896}
        s_lshl_b32 s{sT}, s{sNB}, 7
        s_add_u32 s{sT2}, s{sT2}, s{sT}
        """)
        xr0=p(f"buffer_load_dwordx4 {v(vXR,4)}, v212, {srd(SX)}, s{sT2} offen")
        xr1=p(f"buffer_load_dwordx4 {v(vXR+4,4)}, v212, {srd(SX)}, s{sT2} offen offset:16")
        ld,chk=s.spin(f"buffer_load_dword v{vPOLL}, v{vPA31}, {srd(SWS)}, s{sFHld} offen sc1", f"v{vPOLL}", 1)
        p(ld); p(chk)
        p(s.stamp("flags_seen"))
        ta={}
        def aload(n):
            jj,i=kmap(n); L=[]
            for mb in range(2):
                L.append(I(f"buffer_load_dwordx4 {v(X+(n%NA)*8+4*mb,4)}, v{vA+3*mb+i//4}, {srd(SWS)}, s{sA+jj} offen offset:{(i%4)*1024} sc1"))
            ta[n]=L[-1]; return L
        def btr(n,q):
            nbk,t=q>>1,q&1; e=n%NB
            return I(f"ds_read_b64_tr_b16 {a((n%4)*8+nbk*4+2*t,2)}, v{vBT+2*(e//8)+nbk} offset:{(e%8)*8192+t*1024}")
        for n in range(NA): p(aload(n))
        rb={}
        p(W(vm=s.tok_b[0]))
        for q in range(4): rb[0]=p(btr(0,q))
        for n in range(36):
            p(W(vm=ta[n], lg=rb[n]))
            for q in range(4):
                nbk,mb=q>>1,q&1; D=ACC+16*q
                p(f"v_mfma_f32_32x32x16_bf16 {v(D,16)}, {a((n%4)*8+nbk*4,4)}, {v(X+(n%NA)*8+4*mb,4)}, {v(D,16) if n else 0}")
                if n+1<36:
                    if q==0:
                        p(W(vm=s.tok_b[n+1])); p(btr(n+1,0)); p(btr(n+1,1))
                    if q==1:
                        p(btr(n+1,2)); rb[n+1]=p(btr(n+1,3))
                if q==2 and n+NB<36: p(s.bdma(n+NB))
                if q==3 and n+NA<36: p(aload(n+NA))
        p(s.stamp("p2_mfma_done"))
        p("s_barrier")
        p(f"""
        v_bfe_u32 v232, v{vL16}, 4, 5
        v_mul_u32_u24 v232, 272, v232
        v_lshrrev_b32 v233, 9, v{vL16}
        v_lshl_add_u32 v232, v233, 4, v232
        s_mul_i32 s{sT}, s{sW}, 17408
        v_add_u32 v232, s{sT}, v232
        """)
        for q in range(4):
            nbk,mb=q>>1,q&1
            for i in range(4):
                p(f"ds_write_b128 v232, {v(ACC+16*q+4*i,4)} offset:{mb*32*272+nbk*128+i*32}")
        p(W(lg=0)); p("s_barrier")
        rr=[]
        for w in range(4):
            for c in range(4): rr.append(p(f"ds_read_b128 {v(16+16*w+4*c,4)}, v214 offset:{w*17408+c*16}"))
        p(W(vm=xr1))
        for k in range(8):
            p(f"v_lshlrev_b32 v{80+2*k}, 16, v{vXR+k}"); p(f"v_and_b32 v{81+2*k}, 0xffff0000, v{vXR+k}")
        p(W(lg=rr[7]))
        for k in range(8): p(f"v_pk_add_f32 {v(16+2*k,2)}, {v(16+2*k,2)}, {v(32+2*k,2)}")
        p(W(lg=rr[15]))
        for k in range(8): p(f"v_pk_add_f32 {v(48+2*k,2)}, {v(48+2*k,2)}, {v(64+2*k,2)}")
        for k in range(8): p(f"v_pk_add_f32 {v(16+2*k,2)}, {v(16+2*k,2)}, {v(80+2*k,2)}")
        for k in range(8): p(f"v_pk_add_f32 {v(16+2*k,2)}, {v(16+2*k,2)}, {v(48+2*k,2)}")
        for k in range(8): p(f"v_cvt_pk_bf16_f32 v{96+k}, v{16+2*k}, v{17+2*k}")
        of=s.opt.get("outflag","")
        p(f"buffer_store_dwordx4 v[96:99], v212, {srd(SOUT)}, s{sT2} offen {of}")
        p(f"buffer_store_dwordx4 v[100:103], v212, {srd(SOUT)}, s{sT2} offen offset:16 {of}")
        p("L_fin:")
        if s.stamps:
            p(W(vm=0)); p(s.stamp("end"))
            p(f"s_lshl_b32 s{sT}, s{sMI}, 4\ns_add_u32 s{sT}, s{sT}, s{sJ}\ns_lshl_b32 s{sT}, s{sT}, 2\ns_add_u32 s{sT}, s{sT}, s{sW}\ns_lshl_b32 s{sT}, s{sT}, 8\ns_add_u32 s{sT}, s{sT}, {WS_ST}")
            p(f"v_lshrrev_b32 v232, 2, v{vL16}")
            p(f"buffer_store_dword v0, v232, {srd(SWS)}, s{sT} offen")
        if s.opt.get("fixspan"):
            p(W(vm=0)); p(f"v_readfirstlane_b32 s{sT}, v0\nL_fix:\ns_memrealtime s[{sSTMP}:{sSTMP+1}]\ns_waitcnt lgkmcnt(0)\ns_sub_u32 s{sSTMP}, s{sSTMP}, s{sT}\ns_cmp_lt_u32 s{sSTMP}, {s.opt['fixspan']}\ns_cbranch_scc1 L_fix")
        if s.opt.get("dbgspan"):
            p(W(vm=0)); p(f"s_memrealtime s[{sSTMP}:{sSTMP+1}]\ns_waitcnt lgkmcnt(0)\nv_mov_b32 v232, s{sSTMP}")
            p("s_mov_b64 exec, 1"); p(f"buffer_atomic_umax v0, off, {srd(SD)}, 0 offset:16"); p(f"buffer_atomic_umax v232, off, {srd(SD)}, 0 offset:20")
        p("L_end:"); p("s_endpgm")
    def build(s):
        s.prologue(); s.phase1(); s.phase2()
        s.p.add(s.ool); s.p("L_codeend:")
        s.p.resolve()
        s.p.check(fix=True)
        errs=s.p.check()
        hdr=f"""; Fused LayerNorm + linear attention + GEGLU FFN + residual, one persistent launch (generated by dev/gen.py)
; @launch grid=(256,1,1) block=(256,1,1) lds={LDS}
.amdgcn_target "amdgcn-amd-amdhsa--gfx950"
.text
.globl {KN}
.p2align 8
.type {KN},@function
{KN}:
"""
        body=s.p.text().replace("CODEBYTES", str(s.opt.get("codebytes",32768)))
        ftr=f""".section .rodata,"a"
.p2align 6
.amdhsa_kernel {KN}
  .amdhsa_next_free_vgpr 512
  .amdhsa_next_free_sgpr 102
  .amdhsa_accum_offset 256
  .amdhsa_group_segment_fixed_size 0
  .amdhsa_kernarg_size 80
  .amdhsa_user_sgpr_count 2
  .amdhsa_user_sgpr_kernarg_segment_ptr 1
  .amdhsa_system_sgpr_workgroup_id_x 1
.end_amdhsa_kernel
"""
        return hdr+body+ftr, errs
if __name__=="__main__":
    import argparse
    ap=argparse.ArgumentParser(); ap.add_argument("-o",default="k.s"); ap.add_argument("--stamps",action="store_true"); ap.add_argument("-v",action="store_true"); ap.add_argument("--opt",default="{}")
    ar=ap.parse_args()
    g=Gen(stamps=ar.stamps, **eval(ar.opt)); txt,errs=g.build()
    for e in errs: print("ERR",e)
    open(ar.o,"w").write(txt)
    print("instrs",len(g.p.L),"errors",len(errs))
    from build import build
    build(ar.o)
```

```python
import sys, struct
from emit import Prog, I, W, Ins
KN = "parallel_sum__linear_attn_block__geglu_ffn__prompt_kernel"
def fb(x): return "0x%08x" % struct.unpack("<I", struct.pack("<f", x))[0]
SLOT=28672; KVX=143360; STAT=159744; KVF=160256; LDS=163840
WS_KVP=0x900000; WS_FL=0xA00000; WS_ST=0xB00000; WS_SZ=0xC00000
LOG2E=1.4426950408889634
K0C=-2*0.7978845608028654*LOG2E; K1C=K0C*0.044715
sFHst,sFHld,sOUT=0,1,3
sA=4; sBd=12; sBo=20
sW,sT=10,11
SX,SW0,SW1,SW4,SWS,SD=24,28,32,36,40,44
SWD,SWO,SOUT=SW0,SW1,SW4
TA,TB=48,62
sMI,sJ,sR,sWB7=76,77,78,79
sH=80; sKVst=83; sKVld=84; sMB,sNB,sV2=88,89,90
sT2=91; MONE=92; MHI=94; sSTMP=96; sOLO,sOHI,sONES,sSPIN=98,99,100,101
sXM,sXC,sXR,sXT=MONE,MONE+1,MHI,MHI+1
def srd(n): return f"s[{n}:{n+3}]"
vL16,vW0,vW1,vW4=1,2,3,4
vTR=5; vMX=8; vK0,vK1,vV,vS,vC2=10,11,12,13,14; vB2=15; vB=2
X=16; ACC=128
vZ,vONE,vPOLL,vL4,vPA31=224,225,226,228,229
vSTR,vKXW,vKXR,vKFW=240,241,242,243
vT=244; vP=248
NB=17
aKV=32; aKF=32; aA=64
def v(a,n=1): return f"v{a}" if n==1 else f"v[{a}:{a+n-1}]"
def a(x,n=1): return f"a{x}" if n==1 else f"a[{x}:{x+n-1}]"
def lines(t): return [I(l.strip()) for l in t.strip().split("\n") if l.strip()]
def kmap(n):
    if n<24: return (n%8)//2, 2*(n//8)+n%2
    return (n-24)//3, 6+(n-24)%3
def Bg(k): return 28*k-4

class Gen:
    def __init__(s, stamps=False, **opt):
        s.p=Prog(); s.ool=[]; s.stamps=stamps; s.stnames=[]; s.opt=opt; s.lbl=0
    def o(s,k,d): return s.opt.get(k,d)
    def stamp(s, name="", fine=False):
        if not s.stamps or (fine and not s.o("fine",0)): return []
        k=len(s.stnames); s.stnames.append(name)
        return [I(f"s_memtime s[{sSTMP}:{sSTMP+1}]"), I("s_waitcnt lgkmcnt(0)"), I(f"v_writelane_b32 v0, s{sSTMP}, {k}")]
    def retry(s, fast_wait, test, reload, retest=None):
        n=s.lbl; s.lbl+=1
        chk=[fast_wait]+[I(t) for t in test]+[I(f"s_cbranch_vccnz L_spin{n}"), I(f"L_ok{n}:")]
        s.ool += [I(f"L_spin{n}:"), I(f"s_mov_b32 s{sSPIN}, 0x20000"), I(f"L_spinl{n}:"), I("s_waitcnt vmcnt(0)")]
        s.ool += [I(t,count=False) for t in reload]+[I("s_waitcnt vmcnt(0)")]+[I(t) for t in (retest or test)]
        s.ool += [I(f"s_cbranch_vccz L_ok{n}"), I(f"s_sub_u32 s{sSPIN}, s{sSPIN}, 1"), I(f"s_cmp_lg_u32 s{sSPIN}, 0"),
                  I(f"s_cbranch_scc1 L_spinl{n}"), I(f"s_branch L_ok{n}")]
        return chk
    def spin(s, load_text, reg, val):
        ld=I(load_text)
        return ld, s.retry(W(vm=ld), [f"v_cmp_ne_u32 vcc, {val}, {reg}"], [load_text])
    def wdma(s, sg):
        ps=sg>>1; hf=sg&1; L=[]
        sr={0:SW0,4:SW4}.get(ps,SW1); vo={0:vW0,4:vW4}.get(ps,vW1); tb=TB if ps in(1,2,3) else TA
        if ps in (2,3) and hf==0: L.append(I(f"v_add_u32 v{vW1}, 64, v{vW1}"))
        for i in range(7):
            if i in (0,4): L.append(I(f"s_add_u32 m0, s{sWB7}, {(sg%5)*SLOT+(4096 if i==4 else 0)}"))
            L.append(I(f"buffer_load_dwordx4 v{vo}, {srd(sr)}, s{tb+7*hf+i} offen offset:{(i%4)*1024} lds"))
        s.tok_w[sg]=L[-1]
        return L
    def bdma(s, n):
        jj,i=kmap(n)
        base,sr,k=(sBd+jj,SWD,i) if i<7 else (sBo+jj,SWO,i-7)
        L=[I(f"s_add_u32 m0, s{sWB7}, {(n%NB)*8192}"), I(f"s_add_u32 s{sT}, s{base}, {k*14336}"),
           I(f"buffer_load_dwordx4 v{vB}, {srd(sr)}, s{sT} offen lds"),
           I(f"buffer_load_dwordx4 v{vB2}, {srd(sr)}, s{sT} offen offset:1024 lds")]
        s.tok_b[n]=L[-1]
        return L
    def prologue(s):
        p=s.p; s.tok_w={}; s.tok_b={}
        if s.o("fixspan",0): p(f"s_memrealtime s[{sSTMP}:{sSTMP+1}]")
        m512=s.o("m512",0)
        p(f"""
        s_cmp_ge_u32 s2, 256
        s_cbranch_scc1 L_end
        s_load_dwordx4 s[4:7], s[0:1], 0
        s_load_dwordx4 s[20:23], s[0:1], 64
        s_load_dwordx2 s[8:9], s[0:1], 16
        s_load_dwordx4 s[12:15], s[0:1], 32
        s_load_dwordx4 s[16:19], s[0:1], 48
        s_getpc_b64 s[{SD}:{SD+1}]
        L_pc:
        v_lshrrev_b32 v192, 6, v0
        v_and_b32 v193, 63, v0
        v_readfirstlane_b32 s{sW}, v192
        s_and_b32 s{SD+1}, s{SD+1}, 0xffff
        s_mov_b32 s{SD+2}, L_codeend-L_pc
        s_mov_b32 s{SD+3}, 0x20000
        v_lshlrev_b32 v{vL16}, 4, v193
        s_and_b32 s{sT}, s2, 7
        s_lshr_b32 s{sT2}, s2, 3
        """)
        if not m512: p(f"""
        s_and_b32 s{sMI}, s{sT}, 1
        s_lshl_b32 s{sMI}, s{sMI}, 3
        s_and_b32 s{sR}, s{sT2}, 7
        s_add_u32 s{sMI}, s{sMI}, s{sR}
        s_lshr_b32 s{sJ}, s{sT}, 1
        s_lshl_b32 s{sJ}, s{sJ}, 2
        s_lshr_b32 s3, s{sT2}, 3
        s_add_u32 s{sJ}, s{sJ}, s3
        s_lshl_b32 s3, s3, 1
        s_add_u32 s{sR}, s{sR}, s3
        """)
        else: p(f"""
        s_and_b32 s{sMI}, s{sT}, 3
        s_lshl_b32 s{sMI}, s{sMI}, 2
        s_and_b32 s{sR}, s{sT2}, 3
        s_add_u32 s{sMI}, s{sMI}, s{sR}
        s_lshr_b32 s{sJ}, s{sT}, 2
        s_lshl_b32 s{sJ}, s{sJ}, 3
        s_lshr_b32 s3, s{sT2}, 2
        s_add_u32 s{sJ}, s{sJ}, s3
        s_lshl_b32 s{sR}, s{sR}, 1
        s_add_u32 s{sR}, s{sR}, s3
        """)
        p(f"""
        s_cmp_ge_u32 s{sR}, 7
        s_cselect_b32 s3, 7, 0
        s_sub_u32 s{sR}, s{sR}, s3
        v_lshrrev_b32 v222, 3, v193
        v_mul_u32_u24 v222, 896, v222
        v_lshrrev_b32 v196, 4, v193
        v_and_b32 v197, 7, v193
        v_xor_b32 v196, v196, v197
        v_lshl_add_u32 v222, v196, 4, v222
        v_xor_b32 v223, 64, v222
        s_lshl_b32 s{sH}, s{sMI}, 2
        s_add_u32 s{sH}, s{sH}, s{sW}
        s_mul_i32 s{sXR}, s{sH}, {32*896}
        s_add_u32 s{sXM}, s{sW}, 1
        s_mul_i32 s{sXM}, s{sXM}, {SLOT}
        s_mov_b32 s{sXC}, s{sR}
        s_mov_b32 s{SX+2}, {2048*896}
        s_mov_b32 s{SX+3}, 0x20000
        s_waitcnt lgkmcnt(0)
        s_mov_b32 s{SX}, s4
        s_and_b32 s{SX+1}, s5, 0xffff
        """)
        if s.stamps: p("v_mov_b32 v0, 0"); p(s.stamp("start"))
        if s.o("fixspan",0): p(f"v_mov_b32 v0, s{sSTMP}")
        tok_x=[]
        def xdma(P):
            L=[I(f"s_add_u32 m0, s{sXM}, {P*4096}"), I(f"s_lshl_b32 s{sXT}, s{sXC}, 7"), I(f"s_add_u32 s{sXT}, s{sXT}, s{sXR}")]
            for t in range(4):
                tk=I(f"buffer_load_dwordx4 v{222+(t&1)}, {srd(SX)}, s{sXT} offen offset:{t*1024} lds"); L.append(tk)
                if t<3: L.append(I(f"s_add_u32 s{sXT}, s{sXT}, 6144"))
            tok_x.append(tk)
            if P<6: L+=[I(f"s_add_u32 s{sXC}, s{sXC}, 1"), I(f"s_cmp_eq_u32 s{sXC}, 7"), I(f"s_cselect_b32 s{sXC}, 0, s{sXC}")]
            return L
        NX0=s.o("nx0",3)
        for P in range(NX0): p(xdma(P))
        p(f"""
        s_lshl_b32 s3, s{sT2}, 10
        v_cmp_gt_u32 vcc, 4, v193
        v_lshlrev_b32 v194, 6, v193
        v_lshl_add_u32 v194, v192, 8, v194
        v_bfrev_b32 v195, 2
        v_cndmask_b32 v194, v195, v194, vcc
        buffer_load_dword v255, v194, {srd(SD)}, s3 offen
        """)
        p(s.stamp("x_first_issued",1))
        p(f"""
        s_mul_i32 s{sMB}, s{sT2}, 37
        s_lshr_b32 s{sMB}, s{sMB}, 8
        s_mul_i32 s3, s{sMB}, 7
        s_sub_u32 s{sNB}, s{sT2}, s3
        s_cmp_lt_u32 s{sT2}, 28
        s_cselect_b32 s{sV2}, 1, 0
        s_lshl_b32 s{sT}, s{sT}, 2
        s_add_u32 s{sMB}, s{sMB}, s{sT}
        s_mul_i32 s{sWB7}, s{sW}, 7168
        s_lshl_b32 s{sR}, s{sR}, 2
        s_sub_u32 s{SW0}, s6, 3072
        s_subb_u32 s{SW0+1}, s7, 0
        s_and_b32 s{SW0+1}, s{SW0+1}, 0xffff
        s_mov_b32 s{SW0+2}, {448*2688+3072}
        s_mov_b32 s{SW0+3}, 0x20000
        s_mov_b32 s4, s{sR}
        """)
        for i in range(14):
            bias=3072-1024*((i%7)%4)
            p(f"s_mul_i32 s{TA+i}, s4, {16*2688}"); p(f"s_mul_i32 s{TB+i}, s4, {16*3584}")
            if bias:
                p(f"s_add_u32 s{TA+i}, s{TA+i}, {bias}"); p(f"s_add_u32 s{TB+i}, s{TB+i}, {bias}")
            if i<13:
                p("s_add_u32 s4, s4, 2"); p("s_cmp_eq_u32 s4, 28"); p("s_cselect_b32 s4, 0, s4")
        p(f"""
        s_lshr_b32 s4, s{sW}, 1
        s_lshl_b32 s4, s4, 4
        s_and_b32 s5, s{sW}, 1
        v_lshrrev_b32 v197, 2, v193
        v_and_b32 v198, 3, v193
        v_lshlrev_b32 v198, 4, v198
        v_add_u32 v199, s4, v197
        s_mul_i32 s3, s5, 896
        s_mul_i32 s4, s{sJ}, 56
        s_add_u32 s3, s3, s4
        s_add_u32 s3, s3, 896
        v_mul_u32_u24 v{vW0}, 2688, v199
        v_add3_u32 v{vW0}, v{vW0}, v198, s3
        s_mul_i32 s3, s{sJ}, 224
        v_mul_u32_u24 v{vW1}, 3584, v199
        v_add3_u32 v{vW1}, v{vW1}, v198, s3
        s_cmp_eq_u32 s5, 0
        s_cselect_b32 s{SW1}, s12, s14
        s_cselect_b32 s{SW1+1}, s13, s15
        s_sub_u32 s{SW1}, s{SW1}, 3072
        s_subb_u32 s{SW1+1}, s{SW1+1}, 0
        s_and_b32 s{SW1+1}, s{SW1+1}, 0xffff
        s_mov_b32 s{SW1+2}, {448*3584+3072}
        s_mov_b32 s{SW1+3}, 0x20000
        s_lshl_b32 s6, s5, 4
        v_add_u32 v199, s6, v197
        v_mul_u32_u24 v199, 2688, v199
        v_add3_u32 v199, v199, v198, s4
        s_lshl_b32 s6, s5, 2
        v_lshrrev_b32 v197, 1, v193
        v_xor_b32 v197, s6, v197
        v_mul_u32_u24 v197, 3584, v197
        v_and_b32 v198, 1, v193
        v_lshlrev_b32 v198, 4, v198
        s_add_u32 s3, s3, 192
        v_add3_u32 v197, v197, v198, s3
        s_cmp_lt_u32 s{sW}, 2
        s_cselect_b32 s{SW4}, s{SW1}, s{SW0}
        s_cselect_b32 s{SW4+1}, s{SW1+1}, s{SW0+1}
        s_cselect_b32 s{SW4+2}, s{SW1+2}, s{SW0+2}
        s_cselect_b64 vcc, -1, 0
        s_mov_b32 s{SW4+3}, 0x20000
        s_mov_b32 s{SWS}, s22
        s_and_b32 s{SWS+1}, s23, 0xffff
        s_mov_b32 s{SWS+2}, {WS_SZ}
        s_mov_b32 s{SWS+3}, 0x20000
        v_cndmask_b32 v{vW4}, v199, v197, vcc
        s_mov_b32 s{SD}, s20
        s_and_b32 s{SD+1}, s21, 0xffff
        s_mov_b32 s{SD+2}, 256
        s_mov_b32 s{SD+3}, 0x20000
        s_lshl_b32 s{sFHst}, s{sH}, 4
        s_add_u32 s{sFHst}, s{sFHst}, s{sJ}
        s_mul_i32 s{sH}, s{sFHst}, 9216
        s_lshl_b32 s{sFHst}, s{sFHst}, 2
        s_add_u32 s{sFHst}, s{sFHst}, {WS_FL}
        s_lshl_b32 s{sFHld}, s{sMB}, 7
        s_add_u32 s{sFHld}, s{sFHld}, {WS_FL}
        s_add_u32 s{sH+1}, s{sH}, 4096
        s_add_u32 s{sH+2}, s{sH}, 8192
        s_lshl_b32 s3, s{sJ}, 2
        s_add_u32 s3, s3, s{sW}
        s_lshl_b32 s3, s3, 14
        s_add_u32 s{sKVld}, s3, {WS_KVP}
        s_add_u32 s{sKVld+1}, s{sKVld}, 4096
        s_add_u32 s{sKVld+2}, s{sKVld}, 8192
        s_add_u32 s{sKVld+3}, s{sKVld}, 12288
        s_lshl_b32 s3, s{sMI}, 10
        s_add_u32 s{sKVst}, s{sKVld}, s3
        s_mov_b32 s{sOLO}, 0x3f80
        s_mov_b32 s{sOHI}, 0x3f800000
        s_mov_b32 s{sONES}, 0x3f803f80
        s_add_u32 s{sT}, s{sMB}, s{sNB}
        s_lshl_b32 s{sT2}, s{sW}, 2
        """)
        for jj in range(4):
            p(f"""
            s_add_u32 s3, s{sT}, {jj}
            s_and_b32 s3, s3, 3
            s_add_u32 s3, s3, s{sT2}
            s_mul_i32 s{sBd+jj}, s3, {112*896}
            s_mul_i32 s{sBo+jj}, s3, {28*896}
            s_lshl_b32 s{sA+jj}, s{sMB}, 5
            s_add_u32 s{sA+jj}, s{sA+jj}, s3
            s_mul_i32 s{sA+jj}, s{sA+jj}, 9216
            """)
        p(f"""
        v_lshrrev_b32 v197, 5, v193
        v_bfe_u32 v198, v193, 2, 2
        v_bfe_u32 v199, v193, 4, 1
        v_and_b32 v200, 3, v193
        v_lshlrev_b32 v200, 3, v200
        v_lshl_add_u32 v201, v197, 3, v198
        v_lshl_add_u32 v{vTR}, v201, 6, v200
        v_lshl_add_u32 v{vTR}, v199, 5, v{vTR}
        v_add_u32 v{vTR+1}, {2*SLOT}, v{vTR}
        v_add_u32 v{vTR+2}, {4*SLOT}, v{vTR}
        v_mul_u32_u24 v202, 7296, v199
        v_lshl_add_u32 v{vMX}, v201, 5, v200
        v_add_u32 v{vMX}, {3*SLOT}, v{vMX}
        v_add_u32 v{vMX}, v{vMX}, v202
        v_lshlrev_b32 v202, 8, v199
        v_sub_u32 v{vMX+1}, v{vMX}, v202
        v_add_u32 v{vMX+1}, 128, v{vMX+1}
        v_and_b32 v198, 31, v193
        v_bfe_u32 v199, v193, 1, 3
        v_xor_b32 v199, v199, v197
        v_lshlrev_b32 v199, 4, v199
        v_lshl_add_u32 v199, v198, 7, v199
        v_add_u32 v204, s{sXM}, v199
        v_xor_b32 v205, 32, v204
        v_xor_b32 v206, 64, v204
        v_xor_b32 v207, 0x60, v204
        s_lshl_b32 s3, s{sW}, 7
        s_add_u32 s3, s3, {STAT}
        v_lshl_add_u32 v{vSTR}, v197, 4, s3
        v_lshl_add_u32 v220, v198, 2, s3
        s_lshl_b32 s3, s{sW}, 12
        s_add_u32 s3, s3, {KVX}
        v_add_u32 v{vKXW}, s3, v{vL16}
        s_lshl_b32 s3, s{sW}, 10
        s_add_u32 s3, s3, {KVX}
        v_add_u32 v{vKXR}, s3, v{vL16}
        s_lshl_b32 s3, s{sW}, 3
        s_add_u32 s3, s3, {KVF}
        v_lshl_add_u32 v{vKFW}, v193, 5, s3
        v_cmp_eq_u32 vcc, 0, v193
        v_mov_b32 v{vONE}, 1
        v_bfrev_b32 v{vZ}, 2
        v_lshlrev_b32 v{vL4}, 2, v193
        v_cndmask_b32 v{vZ}, v{vZ}, 0, vcc
        v_lshlrev_b32 v{vPA31}, 2, v198
        v_mov_b32 v208, 0
        v_mov_b32 v209, 0
        v_mov_b32 v210, 0
        v_mov_b32 v211, 0
        v_mov_b32 v216, -1
        v_mov_b32 v217, -1
        v_mov_b32 v218, -1
        v_mov_b32 v219, -1
        s_and_b32 s{sT2}, s2, 63
        s_lshl_b32 s{sT2}, s{sT2}, 2
        s_mul_i32 s{sOUT}, s{sMB}, {64*896}
        s_lshl_b32 s{sNB}, s{sNB}, 7
        s_add_u32 s{sOUT}, s{sOUT}, s{sNB}
        """)
        p(s.stamp("setup_done",1))
        clr=[I(f"buffer_store_dwordx4 v[216:219], v{vL16}, {srd(SWS)}, s{sKVst} offen sc1"),
             I(f"buffer_store_dwordx4 v[216:219], v{vL16}, {srd(SWS)}, s{sH+1} offen offset:2048 sc1"),
             I(f"buffer_store_dwordx4 v[216:219], v{vL16}, {srd(SWS)}, s{sH+1} offen offset:3072 sc1"),
             I(f"buffer_store_dwordx4 v[216:219], v{vL16}, {srd(SWS)}, s{sH+2} offen sc1"),
             I(f"v_mov_b32 v212, 0"),
             I(f"buffer_store_dword v212, v{vZ}, {srd(SWS)}, s{sFHst} offen sc1")]
        def stats(P):
            for q in range(4):
                for r in range(4):
                    x=X+(P*4+q)*4+r
                    p(f"v_dot2_f32_bf16 v{208+(r&1)}, v{x}, s{sONES}, v{208+(r&1)}")
                    p(f"v_dot2_f32_bf16 v{210+(r&1)}, v{x}, v{x}, v{210+(r&1)}")
        prev=None
        for P in range(7):
            if P+NX0<7: p(xdma(P+NX0))
            elif P+NX0==7: p(s.wdma(0))
            elif P+NX0==8: p(clr)
            p(W(vm=tok_x[P]))
            p(s.stamp(f"x{P}",1))
            for q in range(4):
                tk=p(f"ds_read_b128 {v(X+(P*4+q)*4,4)}, v{204+q} offset:{P*4096}")
            if prev is not None:
                p(W(lg=prev)); stats(P-1)
            prev=tk
        s.tok_clr=clr[-1]
        p(W(lg=0))
        p(s.stamp("x_in_regs"))
        p("s_barrier")
        p(s.wdma(1))
        p(f"""
        s_mov_b32 s{MONE}, 0x10000000
        s_mov_b32 s{MONE+1}, 0x10000000
        s_mov_b32 s{MHI}, 0
        s_mov_b32 s{MHI+1}, -1
        s_cmp_lt_u32 s{sW}, 2
        """)
        for i in range(7): p(f"s_cselect_b64 s[{TA+2*i}:{TA+2*i+1}], s[{TB+2*i}:{TB+2*i+1}], s[{TA+2*i}:{TA+2*i+1}]")
        stats(6)
        p(f"""
        v_add_f32 v208, v208, v209
        v_add_f32 v210, v210, v211
        v_mov_b32 v209, v208
        v_mov_b32 v211, v210
        v_permlane32_swap_b32 v208, v209
        v_permlane32_swap_b32 v210, v211
        v_add_f32 v208, v208, v209
        v_add_f32 v210, v210, v211
        v_mul_f32 v208, {fb(1/448)}, v208
        v_mul_f32 v210, {fb(1/448)}, v210
        v_fma_f32 v210, -v208, v208, v210
        v_max_f32 v210, 0, v210
        v_add_f32 v{vV}, {fb(1e-5)}, v210
        v_rsq_f32 v{vS}, v{vV}
        v_mul_f32 v{vK0}, {fb(K0C)}, v{vS}
        v_mul_f32 v{vC2}, {fb(LOG2E)}, v{vS}
        v_mul_f32 v209, v{vS}, v{vS}
        v_mul_f32 v209, v209, v{vS}
        v_mul_f32 v{vK1}, {fb(K1C)}, v209
        ds_write_b32 v220, v{vS}
        """)
        s.lead=s.o("lead",3)
        dm=[]
        for sg in range(2,s.lead): dm+=s.wdma(sg)
        nd=sum(1 for x in dm if x.kind=="vmem"); di=0; iss=0
        for g in range(57):
            x0=X+g*2; bk=212+4*(g&1); pb=212+4*((g+1)&1)
            if g<56:
                p(f"v_dot2_f32_bf16 v{bk}, v{x0}, s{sOLO}, v208 neg_lo:[0,0,1]")
                p(f"v_dot2_f32_bf16 v{bk+1}, v{x0}, s{sOHI}, v208 neg_lo:[0,0,1]")
                p(f"v_dot2_f32_bf16 v{bk+2}, v{x0+1}, s{sOLO}, v208 neg_lo:[0,0,1]")
                p(f"v_dot2_f32_bf16 v{bk+3}, v{x0+1}, s{sOHI}, v208 neg_lo:[0,0,1]")
            if g>0:
                p(f"v_cvt_pk_bf16_f32 v{x0-2}, v{pb}, v{pb+1}"); p(f"v_cvt_pk_bf16_f32 v{x0-1}, v{pb+2}, v{pb+3}")
            while di<len(dm) and iss<nd*(g+1)/57:
                p(dm[di]); iss+=dm[di].kind=="vmem"; di+=1
        assert di==len(dm)
        p(s.stamp("centered"))
    def gelu(s, G, U, n, i0):
        L=[]
        for f in range(n//8):
            P=vP+4*(f&1)
            for h in range(2):
                r=[f*8+h*4+k for k in range(4)]
                L+=[I(f"v_mul_f32 v{vT+k}, v{G+r[k]}, v{G+r[k]}") for k in range(4)]
                L+=[I(f"v_fma_f32 v{vT+k}, v{vT+k}, v{vK1}, v{vK0}") for k in range(4)]
                L+=[I(f"v_mul_f32 v{vT+k}, v{vT+k}, v{G+r[k]}") for k in range(4)]
                L+=[I(f"v_exp_f32 v{vT+k}, v{vT+k}") for k in range(4)]
                L+=[I(f"v_mul_f32 v{G+r[k]}, v{G+r[k]}, v{U+r[k]}") for k in range(4)]
                L+=[I(f"v_fma_f32 v{vT+k}, v{vT+k}, v{vV}, v{vV}") for k in range(4)]
                L+=[I(f"v_rcp_f32 v{vT+k}, v{vT+k}") for k in range(4)]
                L+=[I(f"v_mul_f32 v{G+r[k]}, v{G+r[k]}, v{vT+k}") for k in range(4)]
                L+=[I(f"v_cvt_pk_bf16_f32 v{P+2*h+k}, v{G+r[2*k]}, v{G+r[2*k+1]}") for k in range(2)]
            i=i0+f
            if i>=6: L+=[I(f"v_min_u32 v{P+k}, -2, v{P+k}") for k in range(4)]
            st=I(f"buffer_store_dwordx4 {v(P,4)}, v{vL16}, {srd(SWS)}, s{sH+i//4} offen offset:{(i%4)*1024} sc1")
            s.tok_h[i]=st; L.append(st)
        return L
    def kv_epi(s):
        K=ACC; V=ACC+16; S=192; PK=208; PV=216; L=[]
        rd=[I(f"ds_read_b128 {v(S+4*i,4)}, v{vSTR} offset:{32*i}") for i in range(4)]
        L+=rd+[W(lg=rd[-1])]
        for h in range(4):
            r=[4*h+k for k in range(4)]
            L+=[I(f"v_mul_f32 v{K+x}, v{K+x}, v{S+x}") for x in r]
            L+=[I(f"v_min_f32 v{vT+k}, 0, v{K+r[k]}") for k in range(4)]
            L+=[I(f"v_mul_f32 v{vT+k}, {fb(LOG2E)}, v{vT+k}") for k in range(4)]
            L+=[I(f"v_exp_f32 v{vT+k}, v{vT+k}") for k in range(4)]
            L+=[I(f"v_max_f32 v{K+x}, 0, v{K+x}") for x in r]
            L+=[I(f"v_add_f32 v{K+r[k]}, v{K+r[k]}, v{vT+k}") for k in range(4)]
            L+=[I(f"v_add_f32 v{K+x}, {fb(1e-6)}, v{K+x}") for x in r]
            L+=[I(f"v_mul_f32 v{V+x}, v{V+x}, v{S+x}") for x in r]
            L+=[I(f"v_cvt_pk_bf16_f32 v{PK+2*h+k}, v{K+r[2*k]}, v{K+r[2*k+1]}") for k in range(2)]
            L+=[I(f"v_cvt_pk_bf16_f32 v{PV+2*h+k}, v{V+r[2*k]}, v{V+r[2*k+1]}") for k in range(2)]
        L+=[I(f"v_mov_b32 v{vT}, s{sONES}")]
        L+=[I(f"v_cndmask_b32 v{PV+k}, v{PV+k}, v{vT}, s[{MONE}:{MONE+1}]") for k in range(8)]
        M=[I(f"v_mfma_f32_32x32x16_bf16 {v(K,16)}, {v(PK,4)}, {v(PV,4)}, 0"),
           I(f"v_mfma_f32_32x32x16_bf16 {v(K,16)}, {v(PK+4,4)}, {v(PV+4,4)}, {v(K,16)}")]
        Wr=[I(f"ds_write_b128 v{vKXW}, {v(K+4*q,4)} offset:{q*1024}") for q in range(4)]
        rd2=[I(f"ds_read_b128 {v(S+4*q,4)}, v{vKXR} offset:{q*4096}") for q in range(4)]
        R=rd2+[W(lg=rd2[-1])]
        R+=[I(f"v_add_f32 v{S+k}, v{S+k}, v{S+4+k}") for k in range(4)]
        R+=[I(f"v_add_f32 v{S+8+k}, v{S+8+k}, v{S+12+k}") for k in range(4)]
        R+=[I(f"v_add_f32 v{S+k}, v{S+k}, v{S+8+k}") for k in range(4)]
        R+=[I(f"v_min_u32 v{S+k}, -2, v{S+k}") for k in range(4)]
        R.append(I(f"buffer_store_dwordx4 {v(S,4)}, v{vL16}, {srd(SWS)}, s{sKVst} offen sc1"))
        return L,M,Wr,R
    def kv_load_txt(s):
        return [f"buffer_load_dwordx4 {v(192+4*m,4) if m<8 else a(aKV+4*(m-8),4)}, v{vL16}, {srd(SWS)}, s{sKVld+m//4} offen offset:{(m%4)*1024} sc1" for m in range(16)]
    def kv_sum_txt(s, sentinel):
        L=[]
        if sentinel:
            L+=["v_mov_b32 v230, 0"]+[f"v_max3_u32 v230, v230, v{192+2*k}, v{193+2*k}" for k in range(16)]
        for st in (16,8,4):
            for b in range(0,st,4): L+=[f"v_add_f32 v{192+b+k}, v{192+b+k}, v{192+b+st+k}" for k in range(4)]
        h=len(L)
        for m in range(8):
            t=232+4*(m&1)
            L+=[f"v_accvgpr_read_b32 v{t+k}, a{aKV+4*m+k}" for k in range(4)]
            if sentinel: L+=[f"v_max3_u32 v230, v230, v{t+2*k}, v{t+2*k+1}" for k in range(2)]
            L+=[f"v_add_f32 v{192+4*(m&1)+k}, v{192+4*(m&1)+k}, v{t+k}" if m!=1 else f"v_mov_b32 v{196+k}, v{t+k}" for k in range(4)]
        L+=[f"v_add_f32 v{192+k}, v{192+k}, v{196+k}" for k in range(4)]
        return L,h
    def kv_reduce(s, lds):
        T,h=s.kv_sum_txt(False)
        L=[W(vm=lds[7])]+[I(t) for t in T[:h]]+[W(vm=lds[15])]+[I(t) for t in T[h:]]
        nop=I("s_nop 0")
        test=["v_add_f32 v230, v192, v193","v_add_f32 v231, v194, v195","v_cmp_u_f32 vcc, v230, v231"]
        L+=s.retry(nop, test, s.kv_load_txt(), s.kv_sum_txt(True)[0]+["v_cmp_eq_u32 vcc, -1, v230"])
        L+=[I(f"v_cvt_pk_bf16_f32 v196, v192, v193"), I(f"v_cvt_pk_bf16_f32 v197, v194, v195")]
        L+=[I(f"ds_write_b64 v{vKFW}, v[196:197]")]
        return L
    def aload_txt(s, n):
        jj,i=kmap(n)
        return [f"buffer_load_dwordx4 {s.areg(n,mb)}, v{s.vA+3*mb+i//4}, {srd(SWS)}, s{sA+jj} offen offset:{(i%4)*1024} sc1" for mb in range(2)]
    def areg(s,n,mb): return a(aA+8*n+4*mb,4) if n<24 else v(X+8*(n-24)+4*mb,4)
    def aload(s, n):
        L=[I(t) for t in s.aload_txt(n)]; s.tok_a[n]=L[-1]; return L
    def trd(s, g):
        P=g>>1; u=g&1; ps=P//28; sg=P//14; pl=P%14; slot=sg%5
        dst=(P%4)*8+u*4; L=[]
        for t in range(2):
            if ps==4 and u==0:
                L.append(I(f"ds_read_b64_tr_b16 {a(dst+2*t,2)}, v{vMX+t} offset:{(slot-3)*SLOT+(pl>>1)*1024+(pl&1)*512}"))
            else:
                wv=(u+2*(pl&1)) if ps<4 else 2+(pl&1)
                off=(slot&1)*SLOT+wv*7168+(pl>>1)*1024+t*256
                L.append(I(f"ds_read_b64_tr_b16 {a(dst+2*t,2)}, v{vTR+slot//2} offset:{off}"))
        return L
    def flagst(s, val, tok):
        return [W(vm=tok), I(f"v_mov_b32 v{vONE}, {val}"), I(f"buffer_store_dword v{vONE}, v{vZ}, {srd(SWS)}, s{sFHst} offen sc1")]
    def poll(s, val):
        t=f"buffer_load_dword v{vPOLL}, v{vPA31}, {srd(SWS)}, s{sFHld} offen sc1"
        ld=I(t); return ld, s.retry(W(vm=ld), [f"v_cmp_gt_u32 vcc, {val}, v{vPOLL}"], [t])
    def phase1(s):
        p=s.p; s.tok_h={}; s.tok_a={}; s.vA=198+0
        o=s.o; segs=[]
        def seg(g0,g1,L): segs.append([g0,g1,list(L),0])
        for sg in range(s.lead,10):
            k=sg-s.lead; seg(max(0,Bg(k)+1),Bg(k)+25,s.wdma(sg))
        e1,eM,eW,eR=s.kv_epi()
        kb=o("kvbar",4); ke=Bg(kb)
        seg(58,ke-12,e1); seg(ke-11,ke-10,eM[:1]); seg(ke-9,ke-8,eM[1:]); seg(ke-4,ke-1,eW); seg(ke+1,ke+8,eR)
        seg(116,166,s.gelu(ACC+32,ACC+48,16,0))
        seg(172,222,s.gelu(ACC,ACC+16,16,2))
        seg(228,o("g3end",272),s.gelu(ACC+32,ACC+48,16,4))
        cld,cchk=s.spin(f"buffer_load_dword v{vPOLL+1}, v{vL4}, {srd(SD)}, 0 offen sc1", f"v{vPOLL+1}", 4)
        kl=[I(t) for t in s.kv_load_txt()]
        gk=o("gkv",200)
        seg(gk-30,gk-29,[cld]); seg(gk-1,gk,cchk); seg(gk,gk+12,kl); seg(o("gred",250),274,s.kv_reduce(kl))
        seg(o("gfa",216),o("gfa",216)+1,s.flagst(1,s.tok_h[1]))
        seg(o("gfb",272),o("gfb",272)+1,s.flagst(2,s.tok_h[3]))
        kB=10-s.lead
        seg(Bg(kB)-3,Bg(kB),lines(f"""
        s_mov_b32 s{SWD}, s16
        s_and_b32 s{SWD+1}, s17, 0xffff
        s_mul_i32 s{SWD+2}, s{sV2}, {1792*896}
        s_mov_b32 s{SWO}, s8
        s_and_b32 s{SWO+1}, s9, 0xffff
        s_mul_i32 s{SWO+2}, s{sV2}, {448*896}
        s_mov_b32 s{SOUT}, s18
        s_and_b32 s{SOUT+1}, s19, 0xffff
        s_mov_b32 s{SOUT+2}, {2048*896}
        s_lshl_b32 s{sWB7}, s{sW}, 11
        v_lshrrev_b32 v232, 7, v{vL16}
        v_bfe_u32 v233, v{vL16}, 8, 1
        v_lshlrev_b32 v233, 6, v233
        v_and_b32 v234, 0x70, v{vL16}
        v_xor_b32 v233, v233, v234
        v_mul_u32_u24 v232, 896, v232
        v_add3_u32 v{vB}, v232, v233, s{sNB}
        v_add_u32 v{vB2}, 6144, v{vB}
        """))
        lim={6:3,7:7,8:10,9:14}; n0=0
        for k in range(kB,10):
            n1=min(lim[k], n0+o("bper",4)); L=[]
            for n in range(n0,n1): L+=s.bdma(n)
            seg(Bg(k)+1,Bg(k)+25,L); n0=n1
        s.nb0=n0
        p(W(vm=[s.tok_w[0],s.tok_clr])); p("s_barrier")
        p(f"s_cmp_lg_u32 s{sW}, 0\ns_cbranch_scc1 L_nocnt\ns_mov_b64 exec, 1")
        p(I(f"buffer_atomic_add v{vONE}, off, {srd(SD)}, s{sT2} sc1", count=False))
        p("s_mov_b64 exec, -1\nL_nocnt:")
        p(s.stamp("B0",1))
        rd={}
        for g in range(4):
            rd[g]=s.trd(g); p(rd[g])
        for g in range(280):
            P=g>>1; u=g&1; ps=P//28; pos=P%28
            if u==0: p(W(lg=rd[g+1][-1]))
            D=ACC+32*(ps&1)+16*u; fr=a((P%4)*8+u*4,4); xr=v(X+4*pos,4); C=v(D,16) if pos else "0"
            if ps==0: p(f"v_mfma_f32_32x32x16_bf16 {v(D,16)}, {xr}, {fr}, {C}")
            else: p(f"v_mfma_f32_32x32x16_bf16 {v(D,16)}, {fr}, {xr}, {C}")
            if (g+4)%28==0:
                k=(g+4)//28
                needlg = s.lead>3 or k==kb or k>=kB
                if k<10: p(W(vm=s.tok_w[k], lg=0) if needlg else W(vm=s.tok_w[k]))
                else: p(W(lg=0))
                p("s_barrier")
                p(s.stamp(f"B{k}", k%2))
            if g+4<280:
                rd[g+4]=s.trd(g+4); p(rd[g+4])
            for sgm in segs:
                g0,g1,L,done=sgm
                if g<g0 or done>=len(L): continue
                tot=sum(x.cost for x in L); tgt=tot*(g-g0+1)/(g1-g0) if g<g1-1 else tot+1
                acc=sum(x.cost for x in L[:done])
                while done<len(L) and (acc<tgt or L[done].kind=="label"):
                    p(L[done]); acc+=L[done].cost; done+=1
                sgm[3]=done
        assert all(x[3]==len(x[2]) for x in segs)
        p(s.stamp("p1_mfma_done"))
        Q=ACC+16; PQ=208; N=ACC+32; PO=216; vA=s.vA
        p(f"v_lshlrev_b32 v232, 1, v{vL16}"); p(f"v_add_u32 v232, {KVF}, v232")
        r0=p(f"ds_read_b128 {a(aKF,4)}, v232"); r1=p(f"ds_read_b128 {a(aKF+4,4)}, v232 offset:16")
        pl,pc=s.poll(1); p(pl)
        p(f"""
        v_mov_b32 v{vA}, v{vL16}
        v_add_u32 v{vA+1}, 4096, v{vL16}
        v_add_u32 v{vA+2}, 8192, v{vL16}
        v_add_u32 v{vA+3}, {16*9216}, v{vL16}
        v_add_u32 v{vA+4}, {16*9216+4096}, v{vL16}
        v_add_u32 v{vA+5}, {16*9216+8192}, v{vL16}
        """)
        for h in range(4):
            r=[4*h+k for k in range(4)]
            p([I(f"v_mul_f32 v{vT+k}, v{Q+r[k]}, v{vC2}") for k in range(4)])
            p([I(f"v_min_f32 v{vT+k}, 0, v{vT+k}") for k in range(4)])
            p([I(f"v_exp_f32 v{vT+k}, v{vT+k}") for k in range(4)])
            p([I(f"v_max_f32 v{Q+x}, 0, v{Q+x}") for x in r])
            p([I(f"v_fma_f32 v{Q+r[k]}, v{Q+r[k]}, v{vS}, v{vT+k}") for k in range(4)])
            p([I(f"v_add_f32 v{Q+x}, {fb(1e-6)}, v{Q+x}") for x in r])
            p([I(f"v_cvt_pk_bf16_f32 v{PQ+2*h+k}, v{Q+r[2*k]}, v{Q+r[2*k+1]}") for k in range(2)])
        p([I(f"v_cndmask_b32 v{PQ+6+k}, v{PQ+6+k}, 0, s[{MHI}:{MHI+1}]") for k in range(2)])
        p(W(lg=r1))
        p(f"v_mfma_f32_32x32x16_bf16 {v(N,16)}, {a(aKF,4)}, {v(PQ,4)}, 0")
        p(f"v_mfma_f32_32x32x16_bf16 {v(N,16)}, {a(aKF+4,4)}, {v(PQ+4,4)}, {v(N,16)}")
        p(s.gelu(ACC,ACC+8,8,6))
        p(f"""
        v_mov_b32 v232, v{N+12}
        v_mov_b32 v233, v{N+12}
        v_permlane32_swap_b32 v232, v233
        v_add_f32 v233, {fb(1e-6)}, v233
        v_rcp_f32 v233, v233
        """)
        p([I(f"v_mul_f32 v{N+k}, v{N+k}, v233") for k in range(16)])
        p([I(f"v_cvt_pk_bf16_f32 v{PO+k}, v{N+2*k}, v{N+2*k+1}") for k in range(8)])
        p([I(f"v_cndmask_b32 v{PO+6+k}, v{PO+6+k}, 0, s[{MHI}:{MHI+1}]") for k in range(2)])
        p([I(f"v_min_u32 v{PO+k}, -2, v{PO+k}") for k in range(8)])
        p(f"buffer_store_dwordx4 {v(PO,4)}, v{vL16}, {srd(SWS)}, s{sH+1} offen offset:3072 sc1")
        p(f"buffer_store_dwordx4 {v(PO+4,4)}, v{vL16}, {srd(SWS)}, s{sH+2} offen sc1")
        p(s.stamp("tail_done"))
        p(s.flagst(3,s.tok_h[5]))
        p(f"s_cmp_eq_u32 s{sV2}, 0"); p("s_cbranch_scc1 L_fin")
        s.pollA=pc
    def phase2(s):
        p=s.p; o=s.o
        vBT=192; vXR=204
        p(s.pollA); p(s.stamp("flagA"))
        for n in range(8): p(s.aload(n))
        plB,pcB=s.poll(2); p(plB)
        for n in range(s.nb0,NB): p(s.bdma(n))
        p(f"""
        v_lshrrev_b32 v232, 9, v{vL16}
        v_bfe_u32 v233, v{vL16}, 6, 2
        v_lshl_add_u32 v232, v232, 2, v233
        v_lshlrev_b32 v232, 7, v232
        v_bfe_u32 v233, v{vL16}, 7, 1
        v_lshl_add_u32 v232, v233, 6, v232
        v_bfe_u32 v233, v{vL16}, 8, 1
        v_lshl_add_u32 v232, v233, 5, v232
        v_bfe_u32 v233, v{vL16}, 4, 2
        v_lshl_add_u32 v232, v233, 3, v232
        v_add_u32 v{vBT}, s{sWB7}, v232
        v_xor_b32 v{vBT+1}, 64, v{vBT}
        v_add_u32 v{vBT+2}, 0x10000, v{vBT}
        v_add_u32 v{vBT+3}, 0x10000, v{vBT+1}
        v_add_u32 v{vBT+4}, 0x20000, v{vBT}
        v_add_u32 v{vBT+5}, 0x20000, v{vBT+1}
        v_lshrrev_b32 v232, 6, v{vL16}
        s_lshl_b32 s{sT}, s{sW}, 4
        v_add_u32 v232, s{sT}, v232
        v_bfe_u32 v233, v{vL16}, 4, 2
        v_mul_u32_u24 v234, 272, v232
        v_lshl_add_u32 v214, v233, 6, v234
        v_mul_u32_u24 v232, 896, v232
        v_lshl_add_u32 v212, v233, 5, v232
        """)
        p(pcB); p(s.stamp("flagB"))
        for n in range(8,16): p(s.aload(n))
        plC,pcC=s.poll(3); p(plC)
        def btr(n,q):
            nbk,t=q>>1,q&1; e=n%NB
            return I(f"ds_read_b64_tr_b16 {a((n%4)*8+nbk*4+2*t,2)}, v{vBT+2*(e//8)+nbk} offset:{(e%8)*8192+t*1024}")
        rb={}
        p(W(vm=s.tok_b[0]))
        for q in range(4): rb[0]=p(btr(0,q))
        nC=o("nC",4); nD=o("nD",10)
        for n in range(36):
            if n==nC:
                p(pcC); p(s.stamp("flagC"))
            if n>=24 and (n-24)%3==0:
                regs=[X+8*(m-24)+k for m in range(n,n+3) for k in range(8)]
                test=[f"v_max3_u32 v230, v{regs[0]}, v{regs[1]}, v{regs[2]}", f"v_max3_u32 v231, v{regs[3]}, v{regs[4]}, v{regs[5]}"]
                for k in range(6,24,2): test.append(f"v_max3_u32 v{230+(k//2)%2}, v{230+(k//2)%2}, v{regs[k]}, v{regs[k+1]}")
                test+=["v_max_u32 v230, v230, v231","v_cmp_eq_u32 vcc, -1, v230"]
                p(s.retry(W(vm=s.tok_a[n+2]), test, [t for m in range(n,n+3) for t in s.aload_txt(m)]))
                if n==24: p(s.stamp("D0_ok"))
                p(W(lg=rb[n]))
            else:
                p(W(vm=s.tok_a[n], lg=rb[n]) if n<24 else W(lg=rb[n]))
            for q in range(4):
                nbk,mb=q>>1,q&1; D=ACC+16*q
                p(f"v_mfma_f32_32x32x16_bf16 {v(D,16)}, {a((n%4)*8+nbk*4,4)}, {s.areg(n,mb)}, {v(D,16) if n else 0}")
                if n+1<36:
                    if q==0:
                        p(W(vm=s.tok_b[n+1])); p(btr(n+1,0)); p(btr(n+1,1))
                    if q==1:
                        p(btr(n+1,2)); rb[n+1]=p(btr(n+1,3))
                if q==2 and n+NB<36: p(s.bdma(n+NB))
                if q==3:
                    if nC<=n<nC+4: p(s.aload(16+2*(n-nC))); p(s.aload(17+2*(n-nC)))
                    if nD<=n<nD+6: p(s.aload(24+2*(n-nD))); p(s.aload(25+2*(n-nD)))
                    if n==20:
                        xr0=p(f"buffer_load_dwordx4 {v(vXR,4)}, v212, {srd(SX)}, s{sOUT} offen")
                        xr1=p(f"buffer_load_dwordx4 {v(vXR+4,4)}, v212, {srd(SX)}, s{sOUT} offen offset:16")
            if n in (7,15,23): p(s.stamp(f"p2_n{n}",1))
        p(s.stamp("p2_mfma_done"))
        p("s_barrier")
        p(f"""
        v_bfe_u32 v232, v{vL16}, 4, 5
        v_mul_u32_u24 v232, 272, v232
        v_lshrrev_b32 v233, 9, v{vL16}
        v_lshl_add_u32 v232, v233, 4, v232
        s_mul_i32 s{sT}, s{sW}, 17408
        v_add_u32 v232, s{sT}, v232
        """)
        for q in range(4):
            nbk,mb=q>>1,q&1
            for i in range(4):
                p(f"ds_write_b128 v232, {v(ACC+16*q+4*i,4)} offset:{mb*32*272+nbk*128+i*32}")
        p(W(lg=0)); p("s_barrier")
        rr=[]
        for w in range(4):
            for c in range(4): rr.append(p(f"ds_read_b128 {v(16+16*w+4*c,4)}, v214 offset:{w*17408+c*16}"))
        p(W(vm=xr1))
        for k in range(8):
            p(f"v_lshlrev_b32 v{80+2*k}, 16, v{vXR+k}"); p(f"v_and_b32 v{81+2*k}, 0xffff0000, v{vXR+k}")
        p(W(lg=rr[7]))
        for k in range(8): p(f"v_pk_add_f32 {v(16+2*k,2)}, {v(16+2*k,2)}, {v(32+2*k,2)}")
        p(W(lg=rr[15]))
        for k in range(8): p(f"v_pk_add_f32 {v(48+2*k,2)}, {v(48+2*k,2)}, {v(64+2*k,2)}")
        for k in range(8): p(f"v_pk_add_f32 {v(16+2*k,2)}, {v(16+2*k,2)}, {v(80+2*k,2)}")
        for k in range(8): p(f"v_pk_add_f32 {v(16+2*k,2)}, {v(16+2*k,2)}, {v(48+2*k,2)}")
        for k in range(8): p(f"v_cvt_pk_bf16_f32 v{96+k}, v{16+2*k}, v{17+2*k}")
        p(f"buffer_store_dwordx4 v[96:99], v212, {srd(SOUT)}, s{sOUT} offen sc1")
        p(f"buffer_store_dwordx4 v[100:103], v212, {srd(SOUT)}, s{sOUT} offen offset:16 sc1")
        p("L_fin:")
        if s.stamps:
            p(W(vm=0)); p(s.stamp("end"))
            p(f"s_lshl_b32 s{sT}, s{sMI}, 4\ns_add_u32 s{sT}, s{sT}, s{sJ}\ns_lshl_b32 s{sT}, s{sT}, 2\ns_add_u32 s{sT}, s{sT}, s{sW}\ns_lshl_b32 s{sT}, s{sT}, 8\ns_add_u32 s{sT}, s{sT}, {WS_ST}")
            p(f"buffer_store_dword v0, v{vL4}, {srd(SWS)}, s{sT} offen")
        if s.o("fixspan",0):
            p(W(vm=0)); p(f"v_readfirstlane_b32 s{sT}, v0\nL_fix:\ns_memrealtime s[{sSTMP}:{sSTMP+1}]\ns_waitcnt lgkmcnt(0)\ns_sub_u32 s{sSTMP}, s{sSTMP}, s{sT}\ns_cmp_lt_u32 s{sSTMP}, {s.opt['fixspan']}\ns_cbranch_scc1 L_fix")
        p("L_end:"); p("s_endpgm")
    def build(s):
        s.prologue(); s.phase1(); s.phase2()
        s.p.add(s.ool); s.p("L_codeend:")
        for pat in s.o("drop",[]):
            for x in s.p.L:
                if pat in x.text: x.text="; dropped"; x.kind="dir"; x.R=[]; x.W=[]; x.op=""; x.lds=False
        for a_,b_ in s.o("subst",[]):
            for x in s.p.L:
                if x.kind=="vmem": x.text=x.text.replace(a_,b_)
        s.p.resolve()
        if s.o("nocomp",0):
            fl=("v_mul_f32","v_fma_f32","v_add_f32","v_min_f32","v_max_f32","v_cvt_pk","v_pk_","v_accvgpr","v_max3","v_min_u32","v_max_u32","v_permlane")
            keep=[]
            for i,x in enumerate(s.p.L):
                if x.kind in("mfma","ds","dot","trans") or x.op.startswith(fl): continue
                if x.op=="s_cbranch_vccnz" and (s.p.L[i-1].op.startswith(("v_cmp_u","v_cmp_eq"))): continue
                keep.append(x)
            s.p.L=keep
        if s.o("nomem",0):
            s.p.L=[x for x in s.p.L if not ((x.kind=="vmem" and "v0, v" not in x.text) or x.op=="s_cbranch_vccnz")]

        s.p.check(fix=True); s.pads=s.p.pads
        errs=s.p.check()
        hdr=f"""; Fused LayerNorm + linear attention + GEGLU FFN + residual, one persistent launch (generated by dev/gen.py)
; @launch grid=(256,1,1) block=(256,1,1) lds={LDS}
.amdgcn_target "amdgcn-amd-amdhsa--gfx950"
.text
.globl {KN}
.p2align 8
.type {KN},@function
{KN}:
"""
        ftr=f""".section .rodata,"a"
.p2align 6
.amdhsa_kernel {KN}
  .amdhsa_next_free_vgpr 512
  .amdhsa_next_free_sgpr 102
  .amdhsa_accum_offset 256
  .amdhsa_group_segment_fixed_size 0
  .amdhsa_kernarg_size 80
  .amdhsa_user_sgpr_count 2
  .amdhsa_user_sgpr_kernarg_segment_ptr 1
  .amdhsa_system_sgpr_workgroup_id_x 1
.end_amdhsa_kernel
"""
        return hdr+s.p.text()+ftr, errs
if __name__=="__main__":
    import argparse
    ap=argparse.ArgumentParser(); ap.add_argument("-o",default="k.s"); ap.add_argument("--stamps",action="store_true"); ap.add_argument("-v",action="store_true"); ap.add_argument("--opt",default="{}")
    ar=ap.parse_args()
    g=Gen(stamps=ar.stamps, **eval(ar.opt)); txt,errs=g.build()
    for e in errs: print("ERR",e)
    if ar.v:
        for x in g.pads: print("pad",x)
    open(ar.o,"w").write(txt)
    print("instrs",len(g.p.L),"errors",len(errs))
    from build import build
    build(ar.o)
```

```python
import sys, struct
from emit import Prog, I, W, Ins
KN = "parallel_sum__linear_attn_block__geglu_ffn__prompt_kernel"
def fb(x): return "0x%08x" % struct.unpack("<I", struct.pack("<f", x))[0]
SLOT=28672; KVX=143360; STAT=159744; KVF=160256; LDS=163840
WS_KVP=0x900000; WS_FL=0xA00000; WS_ST=0xB00000; WS_SZ=0xC00000
LOG2E=1.4426950408889634
K0C=-2*0.7978845608028654*LOG2E; K1C=K0C*0.044715
sFHst,sFHld,sOUT=0,1,3
sA=4; sBd=12; sBo=20
sW,sT=10,11
SX,SW0,SW1,SW4,SWS,SD=24,28,32,36,40,44
SWD,SWO,SOUT=SW0,SW1,SW4
TA,TB=48,62
sMI,sJ,sR,sWB7=76,77,78,79
sH=80; sKVst=83; sKVld=84; sMB,sNB,sV2=88,89,90
sT2=91; MONE=92; MHI=94; sSTMP=96; sOLO,sOHI,sONES,sSPIN=98,99,100,101
sXM,sXC,sXR,sXT=MONE,MONE+1,MHI,MHI+1
def srd(n): return f"s[{n}:{n+3}]"
vL16,vW0,vW1,vW4=1,2,3,4
vTR=5; vMX=8; vK0,vK1,vV,vS,vC2=10,11,12,13,14; vB2=15; vB=2
X=16; ACC=128
vZ,vONE,vPOLL,vL4,vPA31=224,225,226,228,229
vSTR,vKXW,vKXR,vKFW=240,241,242,243
vT=244; vP=248
NB=17
aKV=32; aKF=32; aA=64
def v(a,n=1): return f"v{a}" if n==1 else f"v[{a}:{a+n-1}]"
def a(x,n=1): return f"a{x}" if n==1 else f"a[{x}:{x+n-1}]"
def lines(t): return [I(l.strip()) for l in t.strip().split("\n") if l.strip()]
def kmap(n):
    if n<24: return (n%8)//2, 2*(n//8)+n%2
    return (n-24)//3, 6+(n-24)%3
def Bg(k): return 28*k-4

class Gen:
    def __init__(s, stamps=False, **opt):
        s.p=Prog(); s.ool=[]; s.stamps=stamps; s.stnames=[]; s.opt=opt; s.lbl=0
    def o(s,k,d): return s.opt.get(k,d)
    def stamp(s, name="", fine=False):
        if not s.stamps or (fine and not s.o("fine",0)): return []
        k=len(s.stnames); s.stnames.append(name)
        return [I(f"s_memtime s[{sSTMP}:{sSTMP+1}]"), I("s_waitcnt lgkmcnt(0)"), I(f"v_writelane_b32 v0, s{sSTMP}, {k}")]
    def retry(s, fast_wait, test, reload, retest=None):
        n=s.lbl; s.lbl+=1
        chk=[fast_wait]+[I(t) for t in test]+[I(f"s_cbranch_vccnz L_spin{n}"), I(f"L_ok{n}:")]
        s.ool += [I(f"L_spin{n}:"), I(f"s_mov_b32 s{sSPIN}, 0x20000"), I(f"L_spinl{n}:"), I("s_waitcnt vmcnt(0)")]
        s.ool += [I(t,count=False) for t in reload]+[I("s_waitcnt vmcnt(0)")]+[I(t) for t in (retest or test)]
        s.ool += [I(f"s_cbranch_vccz L_ok{n}"), I(f"s_sub_u32 s{sSPIN}, s{sSPIN}, 1"), I(f"s_cmp_lg_u32 s{sSPIN}, 0"),
                  I(f"s_cbranch_scc1 L_spinl{n}"), I(f"s_branch L_ok{n}")]
        return chk
    def spin(s, load_text, reg, val):
        ld=I(load_text)
        return ld, s.retry(W(vm=ld), [f"v_cmp_ne_u32 vcc, {val}, {reg}"], [load_text])
    def wdma(s, sg):
        ps=sg>>1; hf=sg&1; L=[]
        sr={0:SW0,4:SW4}.get(ps,SW1); vo={0:vW0,4:vW4}.get(ps,vW1); tb=TB if ps in(1,2,3) else TA
        if ps in (2,3) and hf==0: L.append(I(f"v_add_u32 v{vW1}, 64, v{vW1}"))
        for i in range(7):
            if i in (0,4): L.append(I(f"s_add_u32 m0, s{sWB7}, {(sg%5)*SLOT+(4096 if i==4 else 0)}"))
            L.append(I(f"buffer_load_dwordx4 v{vo}, {srd(sr)}, s{tb+7*hf+i} offen offset:{(i%4)*1024} lds"))
        s.tok_w[sg]=L[-1]
        return L
    def bdma(s, n):
        jj,i=kmap(n)
        base,sr,k=(sBd+jj,SWD,i) if i<7 else (sBo+jj,SWO,i-7)
        L=[I(f"s_add_u32 m0, s{sWB7}, {(n%NB)*8192}"), I(f"s_add_u32 s{sT}, s{base}, {k*14336}"),
           I(f"buffer_load_dwordx4 v{vB}, {srd(sr)}, s{sT} offen lds"),
           I(f"buffer_load_dwordx4 v{vB2}, {srd(sr)}, s{sT} offen offset:1024 lds")]
        s.tok_b[n]=L[-1]
        return L
    def prologue(s):
        p=s.p; s.tok_w={}; s.tok_b={}
        if s.o("fixspan",0): p(f"s_memrealtime s[{sSTMP}:{sSTMP+1}]")
        m512=s.o("m512",0)
        p(f"""
        s_cmp_ge_u32 s2, 256
        s_cbranch_scc1 L_end
        s_load_dwordx4 s[4:7], s[0:1], 0
        s_load_dwordx4 s[20:23], s[0:1], 64
        s_load_dwordx2 s[8:9], s[0:1], 16
        s_load_dwordx4 s[12:15], s[0:1], 32
        s_load_dwordx4 s[16:19], s[0:1], 48
        s_getpc_b64 s[{SD}:{SD+1}]
        L_pc:
        v_lshrrev_b32 v192, 6, v0
        v_and_b32 v193, 63, v0
        v_readfirstlane_b32 s{sW}, v192
        s_and_b32 s{SD+1}, s{SD+1}, 0xffff
        s_mov_b32 s{SD+2}, L_codeend-L_pc
        s_mov_b32 s{SD+3}, 0x20000
        v_lshlrev_b32 v{vL16}, 4, v193
        s_and_b32 s{sT}, s2, 7
        s_lshr_b32 s{sT2}, s2, 3
        """)
        if not m512: p(f"""
        s_and_b32 s{sMI}, s{sT}, 1
        s_lshl_b32 s{sMI}, s{sMI}, 3
        s_and_b32 s{sR}, s{sT2}, 7
        s_add_u32 s{sMI}, s{sMI}, s{sR}
        s_lshr_b32 s{sJ}, s{sT}, 1
        s_lshl_b32 s{sJ}, s{sJ}, 2
        s_lshr_b32 s3, s{sT2}, 3
        s_add_u32 s{sJ}, s{sJ}, s3
        s_lshl_b32 s3, s3, 1
        s_add_u32 s{sR}, s{sR}, s3
        """)
        else: p(f"""
        s_and_b32 s{sMI}, s{sT}, 3
        s_lshl_b32 s{sMI}, s{sMI}, 2
        s_and_b32 s{sR}, s{sT2}, 3
        s_add_u32 s{sMI}, s{sMI}, s{sR}
        s_lshr_b32 s{sJ}, s{sT}, 2
        s_lshl_b32 s{sJ}, s{sJ}, 3
        s_lshr_b32 s3, s{sT2}, 2
        s_add_u32 s{sJ}, s{sJ}, s3
        s_lshl_b32 s{sR}, s{sR}, 1
        s_add_u32 s{sR}, s{sR}, s3
        """)
        p(f"""
        s_cmp_ge_u32 s{sR}, 7
        s_cselect_b32 s3, 7, 0
        s_sub_u32 s{sR}, s{sR}, s3
        v_lshrrev_b32 v222, 3, v193
        v_mul_u32_u24 v222, 896, v222
        v_lshrrev_b32 v196, 4, v193
        v_and_b32 v197, 7, v193
        v_xor_b32 v196, v196, v197
        v_lshl_add_u32 v222, v196, 4, v222
        v_xor_b32 v223, 64, v222
        s_lshl_b32 s{sH}, s{sMI}, 2
        s_add_u32 s{sH}, s{sH}, s{sW}
        s_mul_i32 s{sXR}, s{sH}, {32*896}
        s_add_u32 s{sXM}, s{sW}, 1
        s_mul_i32 s{sXM}, s{sXM}, {SLOT}
        s_mov_b32 s{sXC}, s{sR}
        s_mov_b32 s{SX+2}, {2048*896}
        s_mov_b32 s{SX+3}, 0x20000
        s_waitcnt lgkmcnt(0)
        s_mov_b32 s{SX}, s4
        s_and_b32 s{SX+1}, s5, 0xffff
        """)
        if s.stamps:
            p("v_mov_b32 v0, 0"); p(s.stamp("start"))
            if s.o("dbgwg",None) is not None: p(f"s_memrealtime s[{sSTMP}:{sSTMP+1}]\ns_waitcnt lgkmcnt(0)\nv_writelane_b32 v0, s{sSTMP}, 63")
        if s.o("fixspan",0): p(f"v_mov_b32 v0, s{sSTMP}")
        tok_x=[]
        def xdma(P):
            L=[I(f"s_add_u32 m0, s{sXM}, {P*4096}"), I(f"s_lshl_b32 s{sXT}, s{sXC}, 7"), I(f"s_add_u32 s{sXT}, s{sXT}, s{sXR}")]
            for t in range(4):
                tk=I(f"buffer_load_dwordx4 v{222+(t&1)}, {srd(SX)}, s{sXT} offen offset:{t*1024} lds"); L.append(tk)
                if t<3: L.append(I(f"s_add_u32 s{sXT}, s{sXT}, 6144"))
            tok_x.append(tk)
            if P<6: L+=[I(f"s_add_u32 s{sXC}, s{sXC}, 1"), I(f"s_cmp_eq_u32 s{sXC}, 7"), I(f"s_cselect_b32 s{sXC}, 0, s{sXC}")]
            return L
        NX0=s.o("nx0",3)
        for P in range(NX0): p(xdma(P))
        p(f"""
        s_lshl_b32 s3, s{sT2}, 10
        v_cmp_gt_u32 vcc, 4, v193
        v_lshlrev_b32 v194, 6, v193
        v_lshl_add_u32 v194, v192, 8, v194
        v_bfrev_b32 v195, 2
        v_cndmask_b32 v194, v195, v194, vcc
        buffer_load_dword v255, v194, {srd(SD)}, s3 offen
        """)
        p(s.stamp("x_first_issued",1))
        p(f"""
        s_mul_i32 s{sMB}, s{sT2}, 37
        s_lshr_b32 s{sMB}, s{sMB}, 8
        s_mul_i32 s3, s{sMB}, 7
        s_sub_u32 s{sNB}, s{sT2}, s3
        s_cmp_lt_u32 s{sT2}, 28
        s_cselect_b32 s{sV2}, 1, 0
        s_lshl_b32 s{sT}, s{sT}, 2
        s_add_u32 s{sMB}, s{sMB}, s{sT}
        s_mul_i32 s{sWB7}, s{sW}, 7168
        s_lshl_b32 s{sR}, s{sR}, 2
        s_sub_u32 s{SW0}, s6, 3072
        s_subb_u32 s{SW0+1}, s7, 0
        s_and_b32 s{SW0+1}, s{SW0+1}, 0xffff
        s_mov_b32 s{SW0+2}, {448*2688+3072}
        s_mov_b32 s{SW0+3}, 0x20000
        s_mov_b32 s4, s{sR}
        """)
        for i in range(14):
            bias=3072-1024*((i%7)%4)
            p(f"s_mul_i32 s{TA+i}, s4, {16*2688}"); p(f"s_mul_i32 s{TB+i}, s4, {16*3584}")
            if bias:
                p(f"s_add_u32 s{TA+i}, s{TA+i}, {bias}"); p(f"s_add_u32 s{TB+i}, s{TB+i}, {bias}")
            if i<13:
                p("s_add_u32 s4, s4, 2"); p("s_cmp_eq_u32 s4, 28"); p("s_cselect_b32 s4, 0, s4")
        p(f"""
        s_lshr_b32 s4, s{sW}, 1
        s_lshl_b32 s4, s4, 4
        s_and_b32 s5, s{sW}, 1
        v_lshrrev_b32 v197, 2, v193
        v_and_b32 v198, 3, v193
        v_lshlrev_b32 v198, 4, v198
        v_add_u32 v199, s4, v197
        s_mul_i32 s3, s5, 896
        s_mul_i32 s4, s{sJ}, 56
        s_add_u32 s3, s3, s4
        s_add_u32 s3, s3, 896
        v_mul_u32_u24 v{vW0}, 2688, v199
        v_add3_u32 v{vW0}, v{vW0}, v198, s3
        s_mul_i32 s3, s{sJ}, 224
        v_mul_u32_u24 v{vW1}, 3584, v199
        v_add3_u32 v{vW1}, v{vW1}, v198, s3
        s_cmp_eq_u32 s5, 0
        s_cselect_b32 s{SW1}, s12, s14
        s_cselect_b32 s{SW1+1}, s13, s15
        s_sub_u32 s{SW1}, s{SW1}, 3072
        s_subb_u32 s{SW1+1}, s{SW1+1}, 0
        s_and_b32 s{SW1+1}, s{SW1+1}, 0xffff
        s_mov_b32 s{SW1+2}, {448*3584+3072}
        s_mov_b32 s{SW1+3}, 0x20000
        s_lshl_b32 s6, s5, 4
        v_add_u32 v199, s6, v197
        v_mul_u32_u24 v199, 2688, v199
        v_add3_u32 v199, v199, v198, s4
        s_lshl_b32 s6, s5, 2
        v_lshrrev_b32 v197, 1, v193
        v_xor_b32 v197, s6, v197
        v_mul_u32_u24 v197, 3584, v197
        v_and_b32 v198, 1, v193
        v_lshlrev_b32 v198, 4, v198
        s_add_u32 s3, s3, 192
        v_add3_u32 v197, v197, v198, s3
        s_cmp_lt_u32 s{sW}, 2
        s_cselect_b32 s{SW4}, s{SW1}, s{SW0}
        s_cselect_b32 s{SW4+1}, s{SW1+1}, s{SW0+1}
        s_cselect_b32 s{SW4+2}, s{SW1+2}, s{SW0+2}
        s_cselect_b64 vcc, -1, 0
        s_mov_b32 s{SW4+3}, 0x20000
        s_mov_b32 s{SWS}, s22
        s_and_b32 s{SWS+1}, s23, 0xffff
        s_mov_b32 s{SWS+2}, {WS_SZ}
        s_mov_b32 s{SWS+3}, 0x20000
        v_cndmask_b32 v{vW4}, v199, v197, vcc
        s_mov_b32 s{SD}, s20
        s_and_b32 s{SD+1}, s21, 0xffff
        s_mov_b32 s{SD+2}, 256
        s_mov_b32 s{SD+3}, 0x20000
        s_lshl_b32 s{sFHst}, s{sH}, 4
        s_add_u32 s{sFHst}, s{sFHst}, s{sJ}
        s_mul_i32 s{sH}, s{sFHst}, 9216
        s_lshl_b32 s{sFHst}, s{sFHst}, 2
        s_add_u32 s{sFHst}, s{sFHst}, {WS_FL}
        s_lshl_b32 s{sFHld}, s{sMB}, 7
        s_add_u32 s{sFHld}, s{sFHld}, {WS_FL}
        s_add_u32 s{sH+1}, s{sH}, 4096
        s_add_u32 s{sH+2}, s{sH}, 8192
        s_lshl_b32 s3, s{sJ}, 2
        s_add_u32 s3, s3, s{sW}
        s_lshl_b32 s3, s3, 14
        s_add_u32 s{sKVld}, s3, {WS_KVP}
        s_add_u32 s{sKVld+1}, s{sKVld}, 4096
        s_add_u32 s{sKVld+2}, s{sKVld}, 8192
        s_add_u32 s{sKVld+3}, s{sKVld}, 12288
        s_lshl_b32 s3, s{sMI}, 10
        s_add_u32 s{sKVst}, s{sKVld}, s3
        s_mov_b32 s{sOLO}, 0x3f80
        s_mov_b32 s{sOHI}, 0x3f800000
        s_mov_b32 s{sONES}, 0x3f803f80
        s_add_u32 s{sT}, s{sMB}, s{sNB}
        s_lshl_b32 s{sT2}, s{sW}, 2
        """)
        for jj in range(4):
            p(f"""
            s_add_u32 s3, s{sT}, {jj}
            s_and_b32 s3, s3, 3
            s_add_u32 s3, s3, s{sT2}
            s_mul_i32 s{sBd+jj}, s3, {112*896}
            s_mul_i32 s{sBo+jj}, s3, {28*896}
            s_lshl_b32 s{sA+jj}, s{sMB}, 5
            s_add_u32 s{sA+jj}, s{sA+jj}, s3
            s_mul_i32 s{sA+jj}, s{sA+jj}, 9216
            """)
        p(f"""
        v_lshrrev_b32 v197, 5, v193
        v_bfe_u32 v198, v193, 2, 2
        v_bfe_u32 v199, v193, 4, 1
        v_and_b32 v200, 3, v193
        v_lshlrev_b32 v200, 3, v200
        v_lshl_add_u32 v201, v197, 3, v198
        v_lshl_add_u32 v{vTR}, v201, 6, v200
        v_lshl_add_u32 v{vTR}, v199, 5, v{vTR}
        v_add_u32 v{vTR+1}, {2*SLOT}, v{vTR}
        v_add_u32 v{vTR+2}, {4*SLOT}, v{vTR}
        v_mul_u32_u24 v202, 7296, v199
        v_lshl_add_u32 v{vMX}, v201, 5, v200
        v_add_u32 v{vMX}, {3*SLOT}, v{vMX}
        v_add_u32 v{vMX}, v{vMX}, v202
        v_lshlrev_b32 v202, 8, v199
        v_sub_u32 v{vMX+1}, v{vMX}, v202
        v_add_u32 v{vMX+1}, 128, v{vMX+1}
        v_and_b32 v198, 31, v193
        v_bfe_u32 v199, v193, 1, 3
        v_xor_b32 v199, v199, v197
        v_lshlrev_b32 v199, 4, v199
        v_lshl_add_u32 v199, v198, 7, v199
        v_add_u32 v204, s{sXM}, v199
        v_xor_b32 v205, 32, v204
        v_xor_b32 v206, 64, v204
        v_xor_b32 v207, 0x60, v204
        s_lshl_b32 s3, s{sW}, 7
        s_add_u32 s3, s3, {STAT}
        v_lshl_add_u32 v{vSTR}, v197, 4, s3
        v_lshl_add_u32 v220, v198, 2, s3
        s_lshl_b32 s3, s{sW}, 12
        s_add_u32 s3, s3, {KVX}
        v_add_u32 v{vKXW}, s3, v{vL16}
        s_lshl_b32 s3, s{sW}, 10
        s_add_u32 s3, s3, {KVX}
        v_add_u32 v{vKXR}, s3, v{vL16}
        s_lshl_b32 s3, s{sW}, 3
        s_add_u32 s3, s3, {KVF}
        v_lshl_add_u32 v{vKFW}, v193, 5, s3
        v_cmp_eq_u32 vcc, 0, v193
        v_mov_b32 v{vONE}, 1
        v_bfrev_b32 v{vZ}, 2
        v_lshlrev_b32 v{vL4}, 2, v193
        v_cndmask_b32 v{vZ}, v{vZ}, 0, vcc
        v_lshlrev_b32 v{vPA31}, 2, v198
        v_mov_b32 v208, 0
        v_mov_b32 v209, 0
        v_mov_b32 v210, 0
        v_mov_b32 v211, 0
        v_mov_b32 v216, -1
        v_mov_b32 v217, -1
        v_mov_b32 v218, -1
        v_mov_b32 v219, -1
        s_and_b32 s{sT2}, s2, 31
        s_lshl_b32 s{sT2}, s{sT2}, 2
        s_add_u32 s{sT2}, s{sT2}, 128
        s_mul_i32 s{sOUT}, s{sMB}, {64*896}
        s_lshl_b32 s{sNB}, s{sNB}, 7
        s_add_u32 s{sOUT}, s{sOUT}, s{sNB}
        """)
        p(s.stamp("setup_done",1))
        clr=[I(f"buffer_store_dwordx4 v[216:219], v{vL16}, {srd(SWS)}, s{sKVst} offen sc1"),
             I(f"buffer_store_dwordx4 v[216:219], v{vL16}, {srd(SWS)}, s{sH+1} offen offset:2048 sc1"),
             I(f"buffer_store_dwordx4 v[216:219], v{vL16}, {srd(SWS)}, s{sH+1} offen offset:3072 sc1"),
             I(f"buffer_store_dwordx4 v[216:219], v{vL16}, {srd(SWS)}, s{sH+2} offen sc1"),
             I(f"v_mov_b32 v212, 0"),
             I(f"buffer_store_dword v212, v{vZ}, {srd(SWS)}, s{sFHst} offen sc1")]
        def stats(P):
            for q in range(4):
                for r in range(4):
                    x=X+(P*4+q)*4+r
                    p(f"v_dot2_f32_bf16 v{208+(r&1)}, v{x}, s{sONES}, v{208+(r&1)}")
                    p(f"v_dot2_f32_bf16 v{210+(r&1)}, v{x}, v{x}, v{210+(r&1)}")
        prev=None
        for P in range(7):
            if P+NX0<7: p(xdma(P+NX0))
            elif P+NX0==7: p(s.wdma(0))
            elif P+NX0==8: p(clr)
            p(W(vm=tok_x[P]))
            p(s.stamp(f"x{P}",1))
            for q in range(4):
                tk=p(f"ds_read_b128 {v(X+(P*4+q)*4,4)}, v{204+q} offset:{P*4096}")
            if prev is not None:
                p(W(lg=prev)); stats(P-1)
            prev=tk
        s.tok_clr=clr[-1]
        p(W(lg=0))
        p(s.stamp("x_in_regs"))
        p("s_barrier")
        p(s.wdma(1))
        p(f"""
        s_mov_b32 s{MONE}, 0x10000000
        s_mov_b32 s{MONE+1}, 0x10000000
        s_mov_b32 s{MHI}, 0
        s_mov_b32 s{MHI+1}, -1
        s_cmp_lt_u32 s{sW}, 2
        """)
        for i in range(7): p(f"s_cselect_b64 s[{TA+2*i}:{TA+2*i+1}], s[{TB+2*i}:{TB+2*i+1}], s[{TA+2*i}:{TA+2*i+1}]")
        stats(6)
        p(f"""
        v_add_f32 v208, v208, v209
        v_add_f32 v210, v210, v211
        v_mov_b32 v209, v208
        v_mov_b32 v211, v210
        v_permlane32_swap_b32 v208, v209
        v_permlane32_swap_b32 v210, v211
        v_add_f32 v208, v208, v209
        v_add_f32 v210, v210, v211
        v_mul_f32 v208, {fb(1/448)}, v208
        v_mul_f32 v210, {fb(1/448)}, v210
        v_fma_f32 v210, -v208, v208, v210
        v_max_f32 v210, 0, v210
        v_add_f32 v{vV}, {fb(1e-5)}, v210
        v_rsq_f32 v{vS}, v{vV}
        v_mul_f32 v{vK0}, {fb(K0C)}, v{vS}
        v_mul_f32 v{vC2}, {fb(LOG2E)}, v{vS}
        v_mul_f32 v209, v{vS}, v{vS}
        v_mul_f32 v209, v209, v{vS}
        v_mul_f32 v{vK1}, {fb(K1C)}, v209
        ds_write_b32 v220, v{vS}
        """)
        s.lead=s.o("lead",3)
        dm=[]
        for sg in range(2,s.lead): dm+=s.wdma(sg)
        nd=sum(1 for x in dm if x.kind=="vmem"); di=0; iss=0
        for g in range(57):
            x0=X+g*2; bk=212+4*(g&1); pb=212+4*((g+1)&1)
            if g<56:
                p(f"v_dot2_f32_bf16 v{bk}, v{x0}, s{sOLO}, v208 neg_lo:[0,0,1]")
                p(f"v_dot2_f32_bf16 v{bk+1}, v{x0}, s{sOHI}, v208 neg_lo:[0,0,1]")
                p(f"v_dot2_f32_bf16 v{bk+2}, v{x0+1}, s{sOLO}, v208 neg_lo:[0,0,1]")
                p(f"v_dot2_f32_bf16 v{bk+3}, v{x0+1}, s{sOHI}, v208 neg_lo:[0,0,1]")
            if g>0:
                p(f"v_cvt_pk_bf16_f32 v{x0-2}, v{pb}, v{pb+1}"); p(f"v_cvt_pk_bf16_f32 v{x0-1}, v{pb+2}, v{pb+3}")
            while di<len(dm) and iss<nd*(g+1)/57:
                p(dm[di]); iss+=dm[di].kind=="vmem"; di+=1
        assert di==len(dm)
        p(s.stamp("centered"))
    def gelu(s, G, U, n, i0):
        L=[]
        for f in range(n//8):
            P=vP+4*(f&1)
            for h in range(2):
                r=[f*8+h*4+k for k in range(4)]
                L+=[I(f"v_mul_f32 v{vT+k}, v{G+r[k]}, v{G+r[k]}") for k in range(4)]
                L+=[I(f"v_fma_f32 v{vT+k}, v{vT+k}, v{vK1}, v{vK0}") for k in range(4)]
                L+=[I(f"v_mul_f32 v{vT+k}, v{vT+k}, v{G+r[k]}") for k in range(4)]
                L+=[I(f"v_exp_f32 v{vT+k}, v{vT+k}") for k in range(4)]
                L+=[I(f"v_mul_f32 v{G+r[k]}, v{G+r[k]}, v{U+r[k]}") for k in range(4)]
                L+=[I(f"v_fma_f32 v{vT+k}, v{vT+k}, v{vV}, v{vV}") for k in range(4)]
                L+=[I(f"v_rcp_f32 v{vT+k}, v{vT+k}") for k in range(4)]
                L+=[I(f"v_mul_f32 v{G+r[k]}, v{G+r[k]}, v{vT+k}") for k in range(4)]
                L+=[I(f"v_cvt_pk_bf16_f32 v{P+2*h+k}, v{G+r[2*k]}, v{G+r[2*k+1]}") for k in range(2)]
            i=i0+f
            if i>=6: L+=[I(f"v_min_u32 v{P+k}, -2, v{P+k}") for k in range(4)]
            st=I(f"buffer_store_dwordx4 {v(P,4)}, v{vL16}, {srd(SWS)}, s{sH+i//4} offen offset:{(i%4)*1024} sc1")
            s.tok_h[i]=st; L.append(st)
        return L
    def kv_epi(s):
        K=ACC; V=ACC+16; S=192; PK=208; PV=216; L=[]
        rd=[I(f"ds_read_b128 {v(S+4*i,4)}, v{vSTR} offset:{32*i}") for i in range(4)]
        L+=rd+[W(lg=rd[-1])]
        for h in range(4):
            r=[4*h+k for k in range(4)]
            L+=[I(f"v_mul_f32 v{K+x}, v{K+x}, v{S+x}") for x in r]
            L+=[I(f"v_min_f32 v{vT+k}, 0, v{K+r[k]}") for k in range(4)]
            L+=[I(f"v_mul_f32 v{vT+k}, {fb(LOG2E)}, v{vT+k}") for k in range(4)]
            L+=[I(f"v_exp_f32 v{vT+k}, v{vT+k}") for k in range(4)]
            L+=[I(f"v_max_f32 v{K+x}, 0, v{K+x}") for x in r]
            L+=[I(f"v_add_f32 v{K+r[k]}, v{K+r[k]}, v{vT+k}") for k in range(4)]
            L+=[I(f"v_add_f32 v{K+x}, {fb(1e-6)}, v{K+x}") for x in r]
            L+=[I(f"v_mul_f32 v{V+x}, v{V+x}, v{S+x}") for x in r]
            L+=[I(f"v_cvt_pk_bf16_f32 v{PK+2*h+k}, v{K+r[2*k]}, v{K+r[2*k+1]}") for k in range(2)]
            L+=[I(f"v_cvt_pk_bf16_f32 v{PV+2*h+k}, v{V+r[2*k]}, v{V+r[2*k+1]}") for k in range(2)]
        L+=[I(f"v_mov_b32 v{vT}, s{sONES}")]
        L+=[I(f"v_cndmask_b32 v{PV+k}, v{PV+k}, v{vT}, s[{MONE}:{MONE+1}]") for k in range(8)]
        M=[I(f"v_mfma_f32_32x32x16_bf16 {v(K,16)}, {v(PK,4)}, {v(PV,4)}, 0"),
           I(f"v_mfma_f32_32x32x16_bf16 {v(K,16)}, {v(PK+4,4)}, {v(PV+4,4)}, {v(K,16)}")]
        Wr=[I(f"ds_write_b128 v{vKXW}, {v(K+4*q,4)} offset:{q*1024}") for q in range(4)]
        rd2=[I(f"ds_read_b128 {v(S+4*q,4)}, v{vKXR} offset:{q*4096}") for q in range(4)]
        R=rd2+[W(lg=rd2[-1])]
        R+=[I(f"v_add_f32 v{S+k}, v{S+k}, v{S+4+k}") for k in range(4)]
        R+=[I(f"v_add_f32 v{S+8+k}, v{S+8+k}, v{S+12+k}") for k in range(4)]
        R+=[I(f"v_add_f32 v{S+k}, v{S+k}, v{S+8+k}") for k in range(4)]
        R+=[I(f"v_min_u32 v{S+k}, -2, v{S+k}") for k in range(4)]
        R.append(I(f"buffer_store_dwordx4 {v(S,4)}, v{vL16}, {srd(SWS)}, s{sKVst} offen sc1"))
        return L,M,Wr,R
    def kv_load_txt(s):
        return [f"buffer_load_dwordx4 {v(192+4*m,4) if m<8 else a(aKV+4*(m-8),4)}, v{vL16}, {srd(SWS)}, s{sKVld+m//4} offen offset:{(m%4)*1024} sc1" for m in range(16)]
    def kv_sum_txt(s, sentinel):
        L=[]
        if sentinel:
            L+=["v_mov_b32 v230, 0"]+[f"v_max3_u32 v230, v230, v{192+2*k}, v{193+2*k}" for k in range(16)]
        for st in (16,8,4):
            for b in range(0,st,4): L+=[f"v_add_f32 v{192+b+k}, v{192+b+k}, v{192+b+st+k}" for k in range(4)]
        h=len(L)
        for m in range(8):
            t=232+4*(m&1)
            L+=[f"v_accvgpr_read_b32 v{t+k}, a{aKV+4*m+k}" for k in range(4)]
            if sentinel: L+=[f"v_max3_u32 v230, v230, v{t+2*k}, v{t+2*k+1}" for k in range(2)]
            L+=[f"v_add_f32 v{192+4*(m&1)+k}, v{192+4*(m&1)+k}, v{t+k}" if m!=1 else f"v_mov_b32 v{196+k}, v{t+k}" for k in range(4)]
        L+=[f"v_add_f32 v{192+k}, v{192+k}, v{196+k}" for k in range(4)]
        return L,h
    def kv_reduce(s, lds):
        T,h=s.kv_sum_txt(False)
        L=[W(vm=lds[7])]+[I(t) for t in T[:h]]+[W(vm=lds[15])]+[I(t) for t in T[h:]]
        nop=I("s_nop 0")
        test=["v_add_f32 v230, v192, v193","v_add_f32 v231, v194, v195","v_cmp_u_f32 vcc, v230, v231"]
        L+=s.retry(nop, test, s.kv_load_txt(), s.kv_sum_txt(True)[0]+["v_cmp_eq_u32 vcc, -1, v230"])
        L+=[I(f"v_cvt_pk_bf16_f32 v196, v192, v193"), I(f"v_cvt_pk_bf16_f32 v197, v194, v195")]
        L+=[I(f"ds_write_b64 v{vKFW}, v[196:197]")]
        return L
    def aload_txt(s, n):
        jj,i=kmap(n)
        return [f"buffer_load_dwordx4 {s.areg(n,mb)}, v{s.vA+3*mb+i//4}, {srd(SWS)}, s{sA+jj} offen offset:{(i%4)*1024} sc1" for mb in range(2)]
    def areg(s,n,mb): return a(aA+8*n+4*mb,4) if n<24 else v(X+8*(n-24)+4*mb,4)
    def aload(s, n):
        L=[I(t) for t in s.aload_txt(n)]; s.tok_a[n]=L[-1]; return L
    def trd(s, g):
        P=g>>1; u=g&1; ps=P//28; sg=P//14; pl=P%14; slot=sg%5
        dst=(P%4)*8+u*4; L=[]
        for t in range(2):
            if ps==4 and u==0:
                L.append(I(f"ds_read_b64_tr_b16 {a(dst+2*t,2)}, v{vMX+t} offset:{(slot-3)*SLOT+(pl>>1)*1024+(pl&1)*512}"))
            else:
                wv=(u+2*(pl&1)) if ps<4 else 2+(pl&1)
                off=(slot&1)*SLOT+wv*7168+(pl>>1)*1024+t*256
                L.append(I(f"ds_read_b64_tr_b16 {a(dst+2*t,2)}, v{vTR+slot//2} offset:{off}"))
        return L
    def flagst(s, val, tok):
        return [W(vm=tok), I(f"v_mov_b32 v{vONE}, {val}"), I(f"buffer_store_dword v{vONE}, v{vZ}, {srd(SWS)}, s{sFHst} offen sc1")]
    def poll(s, val):
        t=f"buffer_load_dword v{vPOLL}, v{vPA31}, {srd(SWS)}, s{sFHld} offen sc1"
        ld=I(t); return ld, s.retry(W(vm=ld), [f"v_cmp_gt_u32 vcc, {val}, v{vPOLL}"], [t])
    def phase1(s):
        p=s.p; s.tok_h={}; s.tok_a={}; s.vA=198+0
        o=s.o; segs=[]
        def seg(g0,g1,L): segs.append([g0,g1,list(L),0])
        for sg in range(s.lead,10):
            k=sg-s.lead; seg(max(0,Bg(k)+1),Bg(k)+25,s.wdma(sg))
        e1,eM,eW,eR=s.kv_epi()
        kb=o("kvbar",4); ke=Bg(kb)
        seg(58,ke-12,e1); seg(ke-11,ke-10,eM[:1]); seg(ke-9,ke-8,eM[1:]); seg(ke-4,ke-1,eW); seg(ke+1,ke+8,eR)
        seg(116,166,s.gelu(ACC+32,ACC+48,16,0))
        seg(172,222,s.gelu(ACC,ACC+16,16,2))
        seg(228,o("g3end",272),s.gelu(ACC+32,ACC+48,16,4))
        ct=f"buffer_load_dword v{vPOLL+1}, v{vPA31}, {srd(SD)}, 0 offen offset:128 sc1"
        cld=I(ct); cchk=s.retry(W(vm=cld), [f"v_cmp_gt_u32 vcc, 8, v{vPOLL+1}"], [ct])
        kl=[I(t) for t in s.kv_load_txt()]
        gk=o("gkv",200)
        seg(gk-30,gk-29,[cld]); seg(gk-1,gk,cchk); seg(gk,gk+12,kl); seg(o("gred",250),274,s.kv_reduce(kl))
        seg(o("gfa",216),o("gfa",216)+1,s.flagst(1,s.tok_h[1]))
        seg(o("gfb",272),o("gfb",272)+1,s.flagst(2,s.tok_h[3]))
        kB=10-s.lead
        seg(Bg(kB)-3,Bg(kB),lines(f"""
        s_mov_b32 s{SWD}, s16
        s_and_b32 s{SWD+1}, s17, 0xffff
        s_mul_i32 s{SWD+2}, s{sV2}, {1792*896}
        s_mov_b32 s{SWO}, s8
        s_and_b32 s{SWO+1}, s9, 0xffff
        s_mul_i32 s{SWO+2}, s{sV2}, {448*896}
        s_mov_b32 s{SOUT}, s18
        s_and_b32 s{SOUT+1}, s19, 0xffff
        s_mov_b32 s{SOUT+2}, {2048*896}
        s_lshl_b32 s{sWB7}, s{sW}, 11
        v_lshrrev_b32 v232, 7, v{vL16}
        v_bfe_u32 v233, v{vL16}, 8, 1
        v_lshlrev_b32 v233, 6, v233
        v_and_b32 v234, 0x70, v{vL16}
        v_xor_b32 v233, v233, v234
        v_mul_u32_u24 v232, 896, v232
        v_add3_u32 v{vB}, v232, v233, s{sNB}
        v_add_u32 v{vB2}, 6144, v{vB}
        """))
        lim={6:3,7:7,8:10,9:14}; n0=0
        for k in range(kB,10):
            n1=min(lim[k], n0+o("bper",4)); L=[]
            for n in range(n0,n1): L+=s.bdma(n)
            seg(Bg(k)+1,Bg(k)+25,L); n0=n1
        s.nb0=n0
        p(W(vm=[s.tok_w[0],s.tok_clr])); p("s_barrier")
        p(f"s_cmp_lg_u32 s{sW}, 0\ns_cbranch_scc1 L_nocnt\ns_mov_b64 exec, 1")
        p(I(f"buffer_atomic_add v{vONE}, off, {srd(SD)}, s{sT2} sc1", count=False))
        p("s_mov_b64 exec, -1\nL_nocnt:")
        p(s.stamp("B0",1))
        rd={}
        for g in range(4):
            rd[g]=s.trd(g); p(rd[g])
        for g in range(280):
            P=g>>1; u=g&1; ps=P//28; pos=P%28
            if u==0: p(W(lg=rd[g+1][-1]))
            D=ACC+32*(ps&1)+16*u; fr=a((P%4)*8+u*4,4); xr=v(X+4*pos,4); C=v(D,16) if pos else "0"
            if ps==0: p(f"v_mfma_f32_32x32x16_bf16 {v(D,16)}, {xr}, {fr}, {C}")
            else: p(f"v_mfma_f32_32x32x16_bf16 {v(D,16)}, {fr}, {xr}, {C}")
            if (g+4)%28==0:
                k=(g+4)//28
                needlg = s.lead>3 or k==kb or k>=kB
                if k<10: p(W(vm=s.tok_w[k], lg=0) if needlg else W(vm=s.tok_w[k]))
                else: p(W(lg=0))
                p("s_barrier")
                p(s.stamp(f"B{k}", k%2))
            if g+4<280:
                rd[g+4]=s.trd(g+4); p(rd[g+4])
            for sgm in segs:
                g0,g1,L,done=sgm
                if g<g0 or done>=len(L): continue
                tot=sum(x.cost for x in L); tgt=tot*(g-g0+1)/(g1-g0) if g<g1-1 else tot+1
                acc=sum(x.cost for x in L[:done])
                while done<len(L) and (acc<tgt or L[done].kind=="label"):
                    p(L[done]); acc+=L[done].cost; done+=1
                sgm[3]=done
        assert all(x[3]==len(x[2]) for x in segs)
        p(s.stamp("p1_mfma_done"))
        Q=ACC+16; PQ=208; N=ACC+32; PO=216; vA=s.vA
        p(f"v_lshlrev_b32 v232, 1, v{vL16}"); p(f"v_add_u32 v232, {KVF}, v232")
        r0=p(f"ds_read_b128 {a(aKF,4)}, v232"); r1=p(f"ds_read_b128 {a(aKF+4,4)}, v232 offset:16")
        pl,pc=s.poll(1); p(pl)
        p(f"""
        v_mov_b32 v{vA}, v{vL16}
        v_add_u32 v{vA+1}, 4096, v{vL16}
        v_add_u32 v{vA+2}, 8192, v{vL16}
        v_add_u32 v{vA+3}, {16*9216}, v{vL16}
        v_add_u32 v{vA+4}, {16*9216+4096}, v{vL16}
        v_add_u32 v{vA+5}, {16*9216+8192}, v{vL16}
        """)
        for h in range(4):
            r=[4*h+k for k in range(4)]
            p([I(f"v_mul_f32 v{vT+k}, v{Q+r[k]}, v{vC2}") for k in range(4)])
            p([I(f"v_min_f32 v{vT+k}, 0, v{vT+k}") for k in range(4)])
            p([I(f"v_exp_f32 v{vT+k}, v{vT+k}") for k in range(4)])
            p([I(f"v_max_f32 v{Q+x}, 0, v{Q+x}") for x in r])
            p([I(f"v_fma_f32 v{Q+r[k]}, v{Q+r[k]}, v{vS}, v{vT+k}") for k in range(4)])
            p([I(f"v_add_f32 v{Q+x}, {fb(1e-6)}, v{Q+x}") for x in r])
            p([I(f"v_cvt_pk_bf16_f32 v{PQ+2*h+k}, v{Q+r[2*k]}, v{Q+r[2*k+1]}") for k in range(2)])
        p([I(f"v_cndmask_b32 v{PQ+6+k}, v{PQ+6+k}, 0, s[{MHI}:{MHI+1}]") for k in range(2)])
        p(W(lg=r1))
        p(f"v_mfma_f32_32x32x16_bf16 {v(N,16)}, {a(aKF,4)}, {v(PQ,4)}, 0")
        p(f"v_mfma_f32_32x32x16_bf16 {v(N,16)}, {a(aKF+4,4)}, {v(PQ+4,4)}, {v(N,16)}")
        p(s.gelu(ACC,ACC+8,8,6))
        p(f"""
        v_mov_b32 v232, v{N+12}
        v_mov_b32 v233, v{N+12}
        v_permlane32_swap_b32 v232, v233
        v_add_f32 v233, {fb(1e-6)}, v233
        v_rcp_f32 v233, v233
        """)
        p([I(f"v_mul_f32 v{N+k}, v{N+k}, v233") for k in range(16)])
        p([I(f"v_cvt_pk_bf16_f32 v{PO+k}, v{N+2*k}, v{N+2*k+1}") for k in range(8)])
        p([I(f"v_cndmask_b32 v{PO+6+k}, v{PO+6+k}, 0, s[{MHI}:{MHI+1}]") for k in range(2)])
        p([I(f"v_min_u32 v{PO+k}, -2, v{PO+k}") for k in range(8)])
        p(f"buffer_store_dwordx4 {v(PO,4)}, v{vL16}, {srd(SWS)}, s{sH+1} offen offset:3072 sc1")
        p(f"buffer_store_dwordx4 {v(PO+4,4)}, v{vL16}, {srd(SWS)}, s{sH+2} offen sc1")
        p(s.stamp("tail_done"))
        p(s.flagst(3,s.tok_h[5]))
        p(f"s_cmp_eq_u32 s{sV2}, 0"); p("s_cbranch_scc1 L_fin")
        s.pollA=pc
    def phase2(s):
        p=s.p; o=s.o
        vBT=192; vXR=204
        p(s.pollA); p(s.stamp("flagA"))
        for n in range(8): p(s.aload(n))
        plB,pcB=s.poll(2); p(plB)
        for n in range(s.nb0,NB): p(s.bdma(n))
        p(f"""
        v_lshrrev_b32 v232, 9, v{vL16}
        v_bfe_u32 v233, v{vL16}, 6, 2
        v_lshl_add_u32 v232, v232, 2, v233
        v_lshlrev_b32 v232, 7, v232
        v_bfe_u32 v233, v{vL16}, 7, 1
        v_lshl_add_u32 v232, v233, 6, v232
        v_bfe_u32 v233, v{vL16}, 8, 1
        v_lshl_add_u32 v232, v233, 5, v232
        v_bfe_u32 v233, v{vL16}, 4, 2
        v_lshl_add_u32 v232, v233, 3, v232
        v_add_u32 v{vBT}, s{sWB7}, v232
        v_xor_b32 v{vBT+1}, 64, v{vBT}
        v_add_u32 v{vBT+2}, 0x10000, v{vBT}
        v_add_u32 v{vBT+3}, 0x10000, v{vBT+1}
        v_add_u32 v{vBT+4}, 0x20000, v{vBT}
        v_add_u32 v{vBT+5}, 0x20000, v{vBT+1}
        v_lshrrev_b32 v232, 6, v{vL16}
        s_lshl_b32 s{sT}, s{sW}, 4
        v_add_u32 v232, s{sT}, v232
        v_bfe_u32 v233, v{vL16}, 4, 2
        v_mul_u32_u24 v234, 272, v232
        v_lshl_add_u32 v214, v233, 6, v234
        v_mul_u32_u24 v232, 896, v232
        v_lshl_add_u32 v212, v233, 5, v232
        """)
        p(pcB); p(s.stamp("flagB"))
        for n in range(8,16): p(s.aload(n))
        plC,pcC=s.poll(3); p(plC)
        def btr(n,q):
            nbk,t=q>>1,q&1; e=n%NB
            return I(f"ds_read_b64_tr_b16 {a((n%4)*8+nbk*4+2*t,2)}, v{vBT+2*(e//8)+nbk} offset:{(e%8)*8192+t*1024}")
        rb={}
        p(W(vm=s.tok_b[0]))
        for q in range(4): rb[0]=p(btr(0,q))
        nC=o("nC",4); nD=o("nD",10)
        for n in range(36):
            if n==nC:
                p(pcC); p(s.stamp("flagC"))
            if n>=24 and (n-24)%3==0:
                regs=[X+8*(m-24)+k for m in range(n,n+3) for k in range(8)]
                test=[f"v_max3_u32 v230, v{regs[0]}, v{regs[1]}, v{regs[2]}", f"v_max3_u32 v231, v{regs[3]}, v{regs[4]}, v{regs[5]}"]
                for k in range(6,24,2): test.append(f"v_max3_u32 v{230+(k//2)%2}, v{230+(k//2)%2}, v{regs[k]}, v{regs[k+1]}")
                test+=["v_max_u32 v230, v230, v231","v_cmp_eq_u32 vcc, -1, v230"]
                p(s.retry(W(vm=s.tok_a[n+2]), test, [t for m in range(n,n+3) for t in s.aload_txt(m)]))
                if n==24: p(s.stamp("D0_ok"))
                p(W(lg=rb[n]))
            else:
                p(W(vm=s.tok_a[n], lg=rb[n]) if n<24 else W(lg=rb[n]))
            for q in range(4):
                nbk,mb=q>>1,q&1; D=ACC+16*q
                p(f"v_mfma_f32_32x32x16_bf16 {v(D,16)}, {a((n%4)*8+nbk*4,4)}, {s.areg(n,mb)}, {v(D,16) if n else 0}")
                if n+1<36:
                    if q==0:
                        p(W(vm=s.tok_b[n+1])); p(btr(n+1,0)); p(btr(n+1,1))
                    if q==1:
                        p(btr(n+1,2)); rb[n+1]=p(btr(n+1,3))
                if q==2 and n+NB<36: p(s.bdma(n+NB))
                if q==3:
                    if nC<=n<nC+4: p(s.aload(16+2*(n-nC))); p(s.aload(17+2*(n-nC)))
                    if nD<=n<nD+6: p(s.aload(24+2*(n-nD))); p(s.aload(25+2*(n-nD)))
                    if n==20:
                        xr0=p(f"buffer_load_dwordx4 {v(vXR,4)}, v212, {srd(SX)}, s{sOUT} offen")
                        xr1=p(f"buffer_load_dwordx4 {v(vXR+4,4)}, v212, {srd(SX)}, s{sOUT} offen offset:16")
            if n in (7,15,23): p(s.stamp(f"p2_n{n}",1))
        p(s.stamp("p2_mfma_done"))
        p("s_barrier")
        p(f"""
        v_bfe_u32 v232, v{vL16}, 4, 5
        v_mul_u32_u24 v232, 272, v232
        v_lshrrev_b32 v233, 9, v{vL16}
        v_lshl_add_u32 v232, v233, 4, v232
        s_mul_i32 s{sT}, s{sW}, 17408
        v_add_u32 v232, s{sT}, v232
        """)
        for q in range(4):
            nbk,mb=q>>1,q&1
            for i in range(4):
                p(f"ds_write_b128 v232, {v(ACC+16*q+4*i,4)} offset:{mb*32*272+nbk*128+i*32}")
        p(W(lg=0)); p("s_barrier")
        rr=[]
        for w in range(4):
            for c in range(4): rr.append(p(f"ds_read_b128 {v(16+16*w+4*c,4)}, v214 offset:{w*17408+c*16}"))
        p(W(vm=xr1))
        for k in range(8):
            p(f"v_lshlrev_b32 v{80+2*k}, 16, v{vXR+k}"); p(f"v_and_b32 v{81+2*k}, 0xffff0000, v{vXR+k}")
        p(W(lg=rr[7]))
        for k in range(8): p(f"v_pk_add_f32 {v(16+2*k,2)}, {v(16+2*k,2)}, {v(32+2*k,2)}")
        p(W(lg=rr[15]))
        for k in range(8): p(f"v_pk_add_f32 {v(48+2*k,2)}, {v(48+2*k,2)}, {v(64+2*k,2)}")
        for k in range(8): p(f"v_pk_add_f32 {v(16+2*k,2)}, {v(16+2*k,2)}, {v(80+2*k,2)}")
        for k in range(8): p(f"v_pk_add_f32 {v(16+2*k,2)}, {v(16+2*k,2)}, {v(48+2*k,2)}")
        for k in range(8): p(f"v_cvt_pk_bf16_f32 v{96+k}, v{16+2*k}, v{17+2*k}")
        p(f"buffer_store_dwordx4 v[96:99], v212, {srd(SOUT)}, s{sOUT} offen sc1")
        p(f"buffer_store_dwordx4 v[100:103], v212, {srd(SOUT)}, s{sOUT} offen offset:16 sc1")
        p("L_fin:")
        if s.stamps:
            p(W(vm=0)); p(s.stamp("end"))
            p(f"s_lshl_b32 s{sT}, s{sMI}, 4\ns_add_u32 s{sT}, s{sT}, s{sJ}\ns_lshl_b32 s{sT}, s{sT}, 2\ns_add_u32 s{sT}, s{sT}, s{sW}\ns_lshl_b32 s{sT}, s{sT}, 8\ns_add_u32 s{sT}, s{sT}, {WS_ST}")
            p(f"buffer_store_dword v0, v{vL4}, {srd(SWS)}, s{sT} offen")
            if s.o("dbgwg",None) is not None:
                p(f"s_memrealtime s[{sSTMP}:{sSTMP+1}]\ns_waitcnt lgkmcnt(0)\nv_readlane_b32 s{sSPIN}, v0, 63\ns_nop 3\ns_sub_u32 s{sSTMP}, s{sSTMP}, s{sSPIN}\nv_readlane_b32 s{sSPIN}, v0, 0\ns_nop 3\nv_subrev_u32 v0, s{sSPIN}, v0\nv_writelane_b32 v0, s{sSTMP}, 0")
                p(f"s_cmp_lg_u32 s{sT}, {WS_ST+s.o('dbgwg',0)*256}\ns_cbranch_scc1 L_end\ns_mov_b64 exec, 0xffff")
                p(f"buffer_store_dword v0, v{vL4}, {srd(SD)}, 0 offen")
        if s.o("fixspan",0):
            p(W(vm=0)); p(f"v_readfirstlane_b32 s{sT}, v0\nL_fix:\ns_memrealtime s[{sSTMP}:{sSTMP+1}]\ns_waitcnt lgkmcnt(0)\ns_sub_u32 s{sSTMP}, s{sSTMP}, s{sT}\ns_cmp_lt_u32 s{sSTMP}, {s.opt['fixspan']}\ns_cbranch_scc1 L_fix")
        p("L_end:"); p("s_endpgm")
    def build(s):
        s.prologue(); s.phase1(); s.phase2()
        s.p.add(s.ool); s.p("L_codeend:")
        for pat in s.o("drop",[]):
            for x in s.p.L:
                if pat in x.text: x.text="; dropped"; x.kind="dir"; x.R=[]; x.W=[]; x.op=""; x.lds=False
        for a_,b_ in s.o("subst",[]):
            for x in s.p.L:
                if x.kind=="vmem": x.text=x.text.replace(a_,b_)
        s.p.resolve()
        if s.o("nocomp",0):
            fl=("v_mul_f32","v_fma_f32","v_add_f32","v_min_f32","v_max_f32","v_cvt_pk","v_pk_","v_accvgpr","v_max3","v_min_u32","v_max_u32","v_permlane")
            keep=[]
            for i,x in enumerate(s.p.L):
                if x.kind in("mfma","ds","dot","trans") or x.op.startswith(fl): continue
                if x.op=="s_cbranch_vccnz" and (s.p.L[i-1].op.startswith(("v_cmp_u","v_cmp_eq"))): continue
                keep.append(x)
            s.p.L=keep
        if s.o("nomem",0):
            s.p.L=[x for x in s.p.L if not ((x.kind=="vmem" and "v0, v" not in x.text) or x.op=="s_cbranch_vccnz")]

        s.p.check(fix=True); s.pads=s.p.pads
        errs=s.p.check()
        hdr=f"""; Fused LayerNorm + linear attention + GEGLU FFN + residual, one persistent launch (generated by dev/gen.py)
; @launch grid=(256,1,1) block=(256,1,1) lds={LDS}
.amdgcn_target "amdgcn-amd-amdhsa--gfx950"
.text
.globl {KN}
.p2align 8
.type {KN},@function
{KN}:
"""
        ftr=f""".section .rodata,"a"
.p2align 6
.amdhsa_kernel {KN}
  .amdhsa_next_free_vgpr 512
  .amdhsa_next_free_sgpr 102
  .amdhsa_accum_offset 256
  .amdhsa_group_segment_fixed_size 0
  .amdhsa_kernarg_size 80
  .amdhsa_user_sgpr_count 2
  .amdhsa_user_sgpr_kernarg_segment_ptr 1
  .amdhsa_system_sgpr_workgroup_id_x 1
.end_amdhsa_kernel
"""
        return hdr+s.p.text()+ftr, errs
if __name__=="__main__":
    import argparse
    ap=argparse.ArgumentParser(); ap.add_argument("-o",default="k.s"); ap.add_argument("--stamps",action="store_true"); ap.add_argument("-v",action="store_true"); ap.add_argument("--opt",default="{}")
    ar=ap.parse_args()
    g=Gen(stamps=ar.stamps, **eval(ar.opt)); txt,errs=g.build()
    for e in errs: print("ERR",e)
    if ar.v:
        for x in g.pads: print("pad",x)
    open(ar.o,"w").write(txt)
    print("instrs",len(g.p.L),"errors",len(errs))
    from build import build
    build(ar.o)
```

```python
import sys, struct
from emit import Prog, I, W, Ins
KN = "parallel_sum__linear_attn_block__geglu_ffn__prompt_kernel"
def fb(x): return "0x%08x" % struct.unpack("<I", struct.pack("<f", x))[0]
SLOT=28672; KVX=143360; STAT=159744; LDS=163840
WS_KVP=0x900000; WS_KF=0xA00000; WS_FH=0xA10000; WS_FK=0xA14000; WS_ST=0xB00000; WS_SZ=0xC00000
LOG2E=1.4426950408889634
K0C=-2*0.7978845608028654*LOG2E; K1C=K0C*0.044715
sHc,sKF,sKR,sOUT=0,1,2,3
sA=4; sKP,sKFst=6,7
sW,sT=10,11
sBA,sBL,sBH,sBO=12,14,20,22
SX,SW0,SW1,SW4,SWS,SD=24,28,32,36,40,44
SWD,SWO,SOUT=SW0,SW1,SW4
C26,C35=48,55
CBQ,CB0,CB3,CB4=62,66,68,70
sWB7,sWB2=72,73; sH=74; sV2,sNB,sWG,sMI,sJ,sTY,sMB=77,78,79,80,81,82,83
sFHst,sFHld,sFKst,sFKld=84,85,86,87
sXM,sXC,sXR,sXT=84,85,86,87
MONE,MHI=88,90; sT2=92; sOLO,sOHI,sONES=93,94,95; sSTMP=96; sSPIN=98; sC,sP,sT3=99,100,101
def srd(n): return f"s[{n}:{n+3}]"
vL16,vWc,vWq,vW3,vW4,vW0=1,2,3,4,5,6
vB,vB2=6,7
vTR=8; vK0,vK1,vV,vS,vC2=11,12,13,14,15
X=16; ACC=128
vZ,vONE,vPOLL,vL4,vPA31=224,225,226,228,229
vPA7,vTCH=4,3
vTQ=232; vBT=232; vKFs,vKR=238,239
vSTR,vKXW,vKXR,vKP=240,241,242,243
vT=244; vP=248
aB=32
def v(a,n=1): return f"v{a}" if n==1 else f"v[{a}:{a+n-1}]"
def a(x,n=1): return f"a{x}" if n==1 else f"a[{x}:{x+n-1}]"
def lines(t): return [I(l.strip()) for l in t.strip().split("\n") if l.strip()]
def kmap(n):
    if n<24:
        st,r=n//8,n%8; pp,q=r//4,r%4
        return pp,(2*st+q if q<2 else 8+2*st+q-2)
    pp,q=(n-24)//6,(n-24)%6
    return pp,(6+q if q<2 else 12+q)
BARS=[24,52,80,108,122,136,150,164,192,220,248,276]
ENT=[(4*e)*2048 for e in range(17)]+[KVX,KVX+8192]
ENT_FREE=[164]*3+[192]*4+[220]*3+[248]*4+[276]*3+[164,164]

class Gen:
    def __init__(s, stamps=False, **opt):
        s.p=Prog(); s.ool=[]; s.stamps=stamps; s.stnames=[]; s.opt=opt; s.lbl=0
    def o(s,k,d): return s.opt.get(k,d)
    def stamp(s, name="", fine=False):
        if not s.stamps or (fine and not s.o("fine",0)): return []
        if name in s.stnames: k=s.stnames.index(name)
        else: k=len(s.stnames); s.stnames.append(name)
        return [I(f"s_memtime s[{sSTMP}:{sSTMP+1}]"), I("s_waitcnt lgkmcnt(0)"), I(f"v_writelane_b32 v0, s{sSTMP}, {k}")]
    def retry(s, test, reload, retest=None):
        n=s.lbl; s.lbl+=1
        chk=[I(t) for t in test]+[I(f"s_cbranch_vccnz L_spin{n}"), I(f"L_ok{n}:")]
        s.ool += [I(f"L_spin{n}:"), I(f"s_mov_b32 s{sSPIN}, 0x8000"), I(f"L_spinl{n}:"), I("s_waitcnt vmcnt(0)")]
        s.ool += [I(t,count=False) for t in reload]+[I("s_waitcnt vmcnt(0)")]+[I(t) for t in (retest or test)]
        s.ool += [I(f"s_cbranch_vccz L_ok{n}"), I(f"s_sub_u32 s{sSPIN}, s{sSPIN}, 1"), I(f"s_cmp_lg_u32 s{sSPIN}, 0"),
                  I(f"s_cbranch_scc1 L_spinl{n}"), I(f"s_branch L_ok{n}")]
        return chk
    def wdma(s, name):
        k,i0=name[0],int(name[1])
        vb,cb,sr,tb,slot={"k":(vW0,CB0+i0,SW0,C26,i0), "Q":(vWq,CBQ+i0,SW1,C35,[2,3,4,0][i0]),
                          "h":(vW3,CB3+i0,SW1,C35,1+i0), "f":(vW4,CB4+i0,SW4,C26,3+i0)}[k]
        L=[I(f"v_add_u32 v{vWc}, s{cb}, v{vb}")]
        for i in range(7):
            if i in (0,4): L.append(I(f"s_add_u32 m0, s{sWB7}, {slot*SLOT+(4096 if i==4 else 0)}"))
            L.append(I(f"buffer_load_dwordx4 v{vWc}, {srd(sr)}, s{tb+i} offen offset:{(i%4)*1024} lds"))
        s.tok_w[name]=L[-1]
        return L
    def bdma(s, n, e):
        pp,i=kmap(n)
        base,sr,k=(sBA+pp,SWD,i) if i<8 else (sBL+pp,SWD,i-8) if i<12 else (sBH+pp,SWD,i-12) if i<14 else (sBO+pp,SWO,None)
        off=k*14336 if k is not None else ((i-14)//2*28+(i-14)%2*16)*896
        L=[I(f"s_add_u32 m0, s{sWB2}, {ENT[e]}"), I(f"s_add_u32 s{sT}, s{base}, {off}"),
           I(f"buffer_load_dwordx4 v{vB}, {srd(sr)}, s{sT} offen lds"),
           I(f"buffer_load_dwordx4 v{vB2}, {srd(sr)}, s{sT} offen offset:1024 lds")]
        s.tok_b[n]=L[-1]; s.ent[n]=e
        return L
    def btr(s, n, q, dst):
        nbk,t=q>>1,q&1; ad=ENT[s.ent[n]]
        return I(f"ds_read_b64_tr_b16 {a(dst+nbk*4+2*t,2)}, v{vBT+2*(ad>>16)+nbk} offset:{(ad&0xffff)+t*1024}")
    def prologue(s):
        p=s.p; s.tok_w={}; s.tok_b={}; s.ent={}
        if s.o("fixspan",0): p(f"s_memrealtime s[{sSTMP}:{sSTMP+1}]")
        p(f"""
        s_cmp_ge_u32 s2, 256
        s_cbranch_scc1 L_end
        s_load_dwordx4 s[4:7], s[0:1], 0
        s_load_dwordx4 s[20:23], s[0:1], 64
        s_load_dwordx2 s[8:9], s[0:1], 16
        s_load_dwordx4 s[12:15], s[0:1], 32
        s_load_dwordx4 s[16:19], s[0:1], 48
        s_getpc_b64 s[{SD}:{SD+1}]
        L_pc:
        v_lshrrev_b32 v192, 6, v0
        v_and_b32 v193, 63, v0
        v_readfirstlane_b32 s{sW}, v192
        v_lshlrev_b32 v{vL16}, 4, v193
        s_and_b32 s{sT}, s2, 7
        s_lshr_b32 s{sT2}, s2, 3
        s_and_b32 s{SD+1}, s{SD+1}, 0xffff
        s_mov_b32 s{SD+2}, L_codeend-L_pc
        s_mov_b32 s{SD+3}, 0x20000
        s_lshl_b32 s3, s{sT2}, 10
        v_cmp_gt_u32 vcc, 4, v193
        v_lshlrev_b32 v194, 6, v193
        v_lshl_add_u32 v194, v192, 8, v194
        v_bfrev_b32 v{vZ}, 2
        v_cndmask_b32 v194, v{vZ}, v194, vcc
        s_mov_b32 s{sWG}, s2
        buffer_load_dword a255, v194, {srd(SD)}, s3 offen
        v_cndmask_b32 v{vKFs}, v{vZ}, v{vL16}, vcc
        s_and_b32 s{sMI}, s{sT}, 1
        s_lshl_b32 s{sMI}, s{sMI}, 3
        s_and_b32 s3, s{sT2}, 7
        s_add_u32 s{sMI}, s{sMI}, s3
        s_lshr_b32 s{sJ}, s{sT}, 1
        s_lshl_b32 s{sJ}, s{sJ}, 2
        s_lshr_b32 s3, s{sT2}, 3
        s_add_u32 s{sJ}, s{sJ}, s3
        s_add_u32 s{sC}, s{sMI}, s{sJ}
        s_and_b32 s{sC}, s{sC}, 3
        s_mul_i32 s{sXC}, s{sC}, 7
        s_lshr_b32 s{sXC}, s{sXC}, 2
        v_lshrrev_b32 v222, 3, v193
        v_mul_u32_u24 v222, 896, v222
        v_lshrrev_b32 v196, 4, v193
        v_and_b32 v197, 7, v193
        v_xor_b32 v196, v196, v197
        v_lshl_add_u32 v222, v196, 4, v222
        v_xor_b32 v223, 64, v222
        s_lshl_b32 s{sH}, s{sMI}, 2
        s_add_u32 s{sH}, s{sH}, s{sW}
        s_mul_i32 s{sXR}, s{sH}, {32*896}
        s_add_u32 s{sXM}, s{sW}, 1
        s_mul_i32 s{sXM}, s{sXM}, {SLOT}
        s_mov_b32 s{SX+2}, {2048*896}
        s_mov_b32 s{SX+3}, 0x20000
        s_waitcnt lgkmcnt(0)
        s_mov_b32 s{SX}, s4
        s_and_b32 s{SX+1}, s5, 0xffff
        """)
        if s.stamps:
            p("v_mov_b32 v0, 0"); p(s.stamp("start"))
            if s.o("dbgwg",None) is not None: p(f"s_memrealtime s[{sSTMP}:{sSTMP+1}]\ns_waitcnt lgkmcnt(0)\nv_writelane_b32 v0, s{sSTMP}, 63")
        if s.o("fixspan",0): p(f"v_mov_b32 v0, s{sSTMP}")
        p("s_cmp_lg_u32 s2, 0"); p("s_cbranch_scc1 L_noclr")
        p(f"""
        s_mov_b32 s{SWS}, s22
        s_and_b32 s{SWS+1}, s23, 0xffff
        s_mov_b32 s{SWS+2}, {WS_SZ}
        s_mov_b32 s{SWS+3}, 0x20000
        v_mov_b32 v200, 0
        v_mov_b32 v201, 0
        v_mov_b32 v202, 0
        v_mov_b32 v203, 0
        v_lshrrev_b32 v204, 1, v193
        v_and_b32 v205, 16, v{vL16}
        v_lshl_add_u32 v204, v204, 7, v205
        s_lshl_b32 s3, s{sW}, 12
        s_add_u32 s3, s3, {WS_FH}
        s_mov_b32 s4, {WS_FK}
        """)
        p(I(f"buffer_store_dwordx4 v[200:203], v204, {srd(SWS)}, s3 offen sc1", count=False))
        p(I(f"buffer_store_dwordx4 v[200:203], v{vL16}, {srd(SWS)}, s4 offen sc1", count=False))
        p("L_noclr:")
        tok_x=[]
        def xdma(P):
            L=[I(f"s_add_u32 m0, s{sXM}, {P*4096}"), I(f"s_lshl_b32 s{sXT}, s{sXC}, 7"), I(f"s_add_u32 s{sXT}, s{sXT}, s{sXR}")]
            for t in range(4):
                tk=I(f"buffer_load_dwordx4 v{222+(t&1)}, {srd(SX)}, s{sXT} offen offset:{t*1024} lds"); L.append(tk)
                if t<3: L.append(I(f"s_add_u32 s{sXT}, s{sXT}, 6144"))
            tok_x.append(tk)
            if P<6: L+=[I(f"s_add_u32 s{sXC}, s{sXC}, 1"), I(f"s_cmp_eq_u32 s{sXC}, 7"), I(f"s_cselect_b32 s{sXC}, 0, s{sXC}")]
            return L
        NX0=s.o("nx0",3)
        for P in range(NX0): p(xdma(P))
        p(s.stamp("x_first_issued",1))
        p(f"""
        s_mul_i32 s{sMB}, s{sT2}, 37
        s_lshr_b32 s{sMB}, s{sMB}, 8
        s_mul_i32 s3, s{sMB}, 7
        s_sub_u32 s{sNB}, s{sT2}, s3
        s_cmp_lt_u32 s{sT2}, 28
        s_cselect_b32 s{sV2}, 1, 0
        s_lshl_b32 s{sT}, s{sT}, 2
        s_add_u32 s{sMB}, s{sMB}, s{sT}
        s_mul_i32 s{sWB7}, s{sW}, 7168
        s_lshl_b32 s{sWB2}, s{sW}, 11
        s_and_b32 s{sTY}, s{sJ}, 1
        s_lshr_b32 s{sP}, s{sJ}, 1
        s_sub_u32 s{SW0}, s6, 3072
        s_subb_u32 s{SW0+1}, s7, 0
        s_and_b32 s{SW0+1}, s{SW0+1}, 0xffff
        s_mov_b32 s{SW0+2}, {448*2688+3072}
        s_mov_b32 s{SW0+3}, 0x20000
        s_and_b32 s5, s{sW}, 1
        s_lshr_b32 s4, s{sW}, 1
        s_cmp_eq_u32 s5, 0
        s_cselect_b32 s{SW1}, s12, s14
        s_cselect_b32 s{SW1+1}, s13, s15
        s_sub_u32 s{SW1}, s{SW1}, 3072
        s_subb_u32 s{SW1+1}, s{SW1+1}, 0
        s_and_b32 s{SW1+1}, s{SW1+1}, 0xffff
        s_mov_b32 s{SW1+2}, {448*3584+3072}
        s_mov_b32 s{SW1+3}, 0x20000
        s_mov_b32 s{SWS}, s22
        s_and_b32 s{SWS+1}, s23, 0xffff
        s_mov_b32 s{SWS+2}, {WS_SZ}
        s_mov_b32 s{SWS+3}, 0x20000
        s_mov_b32 s{SD}, s20
        s_and_b32 s{SD+1}, s21, 0xffff
        s_mov_b32 s{SD+2}, 256
        s_mov_b32 s{SD+3}, 0x20000
        """)
        for i in range(7):
            bias=3072-1024*(i%4)
            p(f"s_mov_b32 s{C26+i}, {i*16*2688+bias}"); p(f"s_mov_b32 s{C35+i}, {i*16*3584+bias}")
        for i in range(4): p(f"s_add_u32 s3, s{sC}, {i}\ns_and_b32 s3, s3, 3\ns_mul_i32 s{CBQ+i}, s3, {112*3584}")
        for i in range(2): p(f"s_add_u32 s3, s{sC}, s4\ns_add_u32 s3, s3, {2*i}\ns_and_b32 s3, s3, 3\ns_mul_i32 s{CB0+i}, s3, {112*2688}\ns_mul_i32 s{CB3+i}, s3, {112*3584}")
        p(f"""
        s_and_b32 s14, s{sP}, 1
        s_mul_i32 s15, s{sP}, 448
        s_mul_i32 s6, s14, 192
        s_add_u32 s7, s6, 128
        s_add_u32 s12, s6, 192
        s_add_u32 s12, s12, s15
        s_sub_u32 s13, 256, s6
        s_lshl_b32 s20, s6, 1
        s_sub_u32 s20, 384, s20
        s_mul_i32 s21, s{sP}, 112
        s_mul_i32 s22, s5, 56
        s_add_u32 s21, s21, s22
        s_movk_i32 s22, 3584
        s_cmp_eq_u32 s{sTY}, 0
        s_cselect_b32 s6, s6, s13
        s_cselect_b32 s7, s7, s20
        s_cselect_b32 s12, s12, s21
        s_cselect_b32 s20, s22, 2688
        s_cselect_b32 s{SW4}, s{SW1}, s{SW0}
        s_cselect_b32 s{SW4+1}, s{SW1+1}, s{SW0+1}
        s_cselect_b32 s{SW4+2}, s{SW1+2}, s{SW0+2}
        s_cselect_b64 s[{CB4}:{CB4+1}], s[{CB3}:{CB3+1}], s[{CB0}:{CB0+1}]
        s_mov_b32 s{SW4+3}, 0x20000
        s_add_u32 s6, s6, s15
        s_add_u32 s7, s7, s15
        s_mul_i32 s13, s5, 896
        s_mul_i32 s3, s{sJ}, 56
        s_add_u32 s13, s13, s3
        s_add_u32 s13, s13, 896
        v_lshrrev_b32 v197, 2, v193
        v_and_b32 v198, 48, v{vL16}
        v_mul_u32_u24 v{vW0}, 2688, v197
        v_add3_u32 v{vW0}, v{vW0}, v198, s13
        v_mul_u32_u24 v{vW3}, 3584, v197
        v_add3_u32 v{vW3}, v{vW3}, v198, s7
        v_mul_u32_u24 v{vW4}, s20, v197
        v_add3_u32 v{vW4}, v{vW4}, v198, s12
        v_lshrrev_b32 v197, 3, v193
        v_bfe_u32 v198, v193, 4, 1
        v_lshlrev_b32 v198, 6, v198
        v_and_b32 v199, 0x70, v{vL16}
        v_xor_b32 v198, v198, v199
        v_mul_u32_u24 v199, 896, v197
        v_add_u32 v{vB2}, v199, v198
        s_lshl_b32 s4, s4, 3
        v_add_u32 v197, s4, v197
        v_mul_u32_u24 v197, 3584, v197
        v_add3_u32 v{vWq}, v197, v198, s6
        s_lshl_b32 s3, s{sH}, 3
        s_add_u32 s3, s3, s{sP}
        s_mul_i32 s{sH}, s3, 18432
        s_lshl_b32 s3, s{sTY}, 13
        s_add_u32 s{sH}, s{sH}, s3
        s_add_u32 s{sH+1}, s{sH}, 4096
        s_add_u32 s{sH+2}, s{sH}, 8192
        s_lshl_b32 s{sKF}, s{sP}, 12
        s_add_u32 s{sKF}, s{sKF}, {WS_KF}
        s_cmp_eq_u32 s{sTY}, 0
        s_cselect_b32 s{sHc}, 0x40000000, s{sH+2}
        s_cselect_b32 s{sKF}, 0x40000000, s{sKF}
        s_lshl_b32 s3, s{sJ}, 16
        s_add_u32 s3, s3, {WS_KVP}
        s_lshl_b32 s4, s{sMI}, 12
        s_add_u32 s{sKR}, s3, s4
        s_lshl_b32 s4, s{sW}, 14
        s_add_u32 s{sKP}, s3, s4
        s_lshl_b32 s4, s{sMI}, 8
        s_add_u32 s{sKP}, s{sKP}, s4
        s_lshl_b32 s{sKFst}, s{sJ}, 11
        s_add_u32 s{sKFst}, s{sKFst}, {WS_KF}
        s_lshr_b32 s3, s{sMI}, 3
        s_lshl_b32 s3, s3, 10
        s_add_u32 s{sKFst}, s{sKFst}, s3
        s_bfe_u32 s3, s{sMI}, 0x10002
        s_lshl_b32 s3, s3, 3
        s_add_u32 s{sKFst}, s{sKFst}, s3
        s_and_b32 s3, s{sMI}, 3
        s_lshl_b32 s3, s3, 2
        s_add_u32 s3, s3, s{sW}
        s_lshl_b32 s3, s3, 6
        s_add_u32 s{sKFst}, s{sKFst}, s3
        s_mov_b32 s{sOLO}, 0x3f80
        s_mov_b32 s{sOHI}, 0x3f800000
        s_mov_b32 s{sONES}, 0x3f803f80
        s_mov_b32 s{MONE}, 0x10000000
        s_mov_b32 s{MONE+1}, 0x10000000
        s_mov_b32 s{MHI}, 0
        s_mov_b32 s{MHI+1}, -1
        s_add_u32 s{sT}, s{sMB}, s{sNB}
        """)
        for pp in range(2):
            p(f"""
            s_add_u32 s3, s{sT}, {pp}
            s_and_b32 s3, s3, 1
            s_mul_i32 s{sT3}, s3, {96*896}
            s_lshl_b32 s{sT2}, s{sW}, 1
            s_add_u32 s3, s3, s{sT2}
            s_mul_i32 s{sT2}, s3, {224*896}
            s_add_u32 s{sBA+pp}, s{sT2}, s{sT3}
            s_sub_u32 s{sBL+pp}, s{sT2}, s{sT3}
            s_sub_u32 s{sBH+pp}, s{sBL+pp}, s{sT3}
            s_add_u32 s{sBL+pp}, s{sBL+pp}, {128*896}
            s_add_u32 s{sBH+pp}, s{sBH+pp}, {192*896}
            s_mul_i32 s{sBO+pp}, s3, {56*896}
            s_lshl_b32 s{sA+pp}, s{sMB}, 4
            s_add_u32 s{sA+pp}, s{sA+pp}, s3
            s_mul_i32 s{sA+pp}, s{sA+pp}, 18432
            """)
        p(f"""
        s_mul_i32 s{sOUT}, s{sMB}, {64*896}
        s_lshl_b32 s{sNB}, s{sNB}, 7
        s_add_u32 s{sOUT}, s{sOUT}, s{sNB}
        v_add_u32 v{vB2}, s{sNB}, v{vB2}
        v_lshrrev_b32 v197, 5, v193
        v_bfe_u32 v198, v193, 2, 2
        v_bfe_u32 v199, v193, 4, 1
        v_and_b32 v200, 3, v193
        v_lshlrev_b32 v200, 3, v200
        v_lshl_add_u32 v200, v199, 5, v200
        v_lshl_add_u32 v201, v197, 3, v198
        v_lshl_add_u32 v{vTR}, v201, 6, v200
        v_add_u32 v{vTR+1}, {2*SLOT}, v{vTR}
        v_add_u32 v{vTR+2}, {4*SLOT}, v{vTR}
        v_bfe_u32 v199, v193, 3, 1
        v_lshl_add_u32 v200, v199, 6, v200
        v_lshl_add_u32 v200, v198, 7, v200
        v_mul_u32_u24 v201, 14336, v197
        v_add_u32 v{vTQ}, v200, v201
        v_add_u32 v{vTQ+1}, {2*SLOT}, v{vTQ}
        v_add_u32 v{vTQ+2}, {4*SLOT}, v{vTQ}
        v_xor_b32 v{vTQ+3}, 64, v{vTQ}
        v_xor_b32 v{vTQ+4}, 64, v{vTQ+1}
        v_xor_b32 v{vTQ+5}, 64, v{vTQ+2}
        v_lshl_add_u32 v{vPOLL}, v197, 9, v200
        v_and_b32 v198, 31, v193
        v_bfe_u32 v199, v193, 1, 3
        v_xor_b32 v199, v199, v197
        v_lshlrev_b32 v199, 4, v199
        v_lshl_add_u32 v199, v198, 7, v199
        v_add_u32 v199, s{sXM}, v199
        s_mul_i32 s{sT}, s{sC}, 7
        s_and_b32 s{sT}, s{sT}, 3
        """)
        for m in range(4):
            p(f"""
            s_add_u32 s{sT2}, s{sT}, {m}
            s_and_b32 s{sT3}, s{sT2}, 3
            s_lshl_b32 s{sT3}, s{sT3}, 5
            v_xor_b32 v{204+m}, s{sT3}, v199
            s_lshr_b32 s{sT2}, s{sT2}, 2
            s_lshl_b32 s{sT3}, s{sT2}, 12
            v_add_u32 v{204+m}, s{sT3}, v{204+m}
            s_mul_i32 s{sT3}, s{sT2}, {7*4096}
            v_subrev_u32 v{212+m}, s{sT3}, v{204+m}
            """)
        p(f"""
        s_lshl_b32 s{sT2}, s{sW}, 7
        s_add_u32 s{sT2}, s{sT2}, {STAT}
        v_lshl_add_u32 v{vSTR}, v197, 4, s{sT2}
        v_lshl_add_u32 v230, v198, 2, s{sT2}
        s_lshl_b32 s{sT2}, s{sW}, 12
        s_add_u32 s{sT2}, s{sT2}, {KVX}
        v_add_u32 v{vKXW}, s{sT2}, v{vL16}
        s_lshl_b32 s{sT2}, s{sW}, 10
        s_add_u32 s{sT2}, s{sT2}, {KVX}
        v_add_u32 v{vKXR}, s{sT2}, v{vL16}
        v_lshrrev_b32 v200, 4, v193
        v_and_b32 v201, 0xf0, v{vL16}
        v_lshl_add_u32 v{vKP}, v200, 12, v201
        v_lshrrev_b32 v200, 2, v193
        v_and_b32 v201, 48, v{vL16}
        v_lshl_add_u32 v200, v200, 8, v201
        s_lshl_b32 s{sT2}, s{sW}, 6
        v_add_u32 v{vKR}, s{sT2}, v200
        v_cmp_eq_u32 vcc, 0, v193
        v_mov_b32 v{vONE}, 1
        v_cndmask_b32 v{vZ}, v{vZ}, 0, vcc
        v_lshlrev_b32 v{vL4}, 2, v193
        v_lshlrev_b32 v{vPA31}, 2, v198
        v_mov_b32 v208, 0
        v_mov_b32 v209, 0
        v_mov_b32 v210, 0
        v_mov_b32 v211, 0
        v_mov_b32 v216, -1
        v_mov_b32 v217, -1
        v_mov_b32 v218, -1
        v_mov_b32 v219, -1
        """)
        p(s.stamp("setup_done",1))
        clr=[I(f"buffer_store_dwordx4 v[216:219], v{vKP}, {srd(SWS)}, s{sKP} offen sc1"),
             I(f"buffer_store_dwordx2 v[216:217], v{vKFs}, {srd(SWS)}, s{sKFst} offen sc1")]
        s.i_sent=4 if s.o("sentC",0) else 6
        hc=[]
        for i in range(s.i_sent,10):
            hc.append(f"buffer_store_dwordx4 {v(vP,4)}, v{vL16}, {srd(SWS)}, s{sH+i//4 if i<8 else sHc} offen offset:{(i%4)*1024} sc1")
        s.hclr=[I(f"v_mov_b32 v{vP+k}, -1") for k in range(4)]+[I(t) for t in hc]
        def stats(G):
            for q in range(4):
                for r in range(4):
                    x=X+(G*4+q)*4+r
                    p(f"v_dot2_f32_bf16 v{208+(r&1)}, v{x}, s{sONES}, v{208+(r&1)}")
                    p(f"v_dot2_f32_bf16 v{210+(r&1)}, v{x}, v{x}, v{210+(r&1)}")
        prev=None; todo=[xdma(P) for P in range(NX0,7)]+[s.wdma("k0")]
        todo+=[clr]
        for G in range(7):
            if todo: p(todo.pop(0))
            p(W(vm=tok_x[min(G+1,6)]))
            p(s.stamp(f"x{G}",1))
            for q in range(4):
                tk=p(f"ds_read_b128 {v(X+(G*4+q)*4,4)}, v{(204 if G<6 else 212)+q} offset:{G*4096}")
            if prev is not None:
                p(W(lg=prev)); stats(G-1)
            prev=tk
        for t in todo: p(t)
        s.tok_clr=clr[-1]
        p(W(lg=0))
        p(s.stamp("x_in_regs"))
        p("s_barrier")
        p(f"s_or_b32 s{sT}, s{sWG}, s{sW}\ns_cmp_lg_u32 s{sT}, 0\ns_cbranch_scc1 L_nogo")
        p(I(f"buffer_store_dword v{vONE}, v{vZ}, {srd(SD)}, 0 offen offset:128 sc1", count=False))
        p("L_nogo:")
        p(s.wdma("k1"))
        p(f"""
        s_lshl_b32 s{sT}, s{sMI}, 2
        s_add_u32 s{sT}, s{sT}, s{sW}
        s_lshr_b32 s{sT2}, s{sT}, 1
        s_lshl_b32 s{sT2}, s{sT2}, 2
        s_lshr_b32 s{sT3}, s{sJ}, 2
        s_add_u32 s{sT2}, s{sT2}, s{sT3}
        s_lshl_b32 s{sFHst}, s{sT2}, 7
        s_and_b32 s{sT}, s{sT}, 1
        s_lshl_b32 s{sT}, s{sT}, 2
        s_and_b32 s{sT3}, s{sJ}, 3
        s_add_u32 s{sT}, s{sT}, s{sT3}
        s_lshl_b32 s{sT}, s{sT}, 2
        s_add_u32 s{sFHst}, s{sFHst}, s{sT}
        s_add_u32 s{sFHst}, s{sFHst}, {WS_FH}
        s_lshl_b32 s{sFHld}, s{sMB}, 2
        s_add_u32 s{sFHld}, s{sFHld}, s{sW}
        s_lshl_b32 s{sFHld}, s{sFHld}, 7
        s_add_u32 s{sFHld}, s{sFHld}, {WS_FH}
        s_cmp_eq_u32 s{sV2}, 0
        s_cselect_b32 s{sFHld}, {WS_FH}, s{sFHld}
        s_lshl_b32 s{sFKld}, s{sP}, 7
        s_add_u32 s{sFKld}, s{sFKld}, {WS_FK}
        s_lshl_b32 s{sT}, s{sTY}, 4
        s_add_u32 s{sT}, s{sT}, s{sMI}
        s_lshl_b32 s{sT}, s{sT}, 2
        s_add_u32 s{sFKst}, s{sFKld}, s{sT}
        """)
        p(f"s_cmp_eq_u32 s{sTY}, 0")
        for i in range(7): p(f"s_cselect_b32 s{C26+i}, s{C35+i}, s{C26+i}")
        stats(6)
        p(f"""
        v_add_f32 v208, v208, v209
        v_add_f32 v210, v210, v211
        v_mov_b32 v209, v208
        v_mov_b32 v211, v210
        v_subrev_u32 v{vB}, 6144, v{vB2}
        v_add_u32 v{vB}, 6144, v{vB}
        v_permlane32_swap_b32 v208, v209
        v_permlane32_swap_b32 v210, v211
        v_add_f32 v208, v208, v209
        v_add_f32 v210, v210, v211
        v_mul_f32 v208, {fb(1/448)}, v208
        v_mul_f32 v210, {fb(1/448)}, v210
        v_fma_f32 v210, -v208, v208, v210
        v_max_f32 v210, 0, v210
        v_add_f32 v{vV}, {fb(1e-5)}, v210
        v_rsq_f32 v{vS}, v{vV}
        v_add_u32 v{vB2}, 6144, v{vB2}
        v_mul_f32 v{vK0}, {fb(K0C)}, v{vS}
        v_mul_f32 v{vC2}, {fb(LOG2E)}, v{vS}
        v_mul_f32 v209, v{vS}, v{vS}
        v_mul_f32 v209, v209, v{vS}
        v_mul_f32 v{vK1}, {fb(K1C)}, v209
        ds_write_b32 v230, v{vS}
        """)
        dm=[]
        for nm in s.o("cdma",["Q0"]): dm+=s.wdma(nm)
        nd=sum(1 for x in dm if x.kind=="vmem"); di=0; iss=0
        for g in range(57):
            x0=X+g*2; bk=212+4*(g&1); pb=212+4*((g+1)&1)
            if g<56:
                p(f"v_dot2_f32_bf16 v{bk}, v{x0}, s{sOLO}, v208 neg_lo:[0,0,1]")
                p(f"v_dot2_f32_bf16 v{bk+1}, v{x0}, s{sOHI}, v208 neg_lo:[0,0,1]")
                p(f"v_dot2_f32_bf16 v{bk+2}, v{x0+1}, s{sOLO}, v208 neg_lo:[0,0,1]")
                p(f"v_dot2_f32_bf16 v{bk+3}, v{x0+1}, s{sOHI}, v208 neg_lo:[0,0,1]")
            if g>0:
                p(f"v_cvt_pk_bf16_f32 v{x0-2}, v{pb}, v{pb+1}"); p(f"v_cvt_pk_bf16_f32 v{x0-1}, v{pb+2}, v{pb+3}")
            while di<len(dm) and iss<nd*(g+1)/57:
                p(dm[di]); iss+=dm[di].kind=="vmem"; di+=1
        assert di==len(dm)
        p(s.stamp("centered"))
    def hstore(s, P, i):
        x=I(f"buffer_store_dwordx4 {v(P,4)}, v{vL16}, {srd(SWS)}, s{sH+i//4} offen offset:{(i%4)*1024} sc1"); s.tok_h[i]=x; return x
    def flagst(s, val, tok):
        return [W(vm=tok), I(f"v_mov_b32 v{vONE}, {val}"), I(f"buffer_store_dword v{vONE}, v{vZ}, {srd(SWS)}, s{sFHst} offen sc1")]
    def poll(s, val):
        t=f"buffer_load_dword v{vPOLL+1}, v{vPA7}, {srd(SWS)}, s{sFHld} offen sc1"
        ld=I(t); return ld, [W(vm=ld)]+s.retry([f"v_cmp_gt_u32 vcc, {val}, v{vPOLL+1}"], [t])
    def gelu(s, G, U, n, i0):
        L=[]
        for f in range(n//8):
            P=vP+4*(f&1)
            for h in range(2):
                r=[f*8+h*4+k for k in range(4)]
                L+=[I(f"v_mul_f32 v{vT+k}, v{G+r[k]}, v{G+r[k]}") for k in range(4)]
                L+=[I(f"v_fma_f32 v{vT+k}, v{vT+k}, v{vK1}, v{vK0}") for k in range(4)]
                L+=[I(f"v_mul_f32 v{vT+k}, v{vT+k}, v{G+r[k]}") for k in range(4)]
                L+=[I(f"v_exp_f32 v{vT+k}, v{vT+k}") for k in range(4)]
                L+=[I(f"v_mul_f32 v{G+r[k]}, v{G+r[k]}, v{U+r[k]}") for k in range(4)]
                L+=[I(f"v_fma_f32 v{vT+k}, v{vT+k}, v{vV}, v{vV}") for k in range(4)]
                L+=[I(f"v_rcp_f32 v{vT+k}, v{vT+k}") for k in range(4)]
                L+=[I(f"v_mul_f32 v{G+r[k]}, v{G+r[k]}, v{vT+k}") for k in range(4)]
                L+=[I(f"v_cvt_pk_bf16_f32 v{P+2*h+k}, v{G+r[2*k]}, v{G+r[2*k+1]}") for k in range(2)]
            L.append(s.hstore(P,i0+f))
        return L
    def kv_epi(s):
        K=ACC; V=ACC+16; S=192; PK=208; PV=216; L=[]
        rd=[I(f"ds_read_b128 {v(S+4*i,4)}, v{vSTR} offset:{32*i}") for i in range(4)]
        L+=rd+[W(lg=rd[-1])]
        for h in range(4):
            r=[4*h+k for k in range(4)]
            L+=[I(f"v_mul_f32 v{K+x}, v{K+x}, v{S+x}") for x in r]
            L+=[I(f"v_min_f32 v{vT+k}, 0, v{K+r[k]}") for k in range(4)]
            L+=[I(f"v_mul_f32 v{vT+k}, {fb(LOG2E)}, v{vT+k}") for k in range(4)]
            L+=[I(f"v_exp_f32 v{vT+k}, v{vT+k}") for k in range(4)]
            L+=[I(f"v_max_f32 v{K+x}, 0, v{K+x}") for x in r]
            L+=[I(f"v_add_f32 v{K+r[k]}, v{K+r[k]}, v{vT+k}") for k in range(4)]
            L+=[I(f"v_add_f32 v{K+x}, {fb(1e-6)}, v{K+x}") for x in r]
            L+=[I(f"v_mul_f32 v{V+x}, v{V+x}, v{S+x}") for x in r]
            L+=[I(f"v_cvt_pk_bf16_f32 v{PK+2*h+k}, v{K+r[2*k]}, v{K+r[2*k+1]}") for k in range(2)]
            L+=[I(f"v_cvt_pk_bf16_f32 v{PV+2*h+k}, v{V+r[2*k]}, v{V+r[2*k+1]}") for k in range(2)]
        L+=[I(f"v_mov_b32 v{vT}, s{sONES}")]
        L+=[I(f"v_cndmask_b32 v{PV+k}, v{PV+k}, v{vT}, s[{MONE}:{MONE+1}]") for k in range(8)]
        M=[I(f"v_mfma_f32_32x32x16_bf16 {v(K,16)}, {v(PK,4)}, {v(PV,4)}, 0"),
           I(f"v_mfma_f32_32x32x16_bf16 {v(K,16)}, {v(PK+4,4)}, {v(PV+4,4)}, {v(K,16)}")]
        Wr=[I(f"ds_write_b128 v{vKXW}, {v(K+4*q,4)} offset:{q*1024}") for q in range(4)]
        rd2=[I(f"ds_read_b128 {v(S+4*q,4)}, v{vKXR} offset:{q*4096}") for q in range(4)]
        R=rd2+[W(lg=rd2[-1])]
        R+=[I(f"v_add_f32 v{S+k}, v{S+k}, v{S+4+k}") for k in range(4)]
        R+=[I(f"v_add_f32 v{S+8+k}, v{S+8+k}, v{S+12+k}") for k in range(4)]
        R+=[I(f"v_add_f32 v{S+k}, v{S+k}, v{S+8+k}") for k in range(4)]
        R.append(I(f"buffer_store_dwordx4 {v(S,4)}, v{vKP}, {srd(SWS)}, s{sKP} offen sc1"))
        return L,M,Wr,R
    def chk(s, regs):
        t=[f"v_max3_u32 v230, v{regs[0]}, v{regs[1]}, v{regs[2]}"]; r=regs[3:]
        if len(regs)>=8: t.append(f"v_max3_u32 v231, v{r[0]}, v{r[1]}, v{r[2]}"); r=r[3:]
        else: t.append(f"v_mov_b32 v231, v{r[0]}"); r=r[1:]
        k=0
        while r:
            t.append(f"v_max3_u32 v{230+k}, v{230+k}, v{r[0]}, v{r[1]}"); r=r[2:]; k^=1
        return t+["v_max_u32 v230, v230, v231","v_cmp_eq_u32 vcc, -1, v230"]
    def kv_l1(s):
        t=f"buffer_load_dwordx4 v[192:195], v{vKR}, {srd(SWS)}, s{sKR} offen sc1"; ld=I(t)
        L=[W(vm=ld)]+s.retry(s.chk([192,193,194,195]),[t])
        for rot in (4,8): L+=[I(f"v_add_f32_dpp v{192+k}, v{192+k}, v{192+k} row_ror:{rot} row_mask:0xf bank_mask:0xf") for k in range(4)]
        for sw in ("v_permlane16_swap_b32","v_permlane32_swap_b32"):
            L+=[I(f"v_mov_b32 v{196+k}, v{192+k}") for k in range(4)]
            L+=[I(f"{sw} v{192+k}, v{196+k}") for k in range(4)]
            L+=[I(f"v_add_f32 v{192+k}, v{192+k}, v{196+k}") for k in range(4)]
        L+=[I("v_cvt_pk_bf16_f32 v196, v192, v193"), I("v_cvt_pk_bf16_f32 v197, v194, v195"),
            I(f"buffer_store_dwordx2 v[196:197], v{vKFs}, {srd(SWS)}, s{sKFst} offen sc1")]
        return ld,L
    def aload_txt(s, n):
        pp,i=kmap(n); L=[]
        so=f"s{sA+pp}"
        if i>=4: L.append(f"s_add_u32 s{sT2}, s{sA+pp}, {(i//4)*4096}"); so=f"s{sT2}"
        return L+[f"buffer_load_dwordx4 {s.areg(n,mb)}, v{vL16 if mb==0 else s.vA1}, {srd(SWS)}, {so} offen offset:{(i%4)*1024} sc1" for mb in range(2)]
    def areg(s,n,mb=None):
        b=X+8*(n%14)
        return list(range(b,b+8)) if mb is None else v(b+4*mb,4)
    def aload(s, n):
        L=[I(t) for t in s.aload_txt(n)]; s.tok_a[n]=L[-1]; return L
    def trd(s, g):
        P=g>>1; u=g&1; ps=P//28; pos=P%28
        dst=(P%4)*8+u*4; L=[]
        for t in range(2):
            if ps in (1,2):
                slot=[2,3,4,0][pos//7]
                L.append(I(f"ds_read_b64_tr_b16 {a(dst+2*t,2)}, v{vTQ+3*(ps-1)+slot//2} offset:{(slot&1)*SLOT+u*7168+(pos%7)*1024+t*512}"))
            else:
                slot={0:0,3:1,4:3}[ps]+pos//14; pl=pos%14
                L.append(I(f"ds_read_b64_tr_b16 {a(dst+2*t,2)}, v{vTR+slot//2} offset:{(slot&1)*SLOT+(u+2*(pl//7))*7168+(pl%7)*1024+t*256}"))
        return L
    def phase1(s):
        p=s.p; s.tok_a={}; s.tok_h={}; s.vA1=198; o=s.o; segs=[]
        def seg(g0,g1,L): segs.append([g0,g1,list(L),0])
        sched=o("wsched",{"Q1":(0,20),"Q2":(25,40),"Q3":(40,58),"h0":(70,100),"h1":(123,135),"f0":(137,149),"f1":(151,161)})
        for nm,(g0,g1) in sched.items(): seg(g0,g1,s.wdma(nm))
        seg(*o("hclr",(4,40)),s.hclr)
        s.tok_w["clr"]=s.tok_clr
        conf={24:["k1"],52:["Q0","Q1","clr"],80:["Q2","Q3"],164:["h0"],192:["h1"],220:["f0"],248:["f1"]}
        e1,eM,eW,eR=s.kv_epi(); ke=o("kvbar",108)
        seg(58,ke-12,e1); seg(ke-11,ke-10,eM[:1]); seg(ke-9,ke-8,eM[1:]); seg(ke-4,ke-1,eW); seg(ke+1,ke+8,eR)
        seg(116,166,s.gelu(ACC+32,ACC+48,16,0))
        seg(172,222,s.gelu(ACC,ACC+16,16,2))
        seg(228,o("g3end",274),s.gelu(ACC+32,ACC+48,16,4))
        gt=f"buffer_load_dword v{vPOLL+1}, off, {srd(SD)}, 0 offset:128 sc1"; gld=I(gt)
        seg(1,2,[gld])
        seg(53,54,[W(vm=gld)]+s.retry([f"v_cmp_eq_u32 vcc, 0, v{vPOLL+1}"],[gt])+[I(f"s_cmp_lg_u32 s{sW}, 0"),I(f"s_cselect_b32 s{sT}, 0x40000000, s{sFKst}"),
            I(f"buffer_store_dword v{vONE}, v{vZ}, {srd(SWS)}, s{sT} offen sc1")])
        ct=f"buffer_load_dword v{vPOLL+1}, v{vPA31}, {srd(SWS)}, s{sFKld} offen sc1"; cld=I(ct)
        gk=o("gkv",166); kld,kred=s.kv_l1()
        seg(gk-45,gk-44,[cld]); seg(gk-1,gk,[W(vm=cld)]+s.retry([f"v_cmp_eq_u32 vcc, 0, v{vPOLL+1}"],[ct])+[kld])
        seg(o("gfa",212),o("gfa",212)+1,s.flagst(1,[s.tok_h[1],s.hclr[-1]]))
        seg(o("gfb",268),o("gfb",268)+1,s.flagst(2,s.tok_h[3]))
        plA,pcA=s.poll(1); seg(o("gpa",250),o("gpa",250)+1,[I(f"v_and_b32 v{vPA7}, 28, v{vL4}"),plA])
        nt=o("ntouch",3); tsh=o("tshift",6)
        T=lines(f"""
        s_mov_b32 s{SWD}, s16
        s_and_b32 s{SWD+1}, s17, 0xffff
        s_mov_b32 s{SWD+2}, {1792*896}
        s_lshr_b32 s{sC}, s{sWG}, 3
        s_lshl_b32 s{sC}, s{sC}, 2
        s_add_u32 s{sC}, s{sC}, s{sW}
        s_mul_i32 s{sT3}, s{sC}, 12544
        s_mul_i32 s{sC}, s{sC}, 3136
        v_lshlrev_b32 v{vTCH}, {tsh-4}, v{vL16}
        """)
        for k in range(nt): T+=[I(f"buffer_load_dword a255, v{vTCH}, {srd(SWD)}, s{sT3} offen",tag="dummy"), I(f"s_add_u32 s{sT3}, s{sT3}, {64<<tsh}")]
        seg(*o("gtouch",(59,112)),T)
        if nt: seg(164,165,[I(f"buffer_load_dword a255, v{vTCH}, {srd(SWO)}, s{sC} offen",tag="dummy")])
        seg(o("gred",196),o("gred",196)+10,kred)
        kft=[f"buffer_load_dwordx4 {v(200+4*q,4)}, v{vL16}, {srd(SWS)}, s{sKF} offen offset:{q*1024} sc1" for q in range(4)]
        kf=[I(t) for t in kft]; seg(o("gkf",252),o("gkf",252)+4,kf)
        seg(161,164,lines(f"""
        s_mul_i32 s{SWD+2}, s{sV2}, {1792*896}
        s_mov_b32 s{SWO}, s8
        s_and_b32 s{SWO+1}, s9, 0xffff
        s_mul_i32 s{SWO+2}, s{sV2}, {448*896}
        s_mov_b32 s{SOUT}, s18
        s_and_b32 s{SOUT+1}, s19, 0xffff
        s_mov_b32 s{SOUT+2}, {2048*896}
        """))
        seg(166,170,lines(f"""
        v_add_u32 v{vBT}, s{sWB2}, v{vPOLL}
        v_xor_b32 v{vBT+1}, 64, v{vBT}
        v_add_u32 v{vBT+2}, 0x10000, v{vBT}
        v_add_u32 v{vBT+3}, 0x10000, v{vBT+1}
        v_add_u32 v{vBT+4}, 0x20000, v{vBT}
        v_add_u32 v{vBT+5}, 0x20000, v{vBT+1}
        """))
        NR=s.NR=o("NR",17); pace=o("bpace",3.3); lag=o("blag",30); t=165.0
        free={e:(ENT_FREE[e]+1,None) for e in range(len(ENT))}; late=[]
        for n in range(36):
            if not free: s.nbl=n; break
            e=min(free,key=lambda k:(max(free[k][0],t),k)); tt=max(free[e][0],t); tok=free.pop(e)[1]
            L=([W(lg=tok)] if tok else [])+s.bdma(n,e)
            if tt<279: seg(int(tt),int(tt)+2,L)
            else: late.append((tt,L))
            if n<NR:
                R=[W(vm=s.tok_b[n])]+[s.btr(n,q,aB+8*n) for q in range(4)]
                if tt+lag<278: seg(int(tt+lag),int(tt+lag)+2,R)
                else: late.append((tt+lag,R))
                free[e]=(tt+lag+3,R[-1])
            t=tt+pace
        late.sort(key=lambda x:x[0])
        p(W(vm=s.tok_w["k0"])); p("s_barrier")
        p(s.stamp("B0",1))
        rd={}
        for g in range(4):
            rd[g]=s.trd(g); p(rd[g])
        for g in range(280):
            P=g>>1; u=g&1; ps=P//28; pos=P%28
            if u==0: p(W(lg=rd[g+1][-1]))
            D=ACC+32*(ps&1)+16*u; fr=a((P%4)*8+u*4,4); xr=v(X+4*pos,4); C=v(D,16) if pos else "0"
            if ps==0: p(f"v_mfma_f32_32x32x16_bf16 {v(D,16)}, {xr}, {fr}, {C}")
            else: p(f"v_mfma_f32_32x32x16_bf16 {v(D,16)}, {fr}, {xr}, {C}")
            if g in BARS:
                p(W(vm=[s.tok_w[x] for x in conf[g]], lg=0) if g in conf else W(lg=0))
                p("s_barrier")
                p(s.stamp(f"g{g}", g not in (52,108,164,220,276)))
            if g+4<280:
                rd[g+4]=s.trd(g+4); p(rd[g+4])
            for sgm in segs:
                g0,g1,L,done=sgm
                if g<g0 or done>=len(L): continue
                tot=sum(x.cost for x in L); tgt=tot*(g-g0+1)/(g1-g0) if g<g1-1 else tot+1
                acc=sum(x.cost for x in L[:done])
                while done<len(L) and (acc<tgt or L[done].kind=="label"):
                    p(L[done]); acc+=L[done].cost; done+=1
                sgm[3]=done
        assert all(x[3]==len(x[2]) for x in segs)
        p(s.stamp("p1_mfma_done"))
        p(f"v_add_u32 v{s.vA1}, {8*18432}, v{vL16}")
        p(f"s_cmp_eq_u32 s{sV2}, 0\ns_cselect_b32 s{sT2}, 0x40000000, 0\ns_add_u32 s{sA}, s{sA}, s{sT2}\ns_add_u32 s{sA+1}, s{sA+1}, s{sT2}")
        p(pcA); p(s.stamp("flagA",1))
        for n in range(8): p(s.aload(n))
        s.plB,s.pcB=s.poll(2); p(s.plB)
        tokC=s.tok_h[5]
        nl=o("late0",2)
        for _,L in late[:nl]: p(L)
        s.late=late[nl:]
        p(f"s_cmp_lg_u32 s{sTY}, 0\ns_cbranch_scc1 L_tailB")
        LA=s.gelu(ACC,ACC+16,16,6)
        for x in LA:
            if x.kind=="vmem": x.count=False
        p(LA); p("s_branch L_tailE"); p("L_tailB:")
        PQ=[216,vP];
        for hh in range(2):
            Q=ACC+16*hh
            for h in range(4):
                r=[4*h+k for k in range(4)]
                p([I(f"v_mul_f32 v{vT+k}, v{Q+r[k]}, v{vC2}") for k in range(4)])
                p([I(f"v_min_f32 v{vT+k}, 0, v{vT+k}") for k in range(4)])
                p([I(f"v_exp_f32 v{vT+k}, v{vT+k}") for k in range(4)])
                p([I(f"v_max_f32 v{Q+x}, 0, v{Q+x}") for x in r])
                p([I(f"v_fma_f32 v{Q+r[k]}, v{Q+r[k]}, v{vS}, v{vT+k}") for k in range(4)])
                p([I(f"v_add_f32 v{Q+x}, {fb(1e-6)}, v{Q+x}") for x in r])
                p([I(f"v_cvt_pk_bf16_f32 v{PQ[hh]+2*h+k}, v{Q+r[2*k]}, v{Q+r[2*k+1]}") for k in range(2)])
            p([I(f"v_cndmask_b32 v{PQ[hh]+6+k}, v{PQ[hh]+6+k}, 0, s[{MHI}:{MHI+1}]") for k in range(2)])
            if hh==0:
                p(W(vm=kf[-1])); p(s.retry(s.chk(list(range(200,216))),kft))
                p(s.stamp("kf_ok",1))
            N=ACC+32+16*hh
            p(f"v_mfma_f32_32x32x16_bf16 {v(N,16)}, {v(200+8*hh,4)}, {v(PQ[hh],4)}, 0")
            p(f"v_mfma_f32_32x32x16_bf16 {v(N,16)}, {v(204+8*hh,4)}, {v(PQ[hh]+4,4)}, {v(N,16)}")
        for hh in range(2):
            N=ACC+32+16*hh; PO=ACC+8*hh
            p(f"""
            v_mov_b32 v230, v{N+12}
            v_mov_b32 v231, v{N+12}
            v_permlane32_swap_b32 v230, v231
            v_add_f32 v231, {fb(1e-6)}, v231
            v_rcp_f32 v231, v231
            """)
            p([I(f"v_mul_f32 v{N+k}, v{N+k}, v231") for k in range(16)])
            p([I(f"v_cvt_pk_bf16_f32 v{PO+k}, v{N+2*k}, v{N+2*k+1}") for k in range(8)])
            p([I(f"v_cndmask_b32 v{PO+6+k}, v{PO+6+k}, 0, s[{MHI}:{MHI+1}]") for k in range(2)])
            for f in range(2):
                st=s.hstore(PO+4*f,6+2*hh+f); st.count=False; p(st)
        p("L_tailE:")
        p(s.stamp("tail_done"))
        if s.i_sent==6: p(s.flagst(3,tokC))
        p(f"s_cmp_eq_u32 s{sV2}, 0"); p("s_cbranch_scc1 L_fin")
    def phase2(s):
        p=s.p; o=s.o; NR=s.NR
        vXR=204
        p(s.pcB); p(s.stamp("flagB",1))
        for n in range(8,14): p(s.aload(n))
        if s.i_sent==6: plC,pcC=s.poll(3); p(plC)
        for _,L in s.late: p(L)
        p(f"""
        v_lshrrev_b32 v216, 6, v{vL16}
        s_lshl_b32 s{sT}, s{sW}, 4
        v_add_u32 v216, s{sT}, v216
        v_bfe_u32 v217, v{vL16}, 4, 2
        v_mul_u32_u24 v218, 272, v216
        v_lshl_add_u32 v214, v217, 6, v218
        v_mul_u32_u24 v216, 896, v216
        v_lshl_add_u32 v212, v217, 5, v216
        """)
        groups=[(24,27),(27,30),(30,33),(33,36)]
        if s.i_sent==4: groups=[(16,20),(20,24)]+groups
        n_s=groups[0][0]
        def gchk(n0,n1):
            return [W(vm=s.tok_a[n1-1])]+s.retry(s.chk([r for n in range(n0,n1) for r in s.areg(n)]),[t for n in range(n0,n1) for t in s.aload_txt(n)])
        breg=lambda n: aB+8*n if n<NR else (n%4)*8
        rb={}
        p(W(lg=0)); p(s.stamp("p2_start"))
        pend=[]; nxt=14; nC=o("nC",4)
        for n in range(36):
            p(pend); pend=[]
            if n in (8,16,24): p(s.stamp(f"p2_n{n}"))
            if n<n_s and n>=NR: p(W(vm=s.tok_a[n], lg=rb[n]))
            elif n<n_s: p(W(vm=s.tok_a[n]))
            elif n>=NR: p(W(lg=rb[n]))
            for q in range(4):
                nbk,mb=q>>1,q&1; D=ACC+16*q
                p(f"v_mfma_f32_32x32x16_bf16 {v(D,16)}, {a(breg(n)+nbk*4,4)}, {s.areg(n,mb)}, {v(D,16) if n else 0}")
                if NR<=n+1<36:
                    if q==0:
                        p(W(vm=s.tok_b[n+1])); p(s.btr(n+1,0,breg(n+1))); p(s.btr(n+1,1,breg(n+1)))
                    if q==1:
                        p(s.btr(n+1,2,breg(n+1))); rb[n+1]=p(s.btr(n+1,3,breg(n+1)))
                if q==3:
                    if s.i_sent==6 and n==nC: p(pcC); p(s.stamp("flagC",1))
                    k=0
                    while nxt<36 and nxt<=n+14 and k<2 and (s.i_sent==4 or nxt<16 or n>=nC):
                        p(s.aload(nxt)); nxt+=1; k+=1
                    if n==24:
                        xr0=p(f"buffer_load_dwordx4 {v(vXR,4)}, v212, {srd(SX)}, s{sOUT} offen")
                        xr1=p(f"buffer_load_dwordx4 {v(vXR+4,4)}, v212, {srd(SX)}, s{sOUT} offen offset:16")
                ng=[g for g in groups if g[0]==n+1]
                if ng:
                    if q==0: pend=gchk(*ng[0])
                    k=(len(pend)+3-q)//(4-q) if q<3 else 0
                    if q<3: p(pend[:k]); pend=pend[k:]
        p(s.stamp("p2_mfma_done"))
        p("s_barrier")
        p(f"""
        v_bfe_u32 v216, v{vL16}, 4, 5
        v_mul_u32_u24 v216, 272, v216
        v_lshrrev_b32 v217, 9, v{vL16}
        v_lshl_add_u32 v216, v217, 4, v216
        s_mul_i32 s{sT}, s{sW}, 17408
        v_add_u32 v216, s{sT}, v216
        """)
        for q in range(4):
            nbk,mb=q>>1,q&1
            for i in range(4):
                p(f"ds_write_b128 v216, {v(ACC+16*q+4*i,4)} offset:{mb*32*272+nbk*128+i*32}")
        p(W(lg=0)); p("s_barrier")
        rr=[]
        for w in range(4):
            for c in range(4): rr.append(p(f"ds_read_b128 {v(16+16*w+4*c,4)}, v214 offset:{w*17408+c*16}"))
        p(W(vm=xr1))
        for k in range(8):
            p(f"v_lshlrev_b32 v{80+2*k}, 16, v{vXR+k}"); p(f"v_and_b32 v{81+2*k}, 0xffff0000, v{vXR+k}")
        p(W(lg=rr[7]))
        for k in range(8): p(f"v_pk_add_f32 {v(16+2*k,2)}, {v(16+2*k,2)}, {v(32+2*k,2)}")
        p(W(lg=rr[15]))
        for k in range(8): p(f"v_pk_add_f32 {v(48+2*k,2)}, {v(48+2*k,2)}, {v(64+2*k,2)}")
        for k in range(8): p(f"v_pk_add_f32 {v(16+2*k,2)}, {v(16+2*k,2)}, {v(80+2*k,2)}")
        for k in range(8): p(f"v_pk_add_f32 {v(16+2*k,2)}, {v(16+2*k,2)}, {v(48+2*k,2)}")
        for k in range(8): p(f"v_cvt_pk_bf16_f32 v{96+k}, v{16+2*k}, v{17+2*k}")
        p(f"buffer_store_dwordx4 v[96:99], v212, {srd(SOUT)}, s{sOUT} offen sc1")
        p(f"buffer_store_dwordx4 v[100:103], v212, {srd(SOUT)}, s{sOUT} offen offset:16 sc1")
        p("L_fin:")
        if s.stamps:
            p(W(vm=0)); p(s.stamp("end"))
            p(f"s_lshl_b32 s{sT}, s{sMI}, 4\ns_add_u32 s{sT}, s{sT}, s{sJ}\ns_lshl_b32 s{sT}, s{sT}, 2\ns_add_u32 s{sT}, s{sT}, s{sW}\ns_lshl_b32 s{sT}, s{sT}, 8\ns_add_u32 s{sT}, s{sT}, {WS_ST}")
            p(f"buffer_store_dword v0, v{vL4}, {srd(SWS)}, s{sT} offen")
            if s.o("dbgwg",None) is not None:
                p(f"s_memrealtime s[{sSTMP}:{sSTMP+1}]\ns_waitcnt lgkmcnt(0)\nv_readlane_b32 s{sSPIN}, v0, 63\ns_nop 3\ns_sub_u32 s{sSTMP}, s{sSTMP}, s{sSPIN}\nv_readlane_b32 s{sSPIN}, v0, 0\ns_nop 3\nv_subrev_u32 v0, s{sSPIN}, v0\nv_writelane_b32 v0, s{sSTMP}, 0")
                p(f"s_cmp_lg_u32 s{sT}, {WS_ST+s.o('dbgwg',0)*256}\ns_cbranch_scc1 L_end\ns_mov_b64 exec, 0xffff")
                p(f"buffer_store_dword v0, v{vL4}, {srd(SD)}, 0 offen")
        if s.o("fixspan",0):
            p(W(vm=0)); p(f"v_readfirstlane_b32 s{sT}, v0\nL_fix:\ns_memrealtime s[{sSTMP}:{sSTMP+1}]\ns_waitcnt lgkmcnt(0)\ns_sub_u32 s{sSTMP}, s{sSTMP}, s{sT}\ns_cmp_lt_u32 s{sSTMP}, {s.opt['fixspan']}\ns_cbranch_scc1 L_fix")
        p("L_end:"); p("s_endpgm")
    def build(s):
        s.prologue(); s.phase1(); s.phase2()
        s.p.add(s.ool); s.p("L_codeend:")
        for pat in s.o("drop",[]):
            for x in s.p.L:
                if pat in x.text: x.text="; dropped"; x.kind="dir"; x.R=[]; x.W=[]; x.op=""; x.lds=False
        s.p.resolve()
        if s.o("nocomp",0):
            fl=("v_mul_f32","v_fma_f32","v_add_f32","v_min_f32","v_max_f32","v_cvt_pk","v_pk_","v_accvgpr","v_max3","v_max_u32","v_permlane")
            keep=[]
            for i,x in enumerate(s.p.L):
                if x.kind in("mfma","ds","dot","trans") or x.op.startswith(fl): continue
                if x.op=="s_cbranch_vccnz" and (s.p.L[i-1].op.startswith(("v_cmp_u","v_cmp_eq"))): continue
                keep.append(x)
            s.p.L=keep
        if s.o("nomem",0):
            s.p.L=[x for x in s.p.L if not ((x.kind=="vmem" and "v0, v" not in x.text) or x.op=="s_cbranch_vccnz")]
        s.p.check(fix=True); s.pads=s.p.pads
        errs=s.p.check()
        hdr=f"""; Fused LayerNorm + linear attention + GEGLU FFN + residual, one persistent launch (generated by dev/gen.py)
; @launch grid=(256,1,1) block=(256,1,1) lds={LDS}
.amdgcn_target "amdgcn-amd-amdhsa--gfx950"
.text
.globl {KN}
.p2align 8
.type {KN},@function
{KN}:
"""
        ftr=f""".section .rodata,"a"
.p2align 6
.amdhsa_kernel {KN}
  .amdhsa_next_free_vgpr 512
  .amdhsa_next_free_sgpr 102
  .amdhsa_accum_offset 256
  .amdhsa_group_segment_fixed_size 0
  .amdhsa_kernarg_size 80
  .amdhsa_user_sgpr_count 2
  .amdhsa_user_sgpr_kernarg_segment_ptr 1
  .amdhsa_system_sgpr_workgroup_id_x 1
.end_amdhsa_kernel
"""
        return hdr+s.p.text()+ftr, errs
if __name__=="__main__":
    import argparse
    ap=argparse.ArgumentParser(); ap.add_argument("-o",default="k.s"); ap.add_argument("--stamps",action="store_true"); ap.add_argument("-v",action="store_true"); ap.add_argument("--opt",default="{}")
    ar=ap.parse_args()
    g=Gen(stamps=ar.stamps, **eval(ar.opt)); txt,errs=g.build()
    for e in errs: print("ERR",e)
    if ar.v:
        for x in g.pads: print("pad",x)
    open(ar.o,"w").write(txt)
    print("instrs",len(g.p.L),"errors",len(errs))
    from build import build
    build(ar.o)
```

```python
import re
TRANS = ("v_exp_f32","v_rcp_f32","v_rsq_f32","v_log_f32","v_sqrt_f32","v_sin_f32","v_cos_f32")
def expand(op):
    op = op.strip()
    m = re.fullmatch(r"-?(?:abs\()?([vas])\[(\d+):(\d+)\]\)?", op)
    if m: return [f"{m.group(1)}{i}" for i in range(int(m.group(2)), int(m.group(3))+1)]
    m = re.fullmatch(r"-?(?:abs\()?([vas])(\d+)\)?", op)
    if m: return [f"{m.group(1)}{m.group(2)}"]
    if op in ("vcc","m0","exec"): return [op]
    if op in ("vcc_lo","vcc_hi"): return ["vcc"]
    if op in ("exec_lo","exec_hi"): return ["exec"]
    return []
class Ins:
    __slots__=("text","kind","R","W","count","waitfor","cost","op","srcC","tag","lds")
    def __init__(s, text, count=True, tag=None):
        s.text=text; s.count=count; s.waitfor=None; s.tag=tag; s.srcC=[]; s.lds=False
        t = text.split(";")[0].strip()
        if t.endswith(":") or t.startswith(".") or t=="":
            s.kind="label" if t.endswith(":") else "dir"; s.R=[]; s.W=[]; s.op=t; s.cost=0; return
        sp = t.split(None,1); op=sp[0]; s.op=op
        rest = sp[1] if len(sp)>1 else ""
        rest = re.sub(r"\s+(op_sel|op_sel_hi|neg_lo|neg_hi):\[[^\]]*\]", "", rest)
        ops = [o.strip() for o in rest.split(",")] if rest else []
        if ops:
            last = ops[-1].split(); mods = last[1:]; ops[-1]=last[0] if last else ""
        else: mods=[]
        ex = [expand(o) for o in ops]
        flat = lambda l: [r for x in l for r in x]
        s.cost=1
        base = op.replace("_e32","").replace("_e64","")
        if op.startswith("v_mfma"):
            s.kind="mfma"; s.W=ex[0]; s.R=flat(ex[1:]); s.srcC=ex[3]; s.cost=2
        elif op.startswith("v_"):
            s.kind="valu"; s.W=ex[0]; s.R=flat(ex[1:])
            if base in TRANS: s.kind="trans"; s.cost=2
            if base.startswith("v_dot2"): s.kind="dot"
            if base.startswith("v_permlane"): s.kind="perm"; s.W=flat(ex); s.R=flat(ex)
            if base.startswith(("v_fmac","v_dot2c","v_pk_fmac")): s.R=s.R+s.W
            if base.startswith("v_cndmask") and len(ops)==3: s.R=s.R+["vcc"]
            if base.startswith(("v_add_co","v_sub_co","v_addc_co")): s.W=ex[0]+ex[1]; s.R=flat(ex[2:])
        elif op.startswith("ds_read"):
            s.kind="ds"; s.W=ex[0]; s.R=flat(ex[1:]); s.cost=1.5
        elif op.startswith("ds_"):
            s.kind="ds"; s.W=[]; s.R=flat(ex); s.cost=2
        elif op.startswith(("buffer_load","global_load")):
            s.kind="vmem"
            if "lds" in mods or "_lds_" in op: s.W=[]; s.R=flat(ex)+["m0"]; s.lds=True
            else: s.W=ex[0]; s.R=flat(ex[1:])
        elif op.startswith(("buffer_store","global_store","buffer_atomic","global_atomic")):
            s.kind="vmem"; s.W=[]; s.R=flat(ex)
        elif op.startswith(("s_load","s_memtime","s_memrealtime")):
            s.kind="smem"; s.W=ex[0]; s.R=flat(ex[1:])
        elif op=="s_waitcnt": s.kind="wait"; s.W=[]; s.R=[]
        elif op=="s_barrier": s.kind="barrier"; s.W=[]; s.R=[]
        elif op=="s_nop": s.kind="nop"; s.W=[]; s.R=[]; s.cost=int(ops[0])+1
        elif op.startswith(("s_cbranch","s_branch","s_endpgm","s_sleep","s_setprio")): s.kind="branch"; s.W=[]; s.R=[]
        elif op.startswith(("s_cmp","s_bitcmp")): s.kind="salu"; s.W=["scc"]; s.R=flat(ex)
        elif op.startswith("s_"):
            s.kind="salu"; s.W=ex[0]; s.R=flat(ex[1:])
            if "saveexec" in op: s.W=s.W+["exec"]
        else: raise ValueError("unknown op "+text)
    def states(s):
        if s.kind in("label","dir"): return 0
        if s.kind=="nop": return s.cost
        return 1
def I(text, **kw): return Ins(text, **kw)
def W(vm=None, lg=None, tag=None):
    w = Ins("s_waitcnt vmcnt(0)"); w.waitfor=(vm,lg); w.tag=tag; return w
class Prog:
    def __init__(s): s.L=[]
    def add(s, x):
        if isinstance(x,str):
            for line in x.strip().split("\n"):
                line=line.strip()
                if line: s.L.append(Ins(line))
            return s.L[-1]
        if isinstance(x,(list,tuple)):
            for y in x: s.add(y)
            return s.L[-1] if s.L else None
        s.L.append(x); return x
    __call__=add
    def resolve(s):
        pos={id(x):i for i,x in enumerate(s.L)}
        vmc=[0]; lgc=[0]
        for x in s.L:
            vmc.append(vmc[-1]+(1 if (x.kind=="vmem" and x.count) else 0))
            lgc.append(lgc[-1]+(1 if (x.kind=="ds" and x.count) else 0))
        for i,x in enumerate(s.L):
            if x.waitfor is None: continue
            vm,lg=x.waitfor; parts=[]
            def cnt(tok,c,mx):
                if tok==0: return 0
                tok = tok if isinstance(tok,(list,tuple)) else [tok]
                p=max(pos[id(t)] for t in tok)
                assert p<i, f"wait before producer: {s.L[p].text}"
                n=c[i]-c[p+1]
                return min(n,mx)
            if vm is not None: parts.append(f"vmcnt({cnt(vm,vmc,63)})")
            if lg is not None: parts.append(f"lgkmcnt({cnt(lg,lgc,15)})")
            x.text="s_waitcnt "+" ".join(parts)
    def check(s, fix=False):
        errs=[]; L=s.L; out=[]; s.pads=[]
        last={}
        st=0; hist=[]
        vmq=[]; lgq=[]; smem=[]
        for idx,x in enumerate(L):
            if x.kind in("label","dir"):
                out.append(x); continue
            short=0
            R=set(x.R); Wr=set(x.W)
            isvalu = x.kind in("valu","trans","dot","perm")
            for (pst,p) in reversed(hist[-24:]):
                d=st-pst-p.states()+0
                if d>=20: break
                pW=set(p.W); need=0; why=""
                pv = p.kind in("valu","trans","dot","perm")
                def f(n,w):
                    nonlocal need,why
                    if n>need: need,why=n,w
                if p.kind=="mfma":
                    n = 12 if "32x32" in p.op else 8
                    if x.kind=="mfma":
                        ab=set(x.R)-set(x.srcC)
                        if pW & ab: f(n,"mfma D->AB")
                        if pW & set(x.srcC) and set(x.srcC)!=pW: f(n-2,"mfma D->partial C")
                        if pW & Wr and not (pW & set(x.srcC)): f(n,"mfma D WAW")
                    elif (isvalu or x.kind in("vmem","ds")) and (pW & (R|Wr)): f(n,"mfma D->valu/mem")
                    if isvalu and set(p.srcC)&Wr: f(7 if n==12 else 3,"mfma C WAR")
                if pv:
                    if x.kind=="mfma" and pW&R: f(2,"valu->mfma")
                    if p.kind=="trans" and isvalu and x.kind!="trans" and pW&R: f(1,"trans->valu")
                    if p.kind=="dot" and isvalu and (pW&(R|Wr)) and not (x.op==p.op and not (pW & set(x.R[:-1] if x.op!="v_dot2c_f32_bf16" else x.R[:2]))): f(3,"dot->valu")
                    if x.kind=="perm" and pW&R: f(2,"valu->permlane")
                    if "_dpp" in x.op and pW&R: f(2,"valu->dpp")
                    if x.op.startswith(("v_readfirstlane","v_readlane")) and pW&R: f(1,"valu->readlane")
                    sg={r for r in pW if r[0]=='s' or r=='vcc'}
                    if sg and isvalu and sg&R: f(2,"valu sgpr->valu")
                    if sg and x.kind=="vmem" and sg&R: f(5,"valu sgpr->vmem")
                    if sg and x.kind=="salu" and sg&R: f(1,"valu sgpr->salu (pad)")
                if p.kind=="vmem" and "store" in p.op and ("x4" in p.op or "x3" in p.op) and Wr:
                    data=set(p.R[:4])
                    if data&Wr: f(2 if isvalu else 1,"store data WAR")
                if p.kind=="salu" and "m0" in pW and x.lds: f(1,"m0->dma")
                if p.kind=="salu" and "exec" in pW and False: pass
                if d<need:
                    if fix:
                        if need-d>short: short=need-d; swhy=f"{why}: [{p.text}] -> [{x.text}]"
                    else: errs.append(f"hazard {why}: need {need} have {d}: [{p.text}] -> [{x.text}] @{idx}")
            if fix and x.kind=="vmem" and len([y for y in vmq if y.count])>=62:
                wv=Ins("s_waitcnt vmcnt(61)"); out.append(wv); hist.append((st,wv)); st+=1; short=max(0,short-1)
                c=[y for y in vmq if y.count]; k=vmq.index(c[len(c)-62]); vmq=vmq[k+1:]
            if short:
                n=Ins(f"s_nop {short-1}"); out.append(n); hist.append((st,n)); st+=short; s.pads.append((short,swhy))
            out.append(x)
            if x.kind=="wait":
                m=re.search(r"vmcnt\((\d+)\)",x.text)
                if m:
                    n=int(m.group(1)); c=[y for y in vmq if y.count]
                    done=c[:max(0,len(c)-n)] if n>0 else vmq[:]
                    if n>0 and done:
                        k=vmq.index(done[-1]); vmq=vmq[k+1:]
                    elif n==0: vmq=[]
                m=re.search(r"lgkmcnt\((\d+)\)",x.text)
                if m:
                    n=int(m.group(1))
                    if n==0: lgq=[]; smem=[]
                    else: lgq=lgq[max(0,len(lgq)-n):]
            else:
                for q,nm in((vmq,"vm"),(lgq,"lgkm"),(smem,"smem")):
                    for y in q:
                        if set(y.W)&(R|Wr) and y.W!=["a255"]: errs.append(f"unwaited {nm} result: [{y.text}] used by [{x.text}] @{idx}")
                if x.kind=="vmem": vmq.append(x)
                if x.kind=="ds":
                    lgq.append(x)
                if x.kind=="smem": smem.append(x)
                if len([y for y in vmq if y.count])>63: errs.append(f"vmcnt overflow @{idx} {x.text}")
            hist.append((st,x)); st+=x.states()
        if fix: s.L=out
        return errs
    def text(s): return "\n".join(x.text for x in s.L)+"\n"
```

```python
import sys, struct
from emit import Prog, I, W, Ins
KN = "parallel_sum__linear_attn_block__geglu_ffn__prompt_kernel"
def fb(x): return "0x%08x" % struct.unpack("<I", struct.pack("<f", x))[0]
SLOT=28672; KVX=143360; STAT=159744; LDS=163840
WS_KVP=0x900000; WS_KF=0xA00000; WS_FH=0xA10000; WS_FK=0xA14000; WS_ST=0xB00000; WS_SZ=0xC00000
LOG2E=1.4426950408889634
K0C=-2*0.7978845608028654*LOG2E; K1C=K0C*0.044715
sHc,sKF,sKR,sOUT=0,1,2,3
sA=4; sKP,sKFst=6,7
sW,sT=10,11
sBA,sBL,sBH,sBO=12,14,20,22
SX,SW0,SW1,SW4,SWS,SD=24,28,32,36,40,44
SWD,SWO,SOUT=SW0,SW1,SW4
C26,C35=48,55
CBQ,CB0,CB3,CB4=62,66,68,70
sWB7,sWB2=72,73; sH=74; sV2,sNB,sWG,sMI,sJ,sTY,sMB=77,78,79,80,81,82,83
sFHst,sFHld,sFKst,sFKld=84,85,86,87
sXM,sXC,sXR,sXT=84,85,86,87
MONE,MHI=88,90; sT2=92; sOLO,sOHI,sONES=93,94,95; sSTMP=96; sSPIN=98; sC,sP,sT3=99,100,101; sHK=sSPIN
def srd(n): return f"s[{n}:{n+3}]"
vL16,vWc,vWq,vW3,vW4,vW0=1,2,3,4,5,6
vB,vB2=6,7
vTR=8; vK0,vK1,vV,vS,vC2=11,12,13,14,15
X=16; ACC=128
vZ,vONE,vPOLL,vL4,vPA31=224,225,226,228,229
vPA7,vTCH=4,231
vTQ=232; vBT=[236,237,232,233,226,228]; vKFs,vKR=238,239
vSTR,vKXW,vKXR,vKP=240,241,242,243
vT=244; vP=248
aU=32; aB=96
vQ=234
vU=240
def v(a,n=1): return f"v{a}" if n==1 else f"v[{a}:{a+n-1}]"
def a(x,n=1): return f"a{x}" if n==1 else f"a[{x}:{x+n-1}]"
def lines(t): return [I(l.strip()) for l in t.strip().split("\n") if l.strip()]
def kmap(n):
    if n<16:
        st,r=n//8,n%8; pp,q=r//4,r%4
        return pp,(2*st+q if q<2 else 8+2*st+q-2)
    return ((n-16)%4)//2, [12,4,14,6,16][(n-16)//4]+n%2
BARS=[24,52,80,108,136,164,192,220,248,276]
ENT=[(4*e)*2048 for e in range(17)]+[KVX,KVX+8192]
ENT_FREE=[24]*3+[52]*4+[248]*3+[276]*4+[220]*3+[136,136]

class Gen:
    def __init__(s, stamps=False, ty=0, **opt):
        s.ty=ty; s.vBT=list(vBT)
        if ty==0: s.vBT[2:4]=[vTR,vTR+1]
        s.p=Prog(); s.ool=[]; s.stamps=stamps; s.stnames=[]; s.opt=opt; s.lbl=0
    def o(s,k,d): return s.opt.get(k,d)
    def stamp(s, name="", fine=False):
        if not s.stamps or (fine and not s.o("fine",0)): return []
        if name in s.stnames: k=s.stnames.index(name)
        else: k=len(s.stnames); s.stnames.append(name)
        return [I(f"s_memtime s[{sSTMP}:{sSTMP+1}]"), I("s_waitcnt lgkmcnt(0)"), I(f"v_writelane_b32 v0, s{sSTMP}, {k}")]
    def retry(s, test, reload, retest=None):
        n=s.lbl; s.lbl+=1
        chk=[I(t) for t in test]+[I(f"s_cbranch_vccnz L_spin{n}"), I(f"L_ok{n}:")]
        s.ool += [I(f"L_spin{n}:"), I(f"s_mov_b32 s{sSPIN}, 0x8000"), I(f"L_spinl{n}:"), I("s_waitcnt vmcnt(0)")]
        s.ool += [I(t,count=False) for t in reload]+[I("s_waitcnt vmcnt(0)")]+[I(t) for t in (retest or test)]
        s.ool += [I(f"s_cbranch_vccz L_ok{n}"), I(f"s_sub_u32 s{sSPIN}, s{sSPIN}, 1"), I(f"s_cmp_lg_u32 s{sSPIN}, 0"),
                  I(f"s_cbranch_scc1 L_spinl{n}"), I(f"s_branch L_ok{n}")]
        return chk
    def wdma(s, name):
        k,i0=name[0],int(name[1])
        vb,cb,sr,tb,slot={"k":(vW0,CB0+i0,SW0,C26,i0), "Q":(vWq,CBQ+i0,SW1,C35,[2,3,4,2][i0]),
                          "h":(vW3,CB3+i0,SW1,C35,3+i0), "f":(vW4,CB4+i0,SW4,C26,2+i0)}[k]
        L=[I(f"v_add_u32 v{vWc}, s{cb}, v{vb}")]
        for i in range(7):
            if i in (0,4): L.append(I(f"s_add_u32 m0, s{sWB7}, {slot*SLOT+(4096 if i==4 else 0)}"))
            L.append(I(f"buffer_load_dwordx4 v{vWc}, {srd(sr)}, s{tb+i} offen offset:{(i%4)*1024} lds"))
        s.tok_w[name]=L[-1]
        return L
    def witems(s, name, per):
        L=s.wdma(name); first=L[0]; D=[x for x in L if x.kind=="vmem"]; m0=[x for x in L if "m0" in x.W]; out=[]
        i=0
        while i<7:
            k=min(per,(4 if i<4 else 7)-i)
            out.append(([first] if i==0 else [])+[I(m0[i//4].text)]+D[i:i+k]); i+=k
        return out
    def bdma(s, n, e):
        pp,i=kmap(n)
        base,sr,k=(sBA+pp,SWD,i) if i<8 else (sBL+pp,SWD,i-8) if i<12 else (sBH+pp,SWD,i-12) if i<14 else (sBO+pp,SWO,None)
        off=k*14336 if k is not None else ((i-14)//2*28+(i-14)%2*16)*896
        L=[I(f"s_add_u32 m0, s{sWB2}, {ENT[e]}"), I(f"s_add_u32 s{sT}, s{base}, {off}"),
           I(f"buffer_load_dwordx4 v{vB}, {srd(sr)}, s{sT} offen lds"),
           I(f"buffer_load_dwordx4 v{vB2}, {srd(sr)}, s{sT} offen offset:1024 lds")]
        s.tok_b[n]=L[-1]; s.ent[n]=e
        return L
    def btr(s, n, q, dst):
        nbk,t=q>>1,q&1; ad=ENT[s.ent[n]]
        return I(f"ds_read_b64_tr_b16 {a(dst+nbk*4+2*t,2)}, v{s.vBT[2*(ad>>16)+nbk]} offset:{(ad&0xffff)+t*1024}")
    def prologue(s):
        p=s.p; s.tok_w={}; s.tok_b={}; s.ent={}
        if s.o("fixspan",0): p(f"s_memrealtime s[{sSTMP}:{sSTMP+1}]")
        p(f"""
        s_cmp_ge_u32 s2, 256
        s_cbranch_scc1 L_end
        s_load_dwordx4 s[4:7], s[0:1], 0
        s_load_dwordx4 s[20:23], s[0:1], 64
        s_load_dwordx2 s[8:9], s[0:1], 16
        s_load_dwordx4 s[12:15], s[0:1], 32
        s_load_dwordx4 s[16:19], s[0:1], 48
        s_getpc_b64 s[{SD}:{SD+1}]
        L_pc:
        v_lshrrev_b32 v192, 6, v0
        v_and_b32 v193, 63, v0
        v_readfirstlane_b32 s{sW}, v192
        v_lshlrev_b32 v{vL16}, 4, v193
        s_and_b32 s{sT}, s2, 7
        s_lshr_b32 s{sT2}, s2, 3
        s_and_b32 s{SD+1}, s{SD+1}, 0xffff
        s_mov_b32 s{SD+2}, L_codeend-L_pc
        s_mov_b32 s{SD+3}, 0x20000
        s_lshl_b32 s3, s{sT2}, 11
        v_cmp_gt_u32 vcc, 8, v193
        v_lshlrev_b32 v194, 6, v193
        v_lshl_add_u32 v194, v192, 9, v194
        v_bfrev_b32 v{vZ}, 2
        v_cndmask_b32 v194, v{vZ}, v194, vcc
        v_cmp_gt_u32 vcc, 4, v193
        s_mov_b32 s{sWG}, s2
        buffer_load_dword a255, v194, {srd(SD)}, s3 offen
        v_cndmask_b32 v{vKFs}, v{vZ}, v{vL16}, vcc
        s_and_b32 s{sMI}, s{sT}, 1
        s_lshl_b32 s{sMI}, s{sMI}, 3
        s_and_b32 s3, s{sT2}, 7
        s_add_u32 s{sMI}, s{sMI}, s3
        s_lshr_b32 s{sJ}, s{sT}, 1
        s_lshl_b32 s{sJ}, s{sJ}, 2
        s_lshr_b32 s3, s{sT2}, 3
        s_add_u32 s{sJ}, s{sJ}, s3
        s_add_u32 s{sC}, s{sMI}, s{sJ}
        s_and_b32 s{sC}, s{sC}, 3
        s_mul_i32 s{sXC}, s{sC}, 7
        s_lshr_b32 s{sXC}, s{sXC}, 2
        v_lshrrev_b32 v222, 3, v193
        v_mul_u32_u24 v222, 896, v222
        v_lshrrev_b32 v196, 4, v193
        v_and_b32 v197, 7, v193
        v_xor_b32 v196, v196, v197
        v_lshl_add_u32 v222, v196, 4, v222
        v_xor_b32 v223, 64, v222
        s_lshl_b32 s{sH}, s{sMI}, 2
        s_add_u32 s{sH}, s{sH}, s{sW}
        s_mul_i32 s{sXR}, s{sH}, {32*896}
        s_add_u32 s{sXM}, s{sW}, 1
        s_mul_i32 s{sXM}, s{sXM}, {SLOT}
        s_mov_b32 s{SX+2}, {2048*896}
        s_mov_b32 s{SX+3}, 0x20000
        s_waitcnt lgkmcnt(0)
        s_mov_b32 s{SX}, s4
        s_and_b32 s{SX+1}, s5, 0xffff
        """)
        if s.stamps:
            p("v_mov_b32 v0, 0"); p(s.stamp("start"))
            if s.o("dbgwg",None) is not None: p(f"s_memrealtime s[{sSTMP}:{sSTMP+1}]\ns_waitcnt lgkmcnt(0)\nv_writelane_b32 v0, s{sSTMP}, 63")
        if s.o("fixspan",0): p(f"v_mov_b32 v0, s{sSTMP}")
        p("s_cmp_lg_u32 s2, 0"); p("s_cbranch_scc1 L_noclr")
        p(f"""
        s_mov_b32 s{SWS}, s22
        s_and_b32 s{SWS+1}, s23, 0xffff
        s_mov_b32 s{SWS+2}, {WS_SZ}
        s_mov_b32 s{SWS+3}, 0x20000
        v_mov_b32 v200, 0
        v_mov_b32 v201, 0
        v_mov_b32 v202, 0
        v_mov_b32 v203, 0
        v_lshrrev_b32 v204, 1, v193
        v_and_b32 v205, 16, v{vL16}
        v_lshl_add_u32 v204, v204, 7, v205
        s_lshl_b32 s3, s{sW}, 12
        s_add_u32 s3, s3, {WS_FH}
        s_mov_b32 s4, {WS_FK}
        """)
        p(I(f"buffer_store_dwordx4 v[200:203], v204, {srd(SWS)}, s3 offen sc1", count=False))
        p(I(f"buffer_store_dwordx4 v[200:203], v{vL16}, {srd(SWS)}, s4 offen sc1", count=False))
        p("L_noclr:")
        tok_x=[]
        def xdma(P):
            L=[I(f"s_add_u32 m0, s{sXM}, {P*4096}"), I(f"s_lshl_b32 s{sXT}, s{sXC}, 7"), I(f"s_add_u32 s{sXT}, s{sXT}, s{sXR}")]
            for t in range(4):
                tk=I(f"buffer_load_dwordx4 v{222+(t&1)}, {srd(SX)}, s{sXT} offen offset:{t*1024} lds"); L.append(tk)
                if t<3: L.append(I(f"s_add_u32 s{sXT}, s{sXT}, 6144"))
            tok_x.append(tk)
            if P<6: L+=[I(f"s_add_u32 s{sXC}, s{sXC}, 1"), I(f"s_cmp_eq_u32 s{sXC}, 7"), I(f"s_cselect_b32 s{sXC}, 0, s{sXC}")]
            return L
        NX0=s.o("nx0",3)
        for P in range(NX0): p(xdma(P))
        p(s.stamp("x_first_issued",1))
        p(f"""
        s_mul_i32 s{sMB}, s{sT2}, 37
        s_lshr_b32 s{sMB}, s{sMB}, 8
        s_mul_i32 s3, s{sMB}, 7
        s_sub_u32 s{sNB}, s{sT2}, s3
        s_cmp_lt_u32 s{sT2}, 28
        s_cselect_b32 s{sV2}, 1, 0
        s_lshl_b32 s{sT}, s{sT}, 2
        s_add_u32 s{sMB}, s{sMB}, s{sT}
        s_mul_i32 s{sWB7}, s{sW}, 7168
        s_lshl_b32 s{sWB2}, s{sW}, 11
        s_and_b32 s{sTY}, s{sJ}, 1
        s_lshr_b32 s{sP}, s{sJ}, 1
        s_sub_u32 s{SW0}, s6, 3072
        s_subb_u32 s{SW0+1}, s7, 0
        s_and_b32 s{SW0+1}, s{SW0+1}, 0xffff
        s_mov_b32 s{SW0+2}, {448*2688+3072}
        s_mov_b32 s{SW0+3}, 0x20000
        s_and_b32 s5, s{sW}, 1
        s_lshr_b32 s4, s{sW}, 1
        s_cmp_eq_u32 s5, 0
        s_cselect_b32 s{SW1}, s12, s14
        s_cselect_b32 s{SW1+1}, s13, s15
        s_sub_u32 s{SW1}, s{SW1}, 3072
        s_subb_u32 s{SW1+1}, s{SW1+1}, 0
        s_and_b32 s{SW1+1}, s{SW1+1}, 0xffff
        s_mov_b32 s{SW1+2}, {448*3584+3072}
        s_mov_b32 s{SW1+3}, 0x20000
        s_mov_b32 s{SWS}, s22
        s_and_b32 s{SWS+1}, s23, 0xffff
        s_mov_b32 s{SWS+2}, {WS_SZ}
        s_mov_b32 s{SWS+3}, 0x20000
        s_mov_b32 s{SD}, s20
        s_and_b32 s{SD+1}, s21, 0xffff
        s_mov_b32 s{SD+2}, 256
        s_mov_b32 s{SD+3}, 0x20000
        """)
        for i in range(7):
            bias=3072-1024*(i%4)
            p(f"s_mov_b32 s{C26+i}, {i*16*2688+bias}"); p(f"s_mov_b32 s{C35+i}, {i*16*3584+bias}")
        for i in range(4): p(f"s_add_u32 s3, s{sC}, {i}\ns_and_b32 s3, s3, 3\ns_mul_i32 s{CBQ+i}, s3, {112*3584}")
        for i in range(2): p(f"s_add_u32 s3, s{sC}, s4\ns_add_u32 s3, s3, {2*i}\ns_and_b32 s3, s3, 3\ns_mul_i32 s{CB0+i}, s3, {112*2688}\ns_mul_i32 s{CB3+i}, s3, {112*3584}")
        p(f"""
        s_and_b32 s14, s{sP}, 1
        s_mul_i32 s15, s{sP}, 448
        s_mul_i32 s6, s14, 192
        s_sub_u32 s13, 256, s6
        s_lshl_b32 s7, s6, 1
        s_sub_u32 s7, 384, s7
        s_mul_i32 s21, s{sP}, 112
        s_cmp_eq_u32 s{sTY}, 0
        s_cselect_b32 s6, s6, s13
        s_cselect_b32 s{SW4}, s{SW1}, s{SW0}
        s_cselect_b32 s{SW4+1}, s{SW1+1}, s{SW0+1}
        s_cselect_b32 s{SW4+2}, s{SW1+2}, s{SW0+2}
        s_cselect_b64 s[{CB3}:{CB3+1}], s[{CBQ}:{CBQ+1}], s[{CB3}:{CB3+1}]
        s_cselect_b64 s[{CB4}:{CB4+1}], s[{CBQ+2}:{CBQ+3}], s[{CB0}:{CB0+1}]
        s_cselect_b64 vcc, -1, 0
        s_mov_b32 s{SW4+3}, 0x20000
        s_add_u32 s6, s6, s15
        s_add_u32 s7, s7, s15
        s_lshr_b32 s3, s{sJ}, 3
        s_and_b32 s3, s3, {s.o("hswap",1)}
        s_xor_b32 s{sHK}, s{sJ}, s3
        s_mul_i32 s13, s5, 896
        s_mul_i32 s3, s{sHK}, 56
        s_add_u32 s13, s13, s3
        s_add_u32 s13, s13, 896
        v_lshrrev_b32 v197, 2, v193
        v_and_b32 v198, 48, v{vL16}
        v_mul_u32_u24 v{vW0}, 2688, v197
        v_add3_u32 v{vW0}, v{vW0}, v198, s13
        v_mul_u32_u24 v{vW3}, 3584, v197
        v_add3_u32 v{vW3}, v{vW3}, v198, s7
        v_lshrrev_b32 v197, 3, v193
        v_bfe_u32 v198, v193, 4, 1
        v_lshlrev_b32 v198, 6, v198
        v_and_b32 v199, 0x70, v{vL16}
        v_xor_b32 v198, v198, v199
        v_mul_u32_u24 v199, 896, v197
        v_add_u32 v{vB2}, v199, v198
        s_lshl_b32 s5, s5, 3
        v_add_u32 v199, s5, v197
        v_mul_u32_u24 v199, 2688, v199
        v_add3_u32 v{vW4}, v199, v198, s21
        s_lshl_b32 s4, s4, 3
        v_add_u32 v197, s4, v197
        v_mul_u32_u24 v197, 3584, v197
        v_add3_u32 v{vWq}, v197, v198, s6
        v_add_u32 v197, 128, v{vWq}
        v_cndmask_b32 v{vW3}, v{vW3}, v197, vcc
        v_cndmask_b32 v{vW4}, v{vW4}, v197, vcc
        s_lshl_b32 s3, s{sH}, 3
        s_add_u32 s3, s3, s{sP}
        s_mul_i32 s{sH}, s3, 18432
        s_lshl_b32 s3, s{sTY}, 13
        s_add_u32 s{sH}, s{sH}, s3
        s_add_u32 s{sH+1}, s{sH}, 4096
        s_add_u32 s{sH+2}, s{sH}, 8192
        s_lshl_b32 s{sKF}, s{sP}, 12
        s_add_u32 s{sKF}, s{sKF}, {WS_KF}
        s_cmp_eq_u32 s{sTY}, 0
        s_cselect_b32 s{sHc}, 0x40000000, s{sH+2}
        s_cselect_b32 s{sKF}, 0x40000000, s{sKF}
        s_lshl_b32 s3, s{sHK}, 16
        s_add_u32 s3, s3, {WS_KVP}
        s_lshl_b32 s4, s{sMI}, 12
        s_add_u32 s{sKR}, s3, s4
        s_lshl_b32 s4, s{sW}, 14
        s_add_u32 s{sKP}, s3, s4
        s_lshl_b32 s4, s{sMI}, 8
        s_add_u32 s{sKP}, s{sKP}, s4
        s_lshl_b32 s{sKFst}, s{sHK}, 11
        s_add_u32 s{sKFst}, s{sKFst}, {WS_KF}
        s_lshr_b32 s3, s{sMI}, 3
        s_lshl_b32 s3, s3, 10
        s_add_u32 s{sKFst}, s{sKFst}, s3
        s_bfe_u32 s3, s{sMI}, 0x10002
        s_lshl_b32 s3, s3, 3
        s_add_u32 s{sKFst}, s{sKFst}, s3
        s_and_b32 s3, s{sMI}, 3
        s_lshl_b32 s3, s3, 2
        s_add_u32 s3, s3, s{sW}
        s_lshl_b32 s3, s3, 6
        s_add_u32 s{sKFst}, s{sKFst}, s3
        s_mov_b32 s{sOLO}, 0x3f80
        s_mov_b32 s{sOHI}, 0x3f800000
        s_mov_b32 s{sONES}, 0x3f803f80
        s_mov_b32 s{MONE}, 0x10000000
        s_mov_b32 s{MONE+1}, 0x10000000
        s_mov_b32 s{MHI}, 0
        s_mov_b32 s{MHI+1}, -1
        s_add_u32 s{sT}, s{sMB}, s{sNB}
        """)
        for pp in range(2):
            p(f"""
            s_add_u32 s3, s{sT}, {pp}
            s_and_b32 s3, s3, 1
            s_mul_i32 s{sT3}, s3, {96*896}
            s_lshl_b32 s{sT2}, s{sW}, 1
            s_add_u32 s3, s3, s{sT2}
            s_mul_i32 s{sT2}, s3, {224*896}
            s_add_u32 s{sBA+pp}, s{sT2}, s{sT3}
            s_sub_u32 s{sBL+pp}, s{sT2}, s{sT3}
            s_sub_u32 s{sBH+pp}, s{sBL+pp}, s{sT3}
            s_add_u32 s{sBL+pp}, s{sBL+pp}, {128*896}
            s_add_u32 s{sBH+pp}, s{sBH+pp}, {192*896}
            s_mul_i32 s{sBO+pp}, s3, {56*896}
            s_lshl_b32 s{sA+pp}, s{sMB}, 4
            s_add_u32 s{sA+pp}, s{sA+pp}, s3
            s_mul_i32 s{sA+pp}, s{sA+pp}, 18432
            """)
        p(f"""
        s_mul_i32 s{sOUT}, s{sMB}, {64*896}
        s_lshl_b32 s{sNB}, s{sNB}, 7
        s_add_u32 s{sOUT}, s{sOUT}, s{sNB}
        v_add_u32 v{vB2}, s{sNB}, v{vB2}
        v_lshrrev_b32 v197, 5, v193
        v_bfe_u32 v198, v193, 2, 2
        v_bfe_u32 v199, v193, 4, 1
        v_and_b32 v200, 3, v193
        v_lshlrev_b32 v200, 3, v200
        v_lshl_add_u32 v200, v199, 5, v200
        v_lshl_add_u32 v201, v197, 3, v198
        v_lshl_add_u32 v{vTR}, v201, 6, v200
        v_add_u32 v{vTR+1}, {2*SLOT}, v{vTR}
        v_add_u32 v{vTR+2}, {4*SLOT}, v{vTR}
        v_bfe_u32 v199, v193, 3, 1
        v_lshl_add_u32 v200, v199, 6, v200
        v_lshl_add_u32 v200, v198, 7, v200
        v_mul_u32_u24 v201, 14336, v197
        v_add_u32 v201, v200, v201
        v_add_u32 v{vTQ}, {2*SLOT}, v201
        v_add_u32 v{vTQ+1}, {4*SLOT}, v201
        v_xor_b32 v{vTQ+2}, 64, v{vTQ}
        v_xor_b32 v{vTQ+3}, 64, v{vTQ+1}
        v_lshl_add_u32 v200, v197, 9, v200
        v_add_u32 v{vBT[0]}, s{sWB2}, v200
        v_xor_b32 v{vBT[1]}, 64, v{vBT[0]}
        v_add_u32 v{vBT[4]}, 0x20000, v{vBT[0]}
        v_add_u32 v{vBT[5]}, 0x20000, v{vBT[1]}
        v_and_b32 v198, 31, v193
        v_bfe_u32 v199, v193, 1, 3
        v_xor_b32 v199, v199, v197
        v_lshlrev_b32 v199, 4, v199
        v_lshl_add_u32 v199, v198, 7, v199
        v_add_u32 v199, s{sXM}, v199
        s_mul_i32 s{sT}, s{sC}, 7
        s_and_b32 s{sT}, s{sT}, 3
        """)
        for m in range(4):
            p(f"""
            s_add_u32 s{sT2}, s{sT}, {m}
            s_and_b32 s{sT3}, s{sT2}, 3
            s_lshl_b32 s{sT3}, s{sT3}, 5
            v_xor_b32 v{204+m}, s{sT3}, v199
            s_lshr_b32 s{sT2}, s{sT2}, 2
            s_lshl_b32 s{sT3}, s{sT2}, 12
            v_add_u32 v{204+m}, s{sT3}, v{204+m}
            s_mul_i32 s{sT3}, s{sT2}, {7*4096}
            v_subrev_u32 v{212+m}, s{sT3}, v{204+m}
            """)
        p(f"""
        s_lshl_b32 s{sT2}, s{sW}, 7
        s_add_u32 s{sT2}, s{sT2}, {STAT}
        v_lshl_add_u32 v{vSTR}, v197, 4, s{sT2}
        v_lshl_add_u32 v230, v198, 2, s{sT2}
        s_lshl_b32 s{sT2}, s{sW}, 12
        s_add_u32 s{sT2}, s{sT2}, {KVX}
        v_add_u32 v{vKXW}, s{sT2}, v{vL16}
        s_lshl_b32 s{sT2}, s{sW}, 10
        s_add_u32 s{sT2}, s{sT2}, {KVX}
        v_add_u32 v{vKXR}, s{sT2}, v{vL16}
        v_lshrrev_b32 v200, 4, v193
        v_and_b32 v201, 0xf0, v{vL16}
        v_lshl_add_u32 v{vKP}, v200, 12, v201
        v_lshrrev_b32 v200, 2, v193
        v_and_b32 v201, 48, v{vL16}
        v_lshl_add_u32 v200, v200, 8, v201
        s_lshl_b32 s{sT2}, s{sW}, 6
        v_add_u32 v{vKR}, s{sT2}, v200
        v_cmp_eq_u32 vcc, 0, v193
        v_mov_b32 v{vONE}, 1
        v_cndmask_b32 v{vZ}, v{vZ}, 0, vcc
        v_lshlrev_b32 v{vPA31}, 2, v198
        v_mov_b32 v208, 0
        v_mov_b32 v209, 0
        v_mov_b32 v210, 0
        v_mov_b32 v211, 0
        v_mov_b32 v216, -1
        v_mov_b32 v217, -1
        v_mov_b32 v218, -1
        v_mov_b32 v219, -1
        """)
        p(s.stamp("setup_done",1))
        clr=[I(f"buffer_store_dwordx4 v[216:219], v{vKP}, {srd(SWS)}, s{sKP} offen sc1"),
             I(f"buffer_store_dwordx2 v[216:217], v{vKFs}, {srd(SWS)}, s{sKFst} offen sc1")]
        s.i_sent=4 if s.o("sentC",1) else 6
        hc=[]
        for i in range(s.i_sent,10):
            hc.append(f"buffer_store_dwordx4 {v(vP,4)}, v{vL16}, {srd(SWS)}, s{sH+i//4 if i<8 else sHc} offen offset:{(i%4)*1024} sc1")
        s.hclr=[I(f"v_mov_b32 v{vP+k}, -1") for k in range(4)]+[I(t) for t in hc]
        def stats(G):
            for q in range(4):
                for r in range(4):
                    x=X+(G*4+q)*4+r
                    p(f"v_dot2_f32_bf16 v{208+(r&1)}, v{x}, s{sONES}, v{208+(r&1)}")
                    p(f"v_dot2_f32_bf16 v{210+(r&1)}, v{x}, v{x}, v{210+(r&1)}")
        prev=None; todo=[xdma(P) for P in range(NX0,7)]
        k0=s.witems("k0",1)+[[clr[0]],[clr[1]]]; per=-(-len(k0)//(NX0+1))
        def stats2(G, items):
            L=[]
            for q in range(4):
                for r in range(4):
                    x=X+(G*4+q)*4+r
                    L.append(I(f"v_dot2_f32_bf16 v{208+(r&1)}, v{x}, s{sONES}, v{208+(r&1)}"))
                    L.append(I(f"v_dot2_f32_bf16 v{210+(r&1)}, v{x}, v{x}, v{210+(r&1)}"))
            for k,it in enumerate(items): L[32*k//len(items)]=[L[32*k//len(items)]]+it
            p(L)
        for G in range(7):
            if todo: p(todo.pop(0)); it=[]
            else: it=k0[:per]; k0=k0[per:]
            p(W(vm=tok_x[min(G+1,6)]))
            p(s.stamp(f"x{G}",1))
            for q in range(4):
                tk=p(f"ds_read_b128 {v(X+(G*4+q)*4,4)}, v{(204 if G<6 else 212)+q} offset:{G*4096}")
            if prev is not None:
                p(W(lg=prev)); stats2(G-1,it)
            prev=tk
        s.tok_clr=clr[-1]
        p(W(lg=0))
        p(s.stamp("x_in_regs"))
        p("s_barrier")
        p(f"s_or_b32 s{sT}, s{sWG}, s{sW}\ns_cmp_lg_u32 s{sT}, 0\ns_cbranch_scc1 L_nogo")
        p(I(f"buffer_store_dword v{vONE}, v{vZ}, {srd(SD)}, 0 offen offset:128 sc1", count=False))
        p("L_nogo:")
        p(f"""
        s_lshl_b32 s{sT}, s{sMI}, 2
        s_add_u32 s{sT}, s{sT}, s{sW}
        s_lshr_b32 s{sT2}, s{sT}, 1
        s_lshl_b32 s{sT2}, s{sT2}, 2
        s_lshr_b32 s{sT3}, s{sJ}, 2
        s_add_u32 s{sT2}, s{sT2}, s{sT3}
        s_lshl_b32 s{sFHst}, s{sT2}, 7
        s_and_b32 s{sT}, s{sT}, 1
        s_lshl_b32 s{sT}, s{sT}, 2
        s_and_b32 s{sT3}, s{sJ}, 3
        s_add_u32 s{sT}, s{sT}, s{sT3}
        s_lshl_b32 s{sT}, s{sT}, 2
        s_add_u32 s{sFHst}, s{sFHst}, s{sT}
        s_add_u32 s{sFHst}, s{sFHst}, {WS_FH}
        s_lshl_b32 s{sFHld}, s{sMB}, 2
        s_add_u32 s{sFHld}, s{sFHld}, s{sW}
        s_lshl_b32 s{sFHld}, s{sFHld}, 7
        s_add_u32 s{sFHld}, s{sFHld}, {WS_FH}
        s_cmp_eq_u32 s{sV2}, 0
        s_cselect_b32 s{sFHld}, {WS_FH}, s{sFHld}
        s_lshl_b32 s{sFKld}, s{sP}, 7
        s_add_u32 s{sFKld}, s{sFKld}, {WS_FK}
        s_lshl_b32 s{sT}, s{sTY}, 4
        s_add_u32 s{sT}, s{sT}, s{sMI}
        s_lshl_b32 s{sT}, s{sT}, 2
        s_add_u32 s{sFKst}, s{sFKld}, s{sT}
        """)
        stats2(6,k0)
        p(f"""
        v_add_f32 v208, v208, v209
        v_add_f32 v210, v210, v211
        v_mov_b32 v209, v208
        v_mov_b32 v211, v210
        v_permlane32_swap_b32 v208, v209
        v_permlane32_swap_b32 v210, v211
        v_add_f32 v208, v208, v209
        v_add_f32 v210, v210, v211
        v_mul_f32 v208, {fb(1/448)}, v208
        v_mul_f32 v210, {fb(1/448)}, v210
        v_fma_f32 v210, -v208, v208, v210
        v_max_f32 v210, 0, v210
        v_add_f32 v{vV}, {fb(1e-5)}, v210
        v_rsq_f32 v{vS}, v{vV}
        v_mul_f32 v{vK0}, {fb(K0C)}, v{vS}
        v_mul_f32 v{vC2}, {fb(LOG2E)}, v{vS}
        v_mul_f32 v209, v{vS}, v{vS}
        v_mul_f32 v209, v209, v{vS}
        v_mul_f32 v{vK1}, {fb(K1C)}, v209
        ds_write_b32 v230, v{vS}
        """)
        dm=[]
        for nm in s.o("cdma",["k1"]): dm+=s.wdma(nm)
        nd=sum(1 for x in dm if x.kind=="vmem"); di=0; iss=0
        for g in range(57):
            x0=X+g*2; bk=212+4*(g&1); pb=212+4*((g+1)&1)
            if g<56:
                p(f"v_dot2_f32_bf16 v{bk}, v{x0}, s{sOLO}, v208 neg_lo:[0,0,1]")
                p(f"v_dot2_f32_bf16 v{bk+1}, v{x0}, s{sOHI}, v208 neg_lo:[0,0,1]")
                p(f"v_dot2_f32_bf16 v{bk+2}, v{x0+1}, s{sOLO}, v208 neg_lo:[0,0,1]")
                p(f"v_dot2_f32_bf16 v{bk+3}, v{x0+1}, s{sOHI}, v208 neg_lo:[0,0,1]")
            if g>0:
                p(f"v_cvt_pk_bf16_f32 v{x0-2}, v{pb}, v{pb+1}"); p(f"v_cvt_pk_bf16_f32 v{x0-1}, v{pb+2}, v{pb+3}")
            while di<len(dm) and iss<nd*(g+1)/57:
                p(dm[di]); iss+=dm[di].kind=="vmem"; di+=1
        assert di==len(dm)
        p(f"v_mov_b32 v{vB}, v{vB2}\nv_add_u32 v{vB2}, 6144, v{vB2}")
        s.selC=lines(f"s_cmp_eq_u32 s{sTY}, 0\n"+"\n".join(f"s_cselect_b32 s{C26+i}, s{C35+i}, s{C26+i}" for i in range(7)))
        p(s.stamp("centered"))
    def hstore(s, P, i):
        x=I(f"buffer_store_dwordx4 {v(P,4)}, v{vL16}, {srd(SWS)}, s{sH+i//4} offen offset:{(i%4)*1024} sc1"); s.tok_h[i]=x; return x
    def flagst(s, val, tok):
        return [W(vm=tok,tag="wFl"), I(f"v_mov_b32 v{vONE}, {val}"), I(f"buffer_store_dword v{vONE}, v{vZ}, {srd(SWS)}, s{sFHst} offen sc1")]
    def poll(s, val):
        t=f"buffer_load_dword v{vPOLL+1}, v{vPA7}, {srd(SWS)}, s{sFHld} offen sc1"
        ld=I(t); return ld, [W(vm=ld)]+s.retry([f"v_cmp_gt_u32 vcc, {val}, v{vPOLL+1}"], [t])
    def gelu(s, G, U, n, i0, acc=False, pk=False):
        L=[]
        for f in range(n//8):
            P=vP+4*(f&1)
            for h in range(2):
                r=[f*8+h*4+k for k in range(4)]
                if pk:
                    if acc: L+=[I(f"v_accvgpr_read_b32 v{vU+k}, a{U+r[k]}") for k in range(4)]
                    g2=[v(G+r[2*k],2) for k in range(2)]; u2=[v(vU+2*k if acc else U+r[2*k],2) for k in range(2)]; t2=[v(vT+2*k,2) for k in range(2)]
                    L+=[I(f"v_pk_mul_f32 {t2[k]}, {g2[k]}, {g2[k]}") for k in range(2)]
                    L+=[I(f"v_pk_fma_f32 {t2[k]}, {t2[k]}, {v(vK1,2)}, {v(vK0-1,2)} op_sel:[0,0,1] op_sel_hi:[1,0,1]") for k in range(2)]
                    L+=[I(f"v_pk_mul_f32 {t2[k]}, {t2[k]}, {g2[k]}") for k in range(2)]
                    L+=[I(f"v_pk_mul_f32 {g2[k]}, {g2[k]}, {u2[k]}") for k in range(2)]
                    L+=[I(f"v_exp_f32 v{vT+k}, v{vT+k}") for k in range(4)]
                    L+=[I(f"v_pk_fma_f32 {t2[k]}, {t2[k]}, {v(vV-1,2)}, {v(vV-1,2)} op_sel:[0,1,1] op_sel_hi:[1,1,1]") for k in range(2)]
                    L+=[I(f"v_rcp_f32 v{vT+k}, v{vT+k}") for k in range(4)]
                    L+=[I(f"v_pk_mul_f32 {g2[k]}, {g2[k]}, {t2[k]}") for k in range(2)]
                    L+=[I(f"v_cvt_pk_bf16_f32 v{P+2*h+k}, v{G+r[2*k]}, v{G+r[2*k+1]}") for k in range(2)]
                    continue
                L+=[I(f"v_mul_f32 v{vT+k}, v{G+r[k]}, v{G+r[k]}") for k in range(4)]
                L+=[I(f"v_fma_f32 v{vT+k}, v{vT+k}, v{vK1}, v{vK0}") for k in range(4)]
                L+=[I(f"v_mul_f32 v{vT+k}, v{vT+k}, v{G+r[k]}") for k in range(4)]
                if acc: L+=[I(f"v_accvgpr_read_b32 v{vU+k}, a{U+r[k]}") for k in range(4)]
                L+=[I(f"v_exp_f32 v{vT+k}, v{vT+k}") for k in range(4)]
                L+=[I(f"v_mul_f32 v{G+r[k]}, v{G+r[k]}, v{vU+k if acc else U+r[k]}") for k in range(4)]
                L+=[I(f"v_fma_f32 v{vT+k}, v{vT+k}, v{vV}, v{vV}") for k in range(4)]
                L+=[I(f"v_rcp_f32 v{vT+k}, v{vT+k}") for k in range(4)]
                L+=[I(f"v_mul_f32 v{G+r[k]}, v{G+r[k]}, v{vT+k}") for k in range(4)]
                L+=[I(f"v_cvt_pk_bf16_f32 v{P+2*h+k}, v{G+r[2*k]}, v{G+r[2*k+1]}") for k in range(2)]
            L.append(s.hstore(P,i0+f))
        return L
    def kv_epi(s):
        K=ACC+32; V=ACC+48; S=192; PK=208; PV=216; L=[]
        rd=[I(f"ds_read_b128 {v(S+4*i,4)}, v{vSTR} offset:{32*i}") for i in range(4)]
        L+=rd+[W(lg=rd[-1])]
        for h in range(4):
            r=[4*h+k for k in range(4)]
            L+=[I(f"v_mul_f32 v{K+x}, v{K+x}, v{S+x}") for x in r]
            L+=[I(f"v_min_f32 v{vT+k}, 0, v{K+r[k]}") for k in range(4)]
            L+=[I(f"v_mul_f32 v{vT+k}, {fb(LOG2E)}, v{vT+k}") for k in range(4)]
            L+=[I(f"v_exp_f32 v{vT+k}, v{vT+k}") for k in range(4)]
            L+=[I(f"v_max_f32 v{K+x}, 0, v{K+x}") for x in r]
            L+=[I(f"v_add_f32 v{K+r[k]}, v{K+r[k]}, v{vT+k}") for k in range(4)]
            L+=[I(f"v_add_f32 v{K+x}, {fb(1e-6)}, v{K+x}") for x in r]
            L+=[I(f"v_mul_f32 v{V+x}, v{V+x}, v{S+x}") for x in r]
            L+=[I(f"v_cvt_pk_bf16_f32 v{PK+2*h+k}, v{K+r[2*k]}, v{K+r[2*k+1]}") for k in range(2)]
            L+=[I(f"v_cvt_pk_bf16_f32 v{PV+2*h+k}, v{V+r[2*k]}, v{V+r[2*k+1]}") for k in range(2)]
        L+=[I(f"v_mov_b32 v{vT}, s{sONES}")]
        L+=[I(f"v_cndmask_b32 v{PV+k}, v{PV+k}, v{vT}, s[{MONE}:{MONE+1}]") for k in range(8)]
        M=[I(f"v_mfma_f32_32x32x16_bf16 {v(K,16)}, {v(PK,4)}, {v(PV,4)}, 0"),
           I(f"v_mfma_f32_32x32x16_bf16 {v(K,16)}, {v(PK+4,4)}, {v(PV+4,4)}, {v(K,16)}")]
        Wr=[I(f"ds_write_b128 v{vKXW}, {v(K+4*q,4)} offset:{q*1024}") for q in range(4)]
        rd2=[I(f"ds_read_b128 {v(S+4*q,4)}, v{vKXR} offset:{q*4096}") for q in range(4)]
        R=rd2+[W(lg=rd2[-1])]
        R+=[I(f"v_add_f32 v{S+k}, v{S+k}, v{S+4+k}") for k in range(4)]
        R+=[I(f"v_add_f32 v{S+8+k}, v{S+8+k}, v{S+12+k}") for k in range(4)]
        R+=[I(f"v_add_f32 v{S+k}, v{S+k}, v{S+8+k}") for k in range(4)]
        R.append(I(f"buffer_store_dwordx4 {v(S,4)}, v{vKP}, {srd(SWS)}, s{sKP} offen sc1"))
        return L,M,Wr,R
    def chk(s, regs):
        t=[f"v_max3_u32 v230, v{regs[0]}, v{regs[1]}, v{regs[2]}"]; r=regs[3:]
        if len(regs)>=8: t.append(f"v_max3_u32 v231, v{r[0]}, v{r[1]}, v{r[2]}"); r=r[3:]
        else: t.append(f"v_mov_b32 v231, v{r[0]}"); r=r[1:]
        k=0
        while r:
            t.append(f"v_max3_u32 v{230+k}, v{230+k}, v{r[0]}, v{r[1]}"); r=r[2:]; k^=1
        return t+["v_max_u32 v230, v230, v231","v_cmp_eq_u32 vcc, -1, v230"]
    def kv_l1(s):
        t=f"buffer_load_dwordx4 v[192:195], v{vKR}, {srd(SWS)}, s{sKR} offen sc1"; ld=I(t)
        L=[W(vm=ld)]+s.retry(s.chk([192,193,194,195]),[t])
        for rot in (4,8): L+=[I(f"v_add_f32_dpp v{192+k}, v{192+k}, v{192+k} row_ror:{rot} row_mask:0xf bank_mask:0xf") for k in range(4)]
        for sw in ("v_permlane16_swap_b32","v_permlane32_swap_b32"):
            L+=[I(f"v_mov_b32 v{196+k}, v{192+k}") for k in range(4)]
            L+=[I(f"{sw} v{192+k}, v{196+k}") for k in range(4)]
            L+=[I(f"v_add_f32 v{192+k}, v{192+k}, v{196+k}") for k in range(4)]
        L+=[I("v_cvt_pk_bf16_f32 v196, v192, v193"), I("v_cvt_pk_bf16_f32 v197, v194, v195"),
            I(f"buffer_store_dwordx2 v[196:197], v{vKFs}, {srd(SWS)}, s{sKFst} offen sc1")]
        return ld,L
    def aload_txt(s, n):
        pp,i=kmap(n); L=[]
        so=f"s{sA+pp}"
        if i>=4: L.append(f"s_add_u32 s{sT2}, s{sA+pp}, {(i//4)*4096}"); so=f"s{sT2}"
        return L+[f"buffer_load_dwordx4 {s.areg(n,mb)}, v{vL16 if mb==0 else s.vA1}, {srd(SWS)}, {so} offen offset:{(i%4)*1024} sc1" for mb in range(2)]
    def areg(s,n,mb=None):
        b=X+8*(n%14)
        return list(range(b,b+8)) if mb is None else v(b+4*mb,4)
    def aload(s, n):
        L=[I(t) for t in s.aload_txt(n)]; s.tok_a[n]=L[-1]; return L
    def gapinfo(s, g):
        if g<56: return 0,g>>1,g&1
        if g<168: return 1,(g-56)>>2,(g-56)&3
        if s.ty==0: return 2,(g-168)>>2,(g-168)&3
        return 3+(g-168)//56,((g-168)%56)>>1,g&1
    def trd(s, g):
        ps,pos,u=s.gapinfo(g); dst=(g%8)*4; L=[]
        for t in range(2):
            if ps in (1,2):
                slot=[[2,3,4,2],[3,4,2,3]][ps-1][pos//7]
                L.append(I(f"ds_read_b64_tr_b16 {a(dst+2*t,2)}, v{vTQ+2*(u>>1)+slot//2-1} offset:{(slot&1)*SLOT+(u&1)*7168+(pos%7)*1024+t*512}"))
            elif ps==4:
                pl=pos%14
                L.append(I(f"ds_read_b64_tr_b16 {a(dst+2*t,2)}, v{vQ+u} offset:{(pos//14)*SLOT+2*(pl//7)*7168+(pl%7)*1024+t*512}"))
            else:
                slot={0:0,3:3}[ps]+pos//14; pl=pos%14
                L.append(I(f"ds_read_b64_tr_b16 {a(dst+2*t,2)}, v{vTR+slot//2} offset:{(slot&1)*SLOT+(u+2*(pl//7))*7168+(pl%7)*1024+t*256}"))
        return L
    def phase1(s):
        p=s.p; s.tok_a={}; s.tok_h={}; s.vA1=198; o=s.o; segs=[]
        def seg(g0,g1,L): segs.append([g0,g1,list(L),0])
        Q=[]
        wl=o("wlen",10)
        for x in s.selC: x.tag="inl"
        seg(28,29,s.selC)
        wsched=o("wsched",{"Q0":(0,14),"Q1":(15,36),"Q2":(37,58),"Q3":(81,100),"h0":(109,132),"h1":(137,160),"f0":(165,188),"f1":(193,214)})
        if wl: wsched={k:((a_,a_+wl) if a_>50 else (a_,b_)) for k,(a_,b_) in wsched.items()}
        for nm,(g0,g1) in wsched.items():
            it=s.witems(nm,o("wper",1))
            for k,x in enumerate(it): Q.append((g0+(g1-g0)*k/len(it),x))
        seg(*o("hclr",(4,40)),s.hclr)
        s.tok_w["clr"]=s.tok_clr
        conf={24:["k1"],52:["Q0","clr"],80:["Q1"],108:["Q2"],136:["Q3"],164:["h0"],192:["h1"],220:["f0"],248:["f1"]}
        e1,eM,eW,eR=s.kv_epi(); ke=o("kvbar",108)
        seg(58,ke-12,e1); seg(ke-11,ke-10,eM[:1]); seg(ke-9,ke-8,eM[1:]); seg(ke-4,ke-1,eW); seg(ke+1,ke+8,eR)
        seg(171,223 if s.ty else o("gAend",226),s.gelu(ACC,aU,16,0,True)+s.gelu(ACC+16,aU+16,16,2,True))
        if s.ty: seg(228,o("g3end",274),s.gelu(ACC+32,ACC+48,16,4))
        gt=f"buffer_load_dword v{vPOLL+1}, off, {srd(SD)}, 0 offset:128 sc1"; gld=I(gt)
        seg(1,2,[gld])
        seg(53,54,[W(vm=gld)]+s.retry([f"v_cmp_eq_u32 vcc, 0, v{vPOLL+1}"],[gt])+[I(f"s_cmp_lg_u32 s{sW}, 0"),I(f"s_cselect_b32 s{sFKst}, 0x40000000, s{sFKst}"),
            I(f"buffer_store_dword v{vONE}, v{vZ}, {srd(SWS)}, s{sFKst} offen sc1")])
        ct=f"buffer_load_dword v{vPOLL+1}, v{vPA31}, {srd(SWS)}, s{sFKld} offen sc1"; cld=I(ct)
        gk=o("gkv",166); kld,kred=s.kv_l1()
        seg(gk-45,gk-44,[cld]); seg(gk-1,gk,[W(vm=cld)]+s.retry([f"v_cmp_eq_u32 vcc, 0, v{vPOLL+1}"],[ct])+[kld])
        seg(o("gfa",238),o("gfa",238)+1,s.flagst(1,[s.tok_h[1],s.hclr[-1]]))
        seg(o("gfb",264),o("gfb",264)+1,s.flagst(2,s.tok_h[3]))
        plA,pcA=s.poll(1); seg(o("gpa",266),o("gpa",266)+1,[I(f"v_and_b32 v{vPA7}, 28, v{vPA31}"),plA])
        T=lines(f"""
        s_mov_b32 s{SWD}, s16
        s_and_b32 s{SWD+1}, s17, 0xffff
        s_mov_b32 s{SWD+2}, {1792*896}
        """)
        T[2]=I(f"s_mul_i32 s{SWD+2}, s{sV2}, {1792*896}"); seg(26,27,T); T=[]
        if o("warm",1):
            T+=lines(f"""
            s_mov_b32 s{SWD+2}, {1792*896}
            s_lshl_b32 s{sC}, s{sWG}, 2
            s_add_u32 s{sC}, s{sC}, s{sW}
            v_lshlrev_b32 v{vTCH}, 2, v{vL16}
            s_mul_i32 s{sT3}, s{sC}, 1568
            s_mov_b64 exec, 0x1ffffff
            buffer_load_dword a255, v{vTCH}, {srd(SWD)}, s{sT3} offen
            s_mul_i32 s{SWD+2}, s{sV2}, {1792*896}
            s_lshr_b32 s{sT3}, s{sC}, 1
            s_mul_i32 s{sT3}, s{sT3}, 3136
            s_add_u32 s{sT3}, s{sT3}, 3072
            s_mov_b32 exec_lo, -1
            s_mov_b32 exec_hi, 0x1ffff
            buffer_load_dword a255, v{vTCH}, {srd(SW1)}, s{sT3} offen
            s_mov_b32 s{sP}, s{SD}
            s_mov_b32 s{sHc}, s{SD+1}
            s_mov_b32 s{SD}, s8
            s_and_b32 s{SD+1}, s9, 0xffff
            s_mov_b32 s{SD+2}, {448*896}
            s_mul_i32 s{sT3}, s{sC}, 392
            s_mov_b64 exec, 0x7f
            buffer_load_dword a255, v{vTCH}, {srd(SD)}, s{sT3} offen
            s_mov_b64 exec, -1
            """)
            for x in T: x.tag="inl"
        seg(o("gwarm",60),o("gwarm",60)+1,T)
        seg(o("gred",196),o("gred",196)+10,kred)
        kft=[f"buffer_load_dwordx4 {v(200+4*q,4)}, v{vL16}, {srd(SWS)}, s{sKF} offen offset:{q*1024} sc1" for q in range(4)]
        kf=[I(t) for t in kft]
        if s.ty: seg(o("gkf",252),o("gkf",252)+4,kf)
        seg(o("gsrd",222),o("gsrd",222)+2,lines(f"""
        s_mov_b32 s{SWO}, s8
        s_and_b32 s{SWO+1}, s9, 0xffff
        s_mul_i32 s{SWO+2}, s{sV2}, {448*896}
        s_mov_b32 s{SOUT}, s18
        s_and_b32 s{SOUT+1}, s19, 0xffff
        s_mov_b32 s{SOUT+2}, {2048*896}
        """))
        seg(166,168,lines(f"""
        v_add_u32 v{s.vBT[2]}, 0x10000, v{vBT[0]}
        v_add_u32 v{s.vBT[3]}, 0x10000, v{vBT[1]}
        """))
        if s.ty==1: seg(200,204,lines(f"""
        v_bfe_u32 v230, v{vL16}, 6, 2
        v_lshrrev_b32 v231, 9, v{vL16}
        v_mul_u32_u24 v231, 7168, v231
        v_lshl_add_u32 v231, v230, 7, v231
        v_add_u32 v231, {2*SLOT}, v231
        v_and_b32 v230, 0x7f, v{vBT[0]}
        v_add_u32 v{vQ}, v230, v231
        v_and_b32 v{vQ+1}, 64, v230
        v_and_b32 v230, 63, v230
        v_add_u32 v230, 56, v230
        v_xor_b32 v230, v230, v{vQ+1}
        v_add_u32 v{vQ+1}, v230, v231
        """))
        NR=s.NR=o("NR",19); pace=o("bpace",4); lag=o("blag",30); t=float(o("b0",60))
        free={e:(ENT_FREE[e]+1,None) for e in range(len(ENT))}; late=[]
        busy=set(); s.p2b=[]
        def slot(tt):
            g=int(tt)
            while g in busy: g+=1
            busy.add(g); return g
        for tt,x in Q:
            g=slot(tt); seg(g,g+1,x); assert g<o("gsrd",222)-1
        if o("bblock",(4,2)):
            for nm,(g0,g1) in wsched.items(): busy.update(range(g0-o("bblock",(4,2))[0],g1+o("bblock",(4,2))[1]))
        for n in range(36):
            e=min(free,key=lambda k:(max(free[k][0],t),k)); tt=max(free[e][0],t); tok=free.pop(e)[1]
            L=([W(lg=tok)] if tok else [])+s.bdma(n,e)
            tt=slot(tt)
            if kmap(n)[1]>=14 and tt<=o("gsrd",222)+2: busy.discard(tt); tt=slot(o("gsrd",222)+3)
            if n>=o("nbp",36): s.p2b.append(L); continue
            if tt<278: seg(tt,tt+1,L)
            else: late.append((tt,L))
            if n<NR:
                R=[W(vm=s.tok_b[n],tag="wB")]+[s.btr(n,q,aB+8*n) for q in range(4)]
                if tt+lag<277: seg(int(tt+lag),int(tt+lag)+1,R)
                else: late.append((tt+lag,R))
                free[e]=(tt+lag+3,R[-1])
            t=tt+pace
        late.sort(key=lambda x:x[0])
        p(W(vm=s.tok_w["k0"])); p("s_barrier")
        p(s.stamp("B0",1))
        rd={}
        for g in range(4):
            rd[g]=s.trd(g); p(rd[g])
        for g in range(280):
            ps,pos,u=s.gapinfo(g)
            if g%2==0: p(W(lg=rd[g+1][-1]))
            if ps in (1,2): D=(a(aU+32*(ps-1)+16*(u>>1),16) if u&1 else v(ACC+32*(ps-1)+16*(u>>1),16))
            else: D=v(ACC+(0 if ps==4 else 32)+16*u,16)
            fr=a((g%8)*4,4); xr=v(X+4*pos,4); C=D if pos else "0"
            if ps==0: p(f"v_mfma_f32_32x32x16_bf16 {D}, {xr}, {fr}, {C}")
            else: p(f"v_mfma_f32_32x32x16_bf16 {D}, {fr}, {xr}, {C}")
            if g in BARS:
                p(W(vm=[s.tok_w[x] for x in conf[g]], lg=0, tag="wBar") if g in conf else W(lg=0))
                p("s_barrier")
                p(s.stamp(f"g{g}", g not in (52,108,164,220,276)))
                if g==164: p("; SPLIT")
            if g+4<280:
                rd[g+4]=s.trd(g+4); p(rd[g+4])
            tr=o("trace",None)
            if tr and tr[0]<=g<tr[1] and (g-tr[0])%tr[2]==0: p(s.stamp(f"t{g}"))
            p(f"; gap {g}")
            heads=[]; pure=[]; mixed=[]
            for sgm in segs:
                g0,g1,L,done=sgm
                if g<g0 or done>=len(L): continue
                tot=sum(x.cost for x in L); tgt=tot*(g-g0+1)/(g1-g0) if g<g1-1 else tot+1
                acc=sum(x.cost for x in L[:done]); body=[]
                ismem=lambda x: x.kind in("ds","vmem") and x.tag!="inl"
                nh=0
                while done<len(L) and ismem(L[done]) and (acc<tgt or (done>0 and not ismem(L[done-1]))) and nh<o("maxhead",4):
                    heads.append(L[done]); acc+=L[done].cost; done+=1; nh+=1
                while done<len(L) and (acc<tgt or L[done].kind=="label") and (not ismem(L[done]) or g==279):
                    body.append(L[done]); acc+=L[done].cost; done+=1
                (pure if all(x.kind in("valu","trans") for x in body) else mixed).append(body)
                sgm[3]=done
            p([x for x in heads if x.kind=="ds"]); p([x for x in heads if x.kind!="ds"])
            for b in pure+mixed: p(b)
        assert all(x[3]==len(x[2]) for x in segs)
        p(s.stamp("p1_mfma_done"))
        p(f"""
        v_add_u32 v{s.vA1}, {8*18432}, v{vL16}
        s_cmp_eq_u32 s{sV2}, 0
        s_cselect_b32 s{sT2}, 0x40000000, 0
        s_add_u32 s{sA}, s{sA}, s{sT2}
        s_add_u32 s{sA+1}, s{sA+1}, s{sT2}
        """)
        pk=o("pk",1); T=[]; tp=T.extend
        if s.ty==0:
            tp(s.gelu(ACC+32,aU+32,16,4,True,pk)+s.gelu(ACC+48,aU+48,16,6,True,pk))
        else:
            PQ=[216,vP]
            for hh in range(2):
                Q=ACC+16*hh
                for h in range(4):
                    r=[4*h+k for k in range(4)]
                    tp([I(f"v_pk_mul_f32 {v(vT+2*k,2)}, {v(Q+r[2*k],2)}, {v(vS,2)} op_sel:[0,1] op_sel_hi:[1,1]") for k in range(2)])
                    tp([I(f"v_min_f32 v{vT+k}, 0, v{vT+k}") for k in range(4)])
                    tp([I(f"v_exp_f32 v{vT+k}, v{vT+k}") for k in range(4)])
                    tp([I(f"v_max_f32 v{Q+x}, 0, v{Q+x}") for x in r])
                    tp([I(f"v_pk_fma_f32 {v(Q+r[2*k],2)}, {v(Q+r[2*k],2)}, {v(vS,2)}, {v(vT+2*k,2)} op_sel_hi:[1,0,1]") for k in range(2)])
                    tp([I(f"v_add_f32 v{Q+x}, {fb(1e-6)}, v{Q+x}") for x in r])
                    tp([I(f"v_cvt_pk_bf16_f32 v{PQ[hh]+2*h+k}, v{Q+r[2*k]}, v{Q+r[2*k+1]}") for k in range(2)])
                tp([I(f"v_cndmask_b32 v{PQ[hh]+6+k}, v{PQ[hh]+6+k}, 0, s[{MHI}:{MHI+1}]") for k in range(2)])
                if hh==0:
                    c=s.stamp("pre_kf",1)+[W(vm=kf[-1])]+s.retry(s.chk(list(range(200,216))),kft)+s.stamp("kf_ok",1)
                    for x in c: x.tag=x.tag or "atom"
                    tp(c)
                N=ACC+32+16*hh
                tp(lines(f"""
                v_mfma_f32_32x32x16_bf16 {v(N,16)}, {v(200+8*hh,4)}, {v(PQ[hh],4)}, 0
                v_mfma_f32_32x32x16_bf16 {v(N,16)}, {v(204+8*hh,4)}, {v(PQ[hh]+4,4)}, {v(N,16)}
                """))
            for hh in range(2):
                N=ACC+32+16*hh; PO=ACC+8*hh
                tp(lines(f"""
                v_mov_b32 v230, v{N+12}
                v_mov_b32 v231, v{N+12}
                v_permlane32_swap_b32 v230, v231
                v_add_f32 v230, {fb(1e-6)}, v231
                v_rcp_f32 v230, v230
                """))
                tp([I(f"v_pk_mul_f32 {v(N+2*k,2)}, {v(N+2*k,2)}, v[230:231] op_sel_hi:[1,0]") for k in range(8)])
                tp([I(f"v_cvt_pk_bf16_f32 v{PO+k}, v{N+2*k}, v{N+2*k+1}") for k in range(8)])
                tp([I(f"v_cndmask_b32 v{PO+6+k}, v{PO+6+k}, 0, s[{MHI}:{MHI+1}]") for k in range(2)])
                tp([s.hstore(PO+4*f,6+2*hh+f) for f in range(2)])
        plB,pcB=s.poll(2)
        M=[s.stamp("pre_flagA",1)+list(pcA)+s.stamp("flagA",1)]
        npb=o("npb",3)
        for n in range(8):
            M.append(s.aload(n))
            if n==npb: M.append([plB])
        M+=[L for _,L in late]
        M.append(s.stamp("pre_flagB",1)+list(pcB)+s.stamp("flagB",1))
        for n in range(8,14): M.append(s.aload(n))
        tot=sum(x.cost for x in T); step=o("tstep",26); acc=0; nxt=o("tfirst",0)
        for x in T:
            if M and acc>=nxt and x.tag!="atom" and x.kind!="vmem": p(M.pop(0)); nxt+=step
            p(x); acc+=x.cost
        s.rest=M
        p(s.stamp("tail_done"))
        p(f"s_cmp_eq_u32 s{sV2}, 0"); p("s_cbranch_scc1 L_fin")
    def phase2(s):
        p=s.p; o=s.o; NR=s.NR
        vXR=204
        adr=[]
        vEW,vER,vO=216,220,222
        adr=lines(f"""
        v_lshrrev_b32 v230, 7, v{vL16}
        s_lshl_b32 s{sT3}, s{sW}, 3
        v_add_u32 v231, s{sT3}, v230
        v_mul_u32_u24 v231, 896, v231
        v_and_b32 v{vO}, 0x70, v{vL16}
        v_add_u32 v{vO}, v{vO}, v231
        v_add_u32 v{vO+1}, {32*896}, v{vO}
        v_bfe_u32 v231, v{vL16}, 4, 2
        v_lshlrev_b32 v231, 1, v231
        v_xor_b32 v231, v231, v230
        v_lshlrev_b32 v231, 4, v231
        v_lshl_add_u32 v231, v230, 8, v231
        v_bfe_u32 v230, v{vL16}, 6, 1
        v_lshl_add_u32 v231, v230, 7, v231
        s_lshl_b32 s{sT3}, s{sW}, 13
        v_add_u32 v{vER}, s{sT3}, v231
        v_xor_b32 v{vER+1}, 16, v{vER}
        v_bfe_u32 v230, v{vL16}, 4, 3
        v_lshrrev_b32 v231, 9, v{vL16}
        v_xor_b32 v231, v231, v230
        v_lshlrev_b32 v231, 4, v231
        v_lshl_add_u32 v231, v230, 8, v231
        v_bfe_u32 v230, v{vL16}, 7, 2
        v_lshl_add_u32 v231, v230, 13, v231
        v_add_u32 v{vEW}, s{sWB2}, v231
        v_xor_b32 v{vEW+1}, 32, v{vEW}
        v_xor_b32 v{vEW+2}, 64, v{vEW}
        v_xor_b32 v{vEW+3}, 0x60, v{vEW}
        """)
        while s.rest:
            p(s.rest.pop(0)); p(adr[:6]); adr=adr[6:]
        p(adr)
        groups=[(16,20),(20,24),(24,28),(28,32),(32,36)]
        n_s=groups[0][0]
        def gchk(n0,n1):
            return [W(vm=s.tok_a[n1-1])]+s.retry(s.chk([r for n in range(n0,n1) for r in s.areg(n)]),[t for n in range(n0,n1) for t in s.aload_txt(n)])
        breg=lambda n: aB+8*n if n<NR else (n%4)*8
        rb={}
        p(W(lg=0)); p(s.stamp("p2_start"))
        pend=[]; nxt=14; nC=o("nC",4); al=[]; bl=[]
        for n in range(33):
            p(pend); pend=[]
            if n in (8,16,24): p(s.stamp(f"p2_n{n}"))
            if n<n_s and n>=NR: p(W(vm=s.tok_a[n], lg=rb[n]))
            elif n<n_s: p(W(vm=s.tok_a[n]))
            elif n>=NR: p(W(lg=rb[n]))
            for q in range(4):
                nbk,mb=q>>1,q&1; D=ACC+16*q
                p(f"v_mfma_f32_32x32x16_bf16 {v(D,16)}, {a(breg(n)+nbk*4,4)}, {s.areg(n,mb)}, {v(D,16) if n else 0}")
                if NR<=n+1<36:
                    if q==0:
                        p(W(vm=s.tok_b[n+1])); p(s.btr(n+1,0,breg(n+1))); p(s.btr(n+1,1,breg(n+1)))
                    if q==1:
                        p(s.btr(n+1,2,breg(n+1))); rb[n+1]=p(s.btr(n+1,3,breg(n+1)))
                if n==32 and q>=2:
                    m=32+q; p(W(vm=s.tok_b[m]))
                    for k in range(4): rb[m]=p(s.btr(m,k,breg(m)))
                if q==2 and s.i_sent==4 and nxt<36:
                    al=s.aload(nxt); nxt+=1; post=[x for x in al if x.kind=="salu"]; al=[x for x in al if x.kind!="salu"]
                else: post=[]
                if q==3 and s.i_sent==4: p(al); al=[]
                if q==1: p(bl); bl=[]
                if q==0 and s.p2b and n>=o("p2b0",0):
                    bl=s.p2b.pop(0); post=[x for x in bl if x.kind!="vmem"]; bl=[x for x in bl if x.kind=="vmem"]
                if q==3:
                    if s.i_sent==6 and n==nC: p(pcC); p(s.stamp("flagC",1))
                    k=0
                    while s.i_sent==6 and nxt<36 and nxt<=n+14 and k<2 and (nxt<16 or n>=nC):
                        p(s.aload(nxt)); nxt+=1; k+=1
                    if n==24:
                        xr0=p(f"buffer_load_dwordx4 {v(vXR,4)}, v{vO}, {srd(SX)}, s{sOUT} offen")
                        xr1=p(f"buffer_load_dwordx4 {v(vXR+4,4)}, v{vO+1}, {srd(SX)}, s{sOUT} offen")
                ng=[g for g in groups if g[0]==n+1]
                if ng:
                    if q==0: pend=gchk(*ng[0])
                    k=(len(pend)+3-q)//(4-q) if q<3 else 0
                    if q<3: p(pend[:k]); pend=pend[k:]
                p(post)
        p(pend); p(W(lg=0))
        def wr(q): return [I(f"ds_write_b128 v{vEW+i}, {v(ACC+16*q+4*i,4)} offset:{(q&1)*32768+(q>>1)*128}") for i in range(4)]
        un=[I(f"v_lshlrev_b32 v{80+2*k}, 16, v{vXR+k}") for k in range(8)]+[I(f"v_and_b32 v{81+2*k}, 0xffff0000, v{vXR+k}") for k in range(8)]
        for q in range(4):
            nbk,mb=q>>1,q&1; D=ACC+16*q
            for n in range(33,36):
                p(f"v_mfma_f32_32x32x16_bf16 {v(D,16)}, {a(breg(n)+nbk*4,4)}, {s.areg(n,mb)}, {v(D,16)}")
                if q>=2 and n<35: p(wr(q-2)[2*(n-33):2*(n-33)+2])
                if q==0 and n==33: p(W(vm=xr1))
                if q<2: p(un[:3]); un=un[3:]
        p(s.stamp("p2_mfma_done"))
        p(un); p(wr(2)); p(wr(3))
        p(W(lg=0)); p("s_barrier")
        rr=[]
        for w in range(4):
            for c in range(4): rr.append(p(f"ds_read_b128 {v(16+16*w+4*c,4)}, v{vER+(c&1)} offset:{w*2048+(c>>1)*32768}"))
        p(W(lg=rr[7]))
        for k in range(8): p(f"v_pk_add_f32 {v(16+2*k,2)}, {v(16+2*k,2)}, {v(32+2*k,2)}")
        for k in range(8): p(f"v_pk_add_f32 {v(16+2*k,2)}, {v(16+2*k,2)}, {v(80+2*k,2)}")
        p(W(lg=rr[15]))
        for k in range(8): p(f"v_pk_add_f32 {v(48+2*k,2)}, {v(48+2*k,2)}, {v(64+2*k,2)}")
        of=o("outflag","sc1")
        for h in range(2):
            for k in range(4*h,4*h+4): p(f"v_pk_add_f32 {v(16+2*k,2)}, {v(16+2*k,2)}, {v(48+2*k,2)}")
            for k in range(4*h,4*h+4): p(f"v_cvt_pk_bf16_f32 v{96+k}, v{16+2*k}, v{17+2*k}")
            p(f"buffer_store_dwordx4 {v(96+4*h,4)}, v{vO+h}, {srd(SOUT)}, s{sOUT} offen {of}")
        p("L_fin:")
        if s.stamps:
            p(W(vm=0)); p(s.stamp("end"))
            p(f"s_lshl_b32 s{sT}, s{sMI}, 4\ns_add_u32 s{sT}, s{sT}, s{sJ}\ns_lshl_b32 s{sT}, s{sT}, 2\ns_add_u32 s{sT}, s{sT}, s{sW}\ns_lshl_b32 s{sT}, s{sT}, 8\ns_add_u32 s{sT}, s{sT}, {WS_ST}")
            p(f"v_lshrrev_b32 v{vL4}, 2, v{vL16}")
            p(f"buffer_store_dword v0, v{vL4}, {srd(SWS)}, s{sT} offen")
            if s.o("dbgwg",None) is not None:
                p(f"s_memrealtime s[{sSTMP}:{sSTMP+1}]\ns_waitcnt lgkmcnt(0)\nv_readlane_b32 s{sSPIN}, v0, 63\ns_nop 3\ns_sub_u32 s{sSTMP}, s{sSTMP}, s{sSPIN}\nv_readlane_b32 s{sSPIN}, v0, 0\ns_nop 3\nv_subrev_u32 v0, s{sSPIN}, v0\nv_writelane_b32 v0, s{sSTMP}, 0")
                p(f"s_cmp_lg_u32 s{sT}, {WS_ST+s.o('dbgwg',0)*256}\ns_cbranch_scc1 L_end\ns_mov_b64 exec, 0xffff")
                if s.o("warm",1): p(f"s_mov_b32 s{SD}, s{sP}\ns_mov_b32 s{SD+1}, s{sHc}\ns_mov_b32 s{SD+2}, 256")
                p(f"buffer_store_dword v0, v{vL4}, {srd(SD)}, 0 offen")
        if s.o("fixspan",0):
            p(W(vm=0)); p(f"v_readfirstlane_b32 s{sT}, v0\nL_fix:\ns_memrealtime s[{sSTMP}:{sSTMP+1}]\ns_waitcnt lgkmcnt(0)\ns_sub_u32 s{sSTMP}, s{sSTMP}, s{sT}\ns_cmp_lt_u32 s{sSTMP}, {s.opt['fixspan']}\ns_cbranch_scc1 L_fix")
        p("L_end:"); p("s_endpgm")
    def build(s):
        A,eA=s.one()
        g=Gen(stamps=s.stamps, ty=1, **s.opt); g.stnames=s.stnames; B,eB=g.one()
        ia=[i for i,x in enumerate(A) if x.text=="; SPLIT"][0]; ib=[i for i,x in enumerate(B) if x.text=="; SPLIT"][0]
        assert [x.text for x in A[:ia]]==[x.text for x in B[:ib]], "prefix differs"
        import re
        e=[i for i,x in enumerate(B) if x.op=="s_endpgm"][0]
        suf=B[ib+1:e+1]; defd={x.op[:-1] for x in suf if x.kind=="label"}
        blk=[];
        for x in B[e+1:]:
            if x.kind=="label" and re.fullmatch(r"L_spin\d+:",x.op): blk.append([])
            if x.op!="L_codeend:": blk[-1].append(x)
        for b in blk:
            if "L_ok"+b[0].op[6:-1] in defd: suf+=b; defd|={x.op[:-1] for x in b if x.kind=="label"}
        ren=lambda t: re.sub(r"\bL_\w+", lambda m: m.group(0)+"_B" if m.group(0) in defd else m.group(0), t)
        body=[x.text for x in A[:ia]]+[f"s_cmp_lg_u32 s{sTY}, 0","s_cbranch_scc1 L_typeB"]+[x.text for x in A[ia+1:-1]]+[".p2align 6","L_typeB:"]+[ren(x.text) for x in suf]+["L_codeend:"]
        s.ninstr=len(body); s.pads+=g.pads
        return s.wrap("\n".join(body)+"\n"), eA+eB
    def one(s):
        s.prologue(); s.phase1(); s.phase2()
        s.p.add(s.ool); s.p("L_codeend:")
        for pat in s.o("drop",[]):
            for x in s.p.L:
                if pat in x.text: x.text="; dropped"; x.kind="dir"; x.R=[]; x.W=[]; x.op=""; x.lds=False
        import re
        for a_,b_ in s.o("subst",[]):
            for x in s.p.L:
                if x.kind in("vmem","valu"): x.text=re.sub(a_,b_,x.text)
        for x in s.p.L:
            if x.waitfor and x.tag in s.o("dropw",[]): x.waitfor=(None,0 if x.waitfor[1]==0 else None); x.text="s_nop 0"
            if x.waitfor==(None,None): x.waitfor=None; x.kind="nop"; x.cost=1
        s.p.resolve()
        if s.o("nocomp",0):
            fl=("v_mul_f32","v_fma_f32","v_add_f32","v_min_f32","v_max_f32","v_cvt_pk","v_pk_","v_accvgpr","v_max3","v_max_u32","v_permlane")
            keep=[]
            for i,x in enumerate(s.p.L):
                if x.kind in("mfma","ds","dot","trans") or x.op.startswith(fl): continue
                if x.op=="s_cbranch_vccnz" and (s.p.L[i-1].op.startswith(("v_cmp_u","v_cmp_eq"))): continue
                keep.append(x)
            s.p.L=keep
        if s.o("nomem",0):
            s.p.L=[x for x in s.p.L if not ((x.kind=="vmem" and "v0, v" not in x.text) or x.op=="s_cbranch_vccnz")]
        s.p.check(fix=True); s.pads=s.p.pads
        errs=s.p.check()
        return s.p.L, errs
    def wrap(s, body):
        hdr=f"""; Fused LayerNorm + linear attention + GEGLU FFN + residual, one persistent launch (generated by dev/gen.py)
; @launch grid=(256,1,1) block=(256,1,1) lds={LDS}
.amdgcn_target "amdgcn-amd-amdhsa--gfx950"
.text
.globl {KN}
.p2align 8
.type {KN},@function
{KN}:
"""
        ftr=f""".section .rodata,"a"
.p2align 6
.amdhsa_kernel {KN}
  .amdhsa_next_free_vgpr 512
  .amdhsa_next_free_sgpr 102
  .amdhsa_accum_offset 256
  .amdhsa_group_segment_fixed_size 0
  .amdhsa_kernarg_size 80
  .amdhsa_user_sgpr_count 2
  .amdhsa_user_sgpr_kernarg_segment_ptr 1
  .amdhsa_system_sgpr_workgroup_id_x 1
.end_amdhsa_kernel
"""
        return hdr+body+ftr
if __name__=="__main__":
    import argparse
    ap=argparse.ArgumentParser(); ap.add_argument("-o",default="k.s"); ap.add_argument("--stamps",action="store_true"); ap.add_argument("-v",action="store_true"); ap.add_argument("--opt",default="{}")
    ar=ap.parse_args()
    g=Gen(stamps=ar.stamps, **eval(ar.opt)); txt,errs=g.build()
    for e in errs: print("ERR",e)
    if ar.v:
        for x in g.pads: print("pad",x)
    open(ar.o,"w").write(txt)
    print("instrs",g.ninstr,"errors",len(errs))
    from build import build
    build(ar.o)
```

```python
import sys, struct
from emit import Prog, I, W, Ins
KN = "parallel_sum__linear_attn_block__geglu_ffn__prompt_kernel"
def fb(x): return "0x%08x" % struct.unpack("<I", struct.pack("<f", x))[0]
SLOT=28672; KVX=143360; STAT=159744; LDS=163840
WS_KVP=0x900000; WS_KF=0xA00000; WS_FH=0xA10000; WS_FK=0xA14000; WS_ST=0xB00000; WS_SZ=0xC00000
LOG2E=1.4426950408889634
K0C=-2*0.7978845608028654*LOG2E; K1C=K0C*0.044715
sHc,sKF,sKR,sOUT=0,1,2,3
sA=4; sKP,sKFst=6,7
sW,sT=10,11
sBA,sBL,sBH,sBO=12,14,20,22
SX,SW0,SW1,SW4,SWS,SD=24,28,32,36,40,44
SWD,SWO,SOUT=SW0,SW1,SW4
C26,C35=48,55
CBQ,CB0,CB3,CB4=62,66,68,70
sWB7,sWB2=72,73; sH=74; sV2,sNB,sWG,sMI,sJ,sTY,sMB=77,78,79,80,81,82,83
sFHst,sFHld,sFKst,sFKld=84,85,86,87
sXM,sXC,sXR,sXT=84,85,86,87
MONE,MHI=88,90; sT2=92; sOLO,sOHI,sONES=93,94,95; sSTMP=96; sSPIN=98; sC,sP,sT3=99,100,101; sHK=sSPIN
def srd(n): return f"s[{n}:{n+3}]"
vL16,vWc,vWq,vW3,vW4,vW0=1,2,3,4,5,6
vB,vB2=6,7
vTR=8; vK0,vK1,vV,vS,vC2=11,12,13,14,15
X=16; ACC=128
vZ,vONE,vPOLL,vL4,vPA31=224,225,226,228,229
vPA7,vTCH=4,231
vTQ=232; vBT=[236,237,232,233,226,228]; vKFs,vKR=238,239
vSTR,vKXW,vKXR,vKP=240,241,242,243
vT=244; vP=248
aU=32; aB=96
vQ=234
vU=240
def v(a,n=1): return f"v{a}" if n==1 else f"v[{a}:{a+n-1}]"
def a(x,n=1): return f"a{x}" if n==1 else f"a[{x}:{x+n-1}]"
def lines(t): return [I(l.strip()) for l in t.strip().split("\n") if l.strip()]
def kmap(n):
    if n<16:
        st,r=n//8,n%8; pp,q=r//4,r%4
        return pp,(2*st+q if q<2 else 8+2*st+q-2)
    return ((n-16)%4)//2, [12,4,14,6,16][(n-16)//4]+n%2
BARS=[24,52,80,108,136,164,192,220,248,276]
ENT=[(4*e)*2048 for e in range(17)]+[KVX,KVX+8192]
ENT_FREE=[24]*3+[52]*4+[248]*3+[276]*4+[220]*3+[136,136]

class Gen:
    def __init__(s, stamps=False, ty=0, **opt):
        s.ty=ty; s.vBT=list(vBT)
        if ty==0: s.vBT[2:4]=[vTR,vTR+1]
        s.p=Prog(); s.ool=[]; s.stamps=stamps; s.stnames=[]; s.opt=opt; s.lbl=0
    def o(s,k,d): return s.opt.get(k,d)
    def stamp(s, name="", fine=False):
        if not s.stamps or (fine and not s.o("fine",0)): return []
        if name in s.stnames: k=s.stnames.index(name)
        else: k=len(s.stnames); s.stnames.append(name)
        return [I(f"s_memtime s[{sSTMP}:{sSTMP+1}]"), I("s_waitcnt lgkmcnt(0)"), I(f"v_writelane_b32 v0, s{sSTMP}, {k}")]
    def retry(s, test, reload, retest=None):
        n=s.lbl; s.lbl+=1
        chk=[I(t) for t in test]+[I(f"s_cbranch_vccnz L_spin{n}"), I(f"L_ok{n}:")]
        s.ool += [I(f"L_spin{n}:"), I(f"s_mov_b32 s{sSPIN}, 0x8000"), I(f"L_spinl{n}:"), I("s_waitcnt vmcnt(0)")]
        s.ool += [I(t,count=False) for t in reload]+[I("s_waitcnt vmcnt(0)")]+[I(t) for t in (retest or test)]
        s.ool += [I(f"s_cbranch_vccz L_ok{n}"), I(f"s_sub_u32 s{sSPIN}, s{sSPIN}, 1"), I(f"s_cmp_lg_u32 s{sSPIN}, 0"),
                  I(f"s_cbranch_scc1 L_spinl{n}"), I(f"s_branch L_ok{n}")]
        return chk
    def wdma(s, name):
        k,i0=name[0],int(name[1])
        vb,cb,sr,tb,slot={"k":(vW0,CB0+i0,SW0,C26,i0), "Q":(vWq,CBQ+i0,SW1,C35,[2,3,4,2][i0]),
                          "h":(vW3,CB3+i0,SW1,C35,3+i0), "f":(vW4,CB4+i0,SW4,C26,2+i0)}[k]
        L=[I(f"v_add_u32 v{vWc}, s{cb}, v{vb}")]
        for i in range(7):
            if i in (0,4): L.append(I(f"s_add_u32 m0, s{sWB7}, {slot*SLOT+(4096 if i==4 else 0)}"))
            L.append(I(f"buffer_load_dwordx4 v{vWc}, {srd(sr)}, s{tb+i} offen offset:{(i%4)*1024} lds"))
        s.tok_w[name]=L[-1]
        return L
    def witems(s, name, per):
        L=s.wdma(name); first=L[0]; D=[x for x in L if x.kind=="vmem"]; m0=[x for x in L if "m0" in x.W]; out=[]
        i=0
        while i<7:
            k=min(per,(4 if i<4 else 7)-i)
            out.append(([first] if i==0 else [])+[I(m0[i//4].text)]+D[i:i+k]); i+=k
        return out
    def bdma(s, n, e):
        pp,i=kmap(n)
        base,sr,k=(sBA+pp,SWD,i) if i<8 else (sBL+pp,SWD,i-8) if i<12 else (sBH+pp,SWD,i-12) if i<14 else (sBO+pp,SWO,None)
        off=k*14336 if k is not None else ((i-14)//2*28+(i-14)%2*16)*896
        L=[I(f"s_add_u32 m0, s{sWB2}, {ENT[e]}"), I(f"s_add_u32 s{sT}, s{base}, {off}"),
           I(f"buffer_load_dwordx4 v{vB}, {srd(sr)}, s{sT} offen lds"),
           I(f"buffer_load_dwordx4 v{vB2}, {srd(sr)}, s{sT} offen offset:1024 lds")]
        s.tok_b[n]=L[-1]; s.ent[n]=e
        return L
    def btr(s, n, q, dst):
        nbk,t=q>>1,q&1; ad=ENT[s.ent[n]]
        return I(f"ds_read_b64_tr_b16 {a(dst+nbk*4+2*t,2)}, v{s.vBT[2*(ad>>16)+nbk]} offset:{(ad&0xffff)+t*1024}")
    def prologue(s):
        p=s.p; s.tok_w={}; s.tok_b={}; s.ent={}
        if s.o("fixspan",0): p(f"s_memrealtime s[{sSTMP}:{sSTMP+1}]")
        p(f"""
        s_cmp_ge_u32 s2, 256
        s_cbranch_scc1 L_end
        s_load_dwordx4 s[4:7], s[0:1], 0
        s_load_dwordx4 s[20:23], s[0:1], 64
        s_load_dwordx2 s[8:9], s[0:1], 16
        s_load_dwordx4 s[12:15], s[0:1], 32
        s_load_dwordx4 s[16:19], s[0:1], 48
        s_getpc_b64 s[{SD}:{SD+1}]
        L_pc:
        v_lshrrev_b32 v192, 6, v0
        v_and_b32 v193, 63, v0
        v_readfirstlane_b32 s{sW}, v192
        v_lshlrev_b32 v{vL16}, 4, v193
        s_and_b32 s{sT}, s2, 7
        s_lshr_b32 s{sT2}, s2, 3
        s_and_b32 s{SD+1}, s{SD+1}, 0xffff
        s_mov_b32 s{SD+2}, L_codeend-L_pc
        s_mov_b32 s{SD+3}, 0x20000
        s_lshl_b32 s3, s{sT2}, 11
        v_cmp_gt_u32 vcc, 8, v193
        v_lshlrev_b32 v194, 6, v193
        v_lshl_add_u32 v194, v192, 9, v194
        v_bfrev_b32 v{vZ}, 2
        v_cndmask_b32 v194, v{vZ}, v194, vcc
        v_cmp_gt_u32 vcc, 4, v193
        s_mov_b32 s{sWG}, s2
        buffer_load_dword a255, v194, {srd(SD)}, s3 offen
        v_cndmask_b32 v{vKFs}, v{vZ}, v{vL16}, vcc
        s_and_b32 s{sMI}, s{sT}, 1
        s_lshl_b32 s{sMI}, s{sMI}, 3
        s_and_b32 s3, s{sT2}, 7
        s_add_u32 s{sMI}, s{sMI}, s3
        s_lshr_b32 s{sJ}, s{sT}, 1
        s_lshl_b32 s{sJ}, s{sJ}, 2
        s_lshr_b32 s3, s{sT2}, 3
        s_add_u32 s{sJ}, s{sJ}, s3
        s_add_u32 s{sC}, s{sMI}, s{sJ}
        s_and_b32 s{sC}, s{sC}, 3
        s_mul_i32 s{sXC}, s{sC}, 7
        s_lshr_b32 s{sXC}, s{sXC}, 2
        v_lshrrev_b32 v222, 3, v193
        v_mul_u32_u24 v222, 896, v222
        v_lshrrev_b32 v196, 4, v193
        v_and_b32 v197, 7, v193
        v_xor_b32 v196, v196, v197
        v_lshl_add_u32 v222, v196, 4, v222
        v_xor_b32 v223, 64, v222
        s_lshl_b32 s{sH}, s{sMI}, 2
        s_add_u32 s{sH}, s{sH}, s{sW}
        s_mul_i32 s{sXR}, s{sH}, {32*896}
        s_add_u32 s{sXM}, s{sW}, 1
        s_mul_i32 s{sXM}, s{sXM}, {SLOT}
        s_mov_b32 s{SX+2}, {2048*896}
        s_mov_b32 s{SX+3}, 0x20000
        s_waitcnt lgkmcnt(0)
        s_mov_b32 s{SX}, s4
        s_and_b32 s{SX+1}, s5, 0xffff
        """)
        if s.stamps:
            p("v_mov_b32 v0, 0"); p(s.stamp("start"))
            if s.o("dbgwg",None) is not None: p(f"s_memrealtime s[{sSTMP}:{sSTMP+1}]\ns_waitcnt lgkmcnt(0)\nv_writelane_b32 v0, s{sSTMP}, 63")
        if s.o("fixspan",0): p(f"v_mov_b32 v0, s{sSTMP}")
        p("s_cmp_lg_u32 s2, 0"); p("s_cbranch_scc1 L_noclr")
        p(f"""
        s_mov_b32 s{SWS}, s22
        s_and_b32 s{SWS+1}, s23, 0xffff
        s_mov_b32 s{SWS+2}, {WS_SZ}
        s_mov_b32 s{SWS+3}, 0x20000
        v_mov_b32 v200, 0
        v_mov_b32 v201, 0
        v_mov_b32 v202, 0
        v_mov_b32 v203, 0
        v_lshrrev_b32 v204, 1, v193
        v_and_b32 v205, 16, v{vL16}
        v_lshl_add_u32 v204, v204, 7, v205
        s_lshl_b32 s3, s{sW}, 12
        s_add_u32 s3, s3, {WS_FH}
        s_mov_b32 s4, {WS_FK}
        """)
        p(I(f"buffer_store_dwordx4 v[200:203], v204, {srd(SWS)}, s3 offen sc1", count=False))
        p(I(f"buffer_store_dwordx4 v[200:203], v{vL16}, {srd(SWS)}, s4 offen sc1", count=False))
        p("L_noclr:")
        tok_x=[]
        def xdma(P):
            L=[I(f"s_add_u32 m0, s{sXM}, {P*4096}"), I(f"s_lshl_b32 s{sXT}, s{sXC}, 7"), I(f"s_add_u32 s{sXT}, s{sXT}, s{sXR}")]
            for t in range(4):
                tk=I(f"buffer_load_dwordx4 v{222+(t&1)}, {srd(SX)}, s{sXT} offen offset:{t*1024} lds"); L.append(tk)
                if t<3: L.append(I(f"s_add_u32 s{sXT}, s{sXT}, 6144"))
            tok_x.append(tk)
            if P<6: L+=[I(f"s_add_u32 s{sXC}, s{sXC}, 1"), I(f"s_cmp_eq_u32 s{sXC}, 7"), I(f"s_cselect_b32 s{sXC}, 0, s{sXC}")]
            return L
        NX0=s.o("nx0",3)
        for P in range(NX0): p(xdma(P))
        p(s.stamp("x_first_issued",1))
        p(f"""
        s_mul_i32 s{sMB}, s{sT2}, 37
        s_lshr_b32 s{sMB}, s{sMB}, 8
        s_mul_i32 s3, s{sMB}, 7
        s_sub_u32 s{sNB}, s{sT2}, s3
        s_cmp_lt_u32 s{sT2}, 28
        s_cselect_b32 s{sV2}, 1, 0
        s_lshl_b32 s{sT}, s{sT}, 2
        s_add_u32 s{sMB}, s{sMB}, s{sT}
        s_mul_i32 s{sWB7}, s{sW}, 7168
        s_lshl_b32 s{sWB2}, s{sW}, 11
        s_and_b32 s{sTY}, s{sJ}, 1
        s_lshr_b32 s{sP}, s{sJ}, 1
        s_sub_u32 s{SW0}, s6, 3072
        s_subb_u32 s{SW0+1}, s7, 0
        s_and_b32 s{SW0+1}, s{SW0+1}, 0xffff
        s_mov_b32 s{SW0+2}, {448*2688+3072}
        s_mov_b32 s{SW0+3}, 0x20000
        s_and_b32 s5, s{sW}, 1
        s_lshr_b32 s4, s{sW}, 1
        s_cmp_eq_u32 s5, 0
        s_cselect_b32 s{SW1}, s12, s14
        s_cselect_b32 s{SW1+1}, s13, s15
        s_sub_u32 s{SW1}, s{SW1}, 3072
        s_subb_u32 s{SW1+1}, s{SW1+1}, 0
        s_and_b32 s{SW1+1}, s{SW1+1}, 0xffff
        s_mov_b32 s{SW1+2}, {448*3584+3072}
        s_mov_b32 s{SW1+3}, 0x20000
        s_mov_b32 s{SWS}, s22
        s_and_b32 s{SWS+1}, s23, 0xffff
        s_mov_b32 s{SWS+2}, {WS_SZ}
        s_mov_b32 s{SWS+3}, 0x20000
        s_mov_b32 s{SD}, s20
        s_and_b32 s{SD+1}, s21, 0xffff
        s_mov_b32 s{SD+2}, 256
        s_mov_b32 s{SD+3}, 0x20000
        """)
        for i in range(7):
            bias=3072-1024*(i%4)
            p(f"s_mov_b32 s{C26+i}, {i*16*2688+bias}"); p(f"s_mov_b32 s{C35+i}, {i*16*3584+bias}")
        for i in range(4): p(f"s_add_u32 s3, s{sC}, {i}\ns_and_b32 s3, s3, 3\ns_mul_i32 s{CBQ+i}, s3, {112*3584}")
        for i in range(2): p(f"s_add_u32 s3, s{sC}, s4\ns_add_u32 s3, s3, {2*i}\ns_and_b32 s3, s3, 3\ns_mul_i32 s{CB0+i}, s3, {112*2688}\ns_mul_i32 s{CB3+i}, s3, {112*3584}")
        p(f"""
        s_and_b32 s14, s{sP}, 1
        s_mul_i32 s15, s{sP}, 448
        s_mul_i32 s6, s14, 192
        s_sub_u32 s13, 256, s6
        s_lshl_b32 s7, s6, 1
        s_sub_u32 s7, 384, s7
        s_mul_i32 s21, s{sP}, 112
        s_cmp_eq_u32 s{sTY}, 0
        s_cselect_b32 s6, s6, s13
        s_cselect_b32 s{SW4}, s{SW1}, s{SW0}
        s_cselect_b32 s{SW4+1}, s{SW1+1}, s{SW0+1}
        s_cselect_b32 s{SW4+2}, s{SW1+2}, s{SW0+2}
        s_cselect_b64 s[{CB3}:{CB3+1}], s[{CBQ}:{CBQ+1}], s[{CB3}:{CB3+1}]
        s_cselect_b64 s[{CB4}:{CB4+1}], s[{CBQ+2}:{CBQ+3}], s[{CB0}:{CB0+1}]
        s_cselect_b64 vcc, -1, 0
        s_mov_b32 s{SW4+3}, 0x20000
        s_add_u32 s6, s6, s15
        s_add_u32 s7, s7, s15
        s_lshr_b32 s3, s{sJ}, 3
        s_and_b32 s3, s3, {s.o("hswap",1)}
        s_xor_b32 s{sHK}, s{sJ}, s3
        s_mul_i32 s13, s5, 896
        s_mul_i32 s3, s{sHK}, 56
        s_add_u32 s13, s13, s3
        s_add_u32 s13, s13, 896
        v_lshrrev_b32 v197, 2, v193
        v_and_b32 v198, 48, v{vL16}
        v_mul_u32_u24 v{vW0}, 2688, v197
        v_add3_u32 v{vW0}, v{vW0}, v198, s13
        v_mul_u32_u24 v{vW3}, 3584, v197
        v_add3_u32 v{vW3}, v{vW3}, v198, s7
        v_lshrrev_b32 v197, 3, v193
        v_bfe_u32 v198, v193, 4, 1
        v_lshlrev_b32 v198, 6, v198
        v_and_b32 v199, 0x70, v{vL16}
        v_xor_b32 v198, v198, v199
        v_mul_u32_u24 v199, 896, v197
        v_add_u32 v{vB2}, v199, v198
        s_lshl_b32 s5, s5, 3
        v_add_u32 v199, s5, v197
        v_mul_u32_u24 v199, 2688, v199
        v_add3_u32 v{vW4}, v199, v198, s21
        s_lshl_b32 s4, s4, 3
        v_add_u32 v197, s4, v197
        v_mul_u32_u24 v197, 3584, v197
        v_add3_u32 v{vWq}, v197, v198, s6
        v_add_u32 v197, 128, v{vWq}
        v_cndmask_b32 v{vW3}, v{vW3}, v197, vcc
        v_cndmask_b32 v{vW4}, v{vW4}, v197, vcc
        s_lshl_b32 s3, s{sH}, 3
        s_add_u32 s3, s3, s{sP}
        s_mul_i32 s{sH}, s3, 18432
        s_lshl_b32 s3, s{sTY}, 13
        s_add_u32 s{sH}, s{sH}, s3
        s_add_u32 s{sH+1}, s{sH}, 4096
        s_add_u32 s{sH+2}, s{sH}, 8192
        s_lshl_b32 s{sKF}, s{sP}, 12
        s_add_u32 s{sKF}, s{sKF}, {WS_KF}
        s_cmp_eq_u32 s{sTY}, 0
        s_cselect_b32 s{sHc}, 0x40000000, s{sH+2}
        s_cselect_b32 s{sKF}, 0x40000000, s{sKF}
        s_lshl_b32 s3, s{sHK}, 16
        s_add_u32 s3, s3, {WS_KVP}
        s_lshl_b32 s4, s{sMI}, 12
        s_add_u32 s{sKR}, s3, s4
        s_lshl_b32 s4, s{sW}, 14
        s_add_u32 s{sKP}, s3, s4
        s_lshl_b32 s4, s{sMI}, 8
        s_add_u32 s{sKP}, s{sKP}, s4
        s_lshl_b32 s{sKFst}, s{sHK}, 11
        s_add_u32 s{sKFst}, s{sKFst}, {WS_KF}
        s_lshr_b32 s3, s{sMI}, 3
        s_lshl_b32 s3, s3, 10
        s_add_u32 s{sKFst}, s{sKFst}, s3
        s_bfe_u32 s3, s{sMI}, 0x10002
        s_lshl_b32 s3, s3, 3
        s_add_u32 s{sKFst}, s{sKFst}, s3
        s_and_b32 s3, s{sMI}, 3
        s_lshl_b32 s3, s3, 2
        s_add_u32 s3, s3, s{sW}
        s_lshl_b32 s3, s3, 6
        s_add_u32 s{sKFst}, s{sKFst}, s3
        s_mov_b32 s{sOLO}, 0x3f80
        s_mov_b32 s{sOHI}, 0x3f800000
        s_mov_b32 s{sONES}, 0x3f803f80
        s_mov_b32 s{MONE}, 0x10000000
        s_mov_b32 s{MONE+1}, 0x10000000
        s_mov_b32 s{MHI}, 0
        s_mov_b32 s{MHI+1}, -1
        s_add_u32 s{sT}, s{sMB}, s{sNB}
        """)
        for pp in range(2):
            p(f"""
            s_add_u32 s3, s{sT}, {pp}
            s_and_b32 s3, s3, 1
            s_mul_i32 s{sT3}, s3, {96*896}
            s_lshl_b32 s{sT2}, s{sW}, 1
            s_add_u32 s3, s3, s{sT2}
            s_mul_i32 s{sT2}, s3, {224*896}
            s_add_u32 s{sBA+pp}, s{sT2}, s{sT3}
            s_sub_u32 s{sBL+pp}, s{sT2}, s{sT3}
            s_sub_u32 s{sBH+pp}, s{sBL+pp}, s{sT3}
            s_add_u32 s{sBL+pp}, s{sBL+pp}, {128*896}
            s_add_u32 s{sBH+pp}, s{sBH+pp}, {192*896}
            s_mul_i32 s{sBO+pp}, s3, {56*896}
            s_lshl_b32 s{sA+pp}, s{sMB}, 4
            s_add_u32 s{sA+pp}, s{sA+pp}, s3
            s_mul_i32 s{sA+pp}, s{sA+pp}, 18432
            """)
        p(f"""
        s_mul_i32 s{sOUT}, s{sMB}, {64*896}
        s_lshl_b32 s{sNB}, s{sNB}, 7
        s_add_u32 s{sOUT}, s{sOUT}, s{sNB}
        v_add_u32 v{vB2}, s{sNB}, v{vB2}
        v_lshrrev_b32 v197, 5, v193
        v_bfe_u32 v198, v193, 2, 2
        v_bfe_u32 v199, v193, 4, 1
        v_and_b32 v200, 3, v193
        v_lshlrev_b32 v200, 3, v200
        v_lshl_add_u32 v200, v199, 5, v200
        v_lshl_add_u32 v201, v197, 3, v198
        v_lshl_add_u32 v{vTR}, v201, 6, v200
        v_add_u32 v{vTR+1}, {2*SLOT}, v{vTR}
        v_add_u32 v{vTR+2}, {4*SLOT}, v{vTR}
        v_bfe_u32 v199, v193, 3, 1
        v_lshl_add_u32 v200, v199, 6, v200
        v_lshl_add_u32 v200, v198, 7, v200
        v_mul_u32_u24 v201, 14336, v197
        v_add_u32 v201, v200, v201
        v_add_u32 v{vTQ}, {2*SLOT}, v201
        v_add_u32 v{vTQ+1}, {4*SLOT}, v201
        v_xor_b32 v{vTQ+2}, 64, v{vTQ}
        v_xor_b32 v{vTQ+3}, 64, v{vTQ+1}
        v_lshl_add_u32 v200, v197, 9, v200
        v_add_u32 v{vBT[0]}, s{sWB2}, v200
        v_xor_b32 v{vBT[1]}, 64, v{vBT[0]}
        v_add_u32 v{vBT[4]}, 0x20000, v{vBT[0]}
        v_add_u32 v{vBT[5]}, 0x20000, v{vBT[1]}
        v_and_b32 v198, 31, v193
        v_bfe_u32 v199, v193, 1, 3
        v_xor_b32 v199, v199, v197
        v_lshlrev_b32 v199, 4, v199
        v_lshl_add_u32 v199, v198, 7, v199
        v_add_u32 v199, s{sXM}, v199
        s_mul_i32 s{sT}, s{sC}, 7
        s_and_b32 s{sT}, s{sT}, 3
        """)
        for m in range(4):
            p(f"""
            s_add_u32 s{sT2}, s{sT}, {m}
            s_and_b32 s{sT3}, s{sT2}, 3
            s_lshl_b32 s{sT3}, s{sT3}, 5
            v_xor_b32 v{204+m}, s{sT3}, v199
            s_lshr_b32 s{sT2}, s{sT2}, 2
            s_lshl_b32 s{sT3}, s{sT2}, 12
            v_add_u32 v{204+m}, s{sT3}, v{204+m}
            s_mul_i32 s{sT3}, s{sT2}, {7*4096}
            v_subrev_u32 v{212+m}, s{sT3}, v{204+m}
            """)
        p(f"""
        s_lshl_b32 s{sT2}, s{sW}, 7
        s_add_u32 s{sT2}, s{sT2}, {STAT}
        v_lshl_add_u32 v{vSTR}, v197, 4, s{sT2}
        v_lshl_add_u32 v230, v198, 2, s{sT2}
        s_lshl_b32 s{sT2}, s{sW}, 12
        s_add_u32 s{sT2}, s{sT2}, {KVX}
        v_add_u32 v{vKXW}, s{sT2}, v{vL16}
        s_lshl_b32 s{sT2}, s{sW}, 10
        s_add_u32 s{sT2}, s{sT2}, {KVX}
        v_add_u32 v{vKXR}, s{sT2}, v{vL16}
        v_lshrrev_b32 v200, 4, v193
        v_and_b32 v201, 0xf0, v{vL16}
        v_lshl_add_u32 v{vKP}, v200, 12, v201
        v_lshrrev_b32 v200, 2, v193
        v_and_b32 v201, 48, v{vL16}
        v_lshl_add_u32 v200, v200, 8, v201
        s_lshl_b32 s{sT2}, s{sW}, 6
        v_add_u32 v{vKR}, s{sT2}, v200
        v_cmp_eq_u32 vcc, 0, v193
        v_mov_b32 v{vONE}, 1
        v_cndmask_b32 v{vZ}, v{vZ}, 0, vcc
        v_lshlrev_b32 v{vPA31}, 2, v198
        v_mov_b32 v208, 0
        v_mov_b32 v209, 0
        v_mov_b32 v210, 0
        v_mov_b32 v211, 0
        v_mov_b32 v216, -1
        v_mov_b32 v217, -1
        v_mov_b32 v218, -1
        v_mov_b32 v219, -1
        """)
        p(s.stamp("setup_done",1))
        clr=[I(f"buffer_store_dwordx4 v[216:219], v{vKP}, {srd(SWS)}, s{sKP} offen sc1"),
             I(f"buffer_store_dwordx2 v[216:217], v{vKFs}, {srd(SWS)}, s{sKFst} offen sc1")]
        s.i_sent=4 if s.o("sentC",1) else 6
        hc=[]
        for i in range(s.i_sent,10):
            hc.append(f"buffer_store_dwordx4 {v(vP,4)}, v{vL16}, {srd(SWS)}, s{sH+i//4 if i<8 else sHc} offen offset:{(i%4)*1024} sc1")
        s.hclr=[I(f"v_mov_b32 v{vP+k}, -1") for k in range(4)]+[I(t) for t in hc]
        def stats(G):
            for q in range(4):
                for r in range(4):
                    x=X+(G*4+q)*4+r
                    p(f"v_dot2_f32_bf16 v{208+(r&1)}, v{x}, s{sONES}, v{208+(r&1)}")
                    p(f"v_dot2_f32_bf16 v{210+(r&1)}, v{x}, v{x}, v{210+(r&1)}")
        prev=None; todo=[xdma(P) for P in range(NX0,7)]
        k0=s.witems("k0",1)+[[clr[0]],[clr[1]]]; per=-(-len(k0)//(NX0+1))
        def stats2(G, items):
            L=[]
            for q in range(4):
                for r in range(4):
                    x=X+(G*4+q)*4+r
                    L.append(I(f"v_dot2_f32_bf16 v{208+(r&1)}, v{x}, s{sONES}, v{208+(r&1)}"))
                    L.append(I(f"v_dot2_f32_bf16 v{210+(r&1)}, v{x}, v{x}, v{210+(r&1)}"))
            for k,it in enumerate(items): L[32*k//len(items)]=[L[32*k//len(items)]]+it
            p(L)
        for G in range(7):
            if todo: p(todo.pop(0)); it=[]
            else: it=k0[:per]; k0=k0[per:]
            p(W(vm=tok_x[min(G+1,6)]))
            p(s.stamp(f"x{G}",1))
            for q in range(4):
                tk=p(f"ds_read_b128 {v(X+(G*4+q)*4,4)}, v{(204 if G<6 else 212)+q} offset:{G*4096}")
            if prev is not None:
                p(W(lg=prev)); stats2(G-1,it)
            prev=tk
        s.tok_clr=clr[-1]
        p(W(lg=0))
        p(s.stamp("x_in_regs"))
        p("s_barrier")
        p(f"s_or_b32 s{sT}, s{sWG}, s{sW}\ns_cmp_lg_u32 s{sT}, 0\ns_cbranch_scc1 L_nogo")
        p(I(f"buffer_store_dword v{vONE}, v{vZ}, {srd(SD)}, 0 offen offset:128 sc1", count=False))
        p("L_nogo:")
        p(f"""
        s_lshl_b32 s{sT}, s{sMI}, 2
        s_add_u32 s{sT}, s{sT}, s{sW}
        s_lshr_b32 s{sT2}, s{sT}, 1
        s_lshl_b32 s{sT2}, s{sT2}, 2
        s_lshr_b32 s{sT3}, s{sJ}, 2
        s_add_u32 s{sT2}, s{sT2}, s{sT3}
        s_lshl_b32 s{sFHst}, s{sT2}, 7
        s_and_b32 s{sT}, s{sT}, 1
        s_lshl_b32 s{sT}, s{sT}, 2
        s_and_b32 s{sT3}, s{sJ}, 3
        s_add_u32 s{sT}, s{sT}, s{sT3}
        s_lshl_b32 s{sT}, s{sT}, 2
        s_add_u32 s{sFHst}, s{sFHst}, s{sT}
        s_add_u32 s{sFHst}, s{sFHst}, {WS_FH}
        s_lshl_b32 s{sFHld}, s{sMB}, 2
        s_add_u32 s{sFHld}, s{sFHld}, s{sW}
        s_lshl_b32 s{sFHld}, s{sFHld}, 7
        s_add_u32 s{sFHld}, s{sFHld}, {WS_FH}
        s_cmp_eq_u32 s{sV2}, 0
        s_cselect_b32 s{sFHld}, {WS_FH}, s{sFHld}
        s_lshl_b32 s{sFKld}, s{sP}, 7
        s_add_u32 s{sFKld}, s{sFKld}, {WS_FK}
        s_lshl_b32 s{sT}, s{sTY}, 4
        s_add_u32 s{sT}, s{sT}, s{sMI}
        s_lshl_b32 s{sT}, s{sT}, 2
        s_add_u32 s{sFKst}, s{sFKld}, s{sT}
        """)
        stats2(6,k0)
        p(f"""
        v_add_f32 v208, v208, v209
        v_add_f32 v210, v210, v211
        v_mov_b32 v209, v208
        v_mov_b32 v211, v210
        v_permlane32_swap_b32 v208, v209
        v_permlane32_swap_b32 v210, v211
        v_add_f32 v208, v208, v209
        v_add_f32 v210, v210, v211
        v_mul_f32 v208, {fb(1/448)}, v208
        v_mul_f32 v210, {fb(1/448)}, v210
        v_fma_f32 v210, -v208, v208, v210
        v_max_f32 v210, 0, v210
        v_add_f32 v{vV}, {fb(1e-5)}, v210
        v_rsq_f32 v{vS}, v{vV}
        v_mul_f32 v{vK0}, {fb(K0C)}, v{vS}
        v_mul_f32 v{vC2}, {fb(LOG2E)}, v{vS}
        v_mul_f32 v209, v{vS}, v{vS}
        v_mul_f32 v209, v209, v{vS}
        v_mul_f32 v{vK1}, {fb(K1C)}, v209
        ds_write_b32 v230, v{vS}
        """)
        dm=[]
        for nm in s.o("cdma",["k1"]): dm+=s.wdma(nm)
        nd=sum(1 for x in dm if x.kind=="vmem"); di=0; iss=0
        for g in range(57):
            x0=X+g*2; bk=212+4*(g&1); pb=212+4*((g+1)&1)
            if g<56:
                p(f"v_dot2_f32_bf16 v{bk}, v{x0}, s{sOLO}, v208 neg_lo:[0,0,1]")
                p(f"v_dot2_f32_bf16 v{bk+1}, v{x0}, s{sOHI}, v208 neg_lo:[0,0,1]")
                p(f"v_dot2_f32_bf16 v{bk+2}, v{x0+1}, s{sOLO}, v208 neg_lo:[0,0,1]")
                p(f"v_dot2_f32_bf16 v{bk+3}, v{x0+1}, s{sOHI}, v208 neg_lo:[0,0,1]")
            if g>0:
                p(f"v_cvt_pk_bf16_f32 v{x0-2}, v{pb}, v{pb+1}"); p(f"v_cvt_pk_bf16_f32 v{x0-1}, v{pb+2}, v{pb+3}")
            while di<len(dm) and iss<nd*(g+1)/57:
                p(dm[di]); iss+=dm[di].kind=="vmem"; di+=1
        assert di==len(dm)
        p(f"v_mov_b32 v{vB}, v{vB2}\nv_add_u32 v{vB2}, 6144, v{vB2}")
        s.selC=lines(f"s_cmp_eq_u32 s{sTY}, 0\n"+"\n".join(f"s_cselect_b32 s{C26+i}, s{C35+i}, s{C26+i}" for i in range(7)))
        p(s.stamp("centered"))
    def hstore(s, P, i):
        x=I(f"buffer_store_dwordx4 {v(P,4)}, v{vL16}, {srd(SWS)}, s{sH+i//4} offen offset:{(i%4)*1024} sc1"); s.tok_h[i]=x; return x
    def flagst(s, val, tok):
        return [W(vm=tok,tag="wFl"), I(f"v_mov_b32 v{vONE}, {val}"), I(f"buffer_store_dword v{vONE}, v{vZ}, {srd(SWS)}, s{sFHst} offen sc1")]
    def poll(s, val):
        t=f"buffer_load_dword v{vPOLL+1}, v{vPA7}, {srd(SWS)}, s{sFHld} offen sc1"
        ld=I(t); return ld, [W(vm=ld)]+s.retry([f"v_cmp_gt_u32 vcc, {val}, v{vPOLL+1}"], [t])
    def gelu(s, G, U, n, i0, acc=False, pk=False):
        L=[]
        for f in range(n//8):
            P=vP+4*(f&1)
            for h in range(2):
                r=[f*8+h*4+k for k in range(4)]
                if pk:
                    if acc: L+=[I(f"v_accvgpr_read_b32 v{vU+k}, a{U+r[k]}") for k in range(4)]
                    g2=[v(G+r[2*k],2) for k in range(2)]; u2=[v(vU+2*k if acc else U+r[2*k],2) for k in range(2)]; t2=[v(vT+2*k,2) for k in range(2)]
                    L+=[I(f"v_pk_mul_f32 {t2[k]}, {g2[k]}, {g2[k]}") for k in range(2)]
                    L+=[I(f"v_pk_fma_f32 {t2[k]}, {t2[k]}, {v(vK1,2)}, {v(vK0-1,2)} op_sel:[0,0,1] op_sel_hi:[1,0,1]") for k in range(2)]
                    L+=[I(f"v_pk_mul_f32 {t2[k]}, {t2[k]}, {g2[k]}") for k in range(2)]
                    L+=[I(f"v_pk_mul_f32 {g2[k]}, {g2[k]}, {u2[k]}") for k in range(2)]
                    L+=[I(f"v_exp_f32 v{vT+k}, v{vT+k}") for k in range(4)]
                    L+=[I(f"v_pk_fma_f32 {t2[k]}, {t2[k]}, {v(vV-1,2)}, {v(vV-1,2)} op_sel:[0,1,1] op_sel_hi:[1,1,1]") for k in range(2)]
                    L+=[I(f"v_rcp_f32 v{vT+k}, v{vT+k}") for k in range(4)]
                    L+=[I(f"v_pk_mul_f32 {g2[k]}, {g2[k]}, {t2[k]}") for k in range(2)]
                    L+=[I(f"v_cvt_pk_bf16_f32 v{P+2*h+k}, v{G+r[2*k]}, v{G+r[2*k+1]}") for k in range(2)]
                    continue
                L+=[I(f"v_mul_f32 v{vT+k}, v{G+r[k]}, v{G+r[k]}") for k in range(4)]
                L+=[I(f"v_fma_f32 v{vT+k}, v{vT+k}, v{vK1}, v{vK0}") for k in range(4)]
                L+=[I(f"v_mul_f32 v{vT+k}, v{vT+k}, v{G+r[k]}") for k in range(4)]
                if acc: L+=[I(f"v_accvgpr_read_b32 v{vU+k}, a{U+r[k]}") for k in range(4)]
                L+=[I(f"v_exp_f32 v{vT+k}, v{vT+k}") for k in range(4)]
                L+=[I(f"v_mul_f32 v{G+r[k]}, v{G+r[k]}, v{vU+k if acc else U+r[k]}") for k in range(4)]
                L+=[I(f"v_fma_f32 v{vT+k}, v{vT+k}, v{vV}, v{vV}") for k in range(4)]
                L+=[I(f"v_rcp_f32 v{vT+k}, v{vT+k}") for k in range(4)]
                L+=[I(f"v_mul_f32 v{G+r[k]}, v{G+r[k]}, v{vT+k}") for k in range(4)]
                L+=[I(f"v_cvt_pk_bf16_f32 v{P+2*h+k}, v{G+r[2*k]}, v{G+r[2*k+1]}") for k in range(2)]
            L.append(s.hstore(P,i0+f))
        return L
    def kv_epi(s):
        K=ACC+32; V=ACC+48; S=192; PK=208; PV=216; L=[]
        rd=[I(f"ds_read_b128 {v(S+4*i,4)}, v{vSTR} offset:{32*i}") for i in range(4)]
        L+=rd+[W(lg=rd[-1])]
        for h in range(4):
            r=[4*h+k for k in range(4)]
            L+=[I(f"v_mul_f32 v{K+x}, v{K+x}, v{S+x}") for x in r]
            L+=[I(f"v_min_f32 v{vT+k}, 0, v{K+r[k]}") for k in range(4)]
            L+=[I(f"v_mul_f32 v{vT+k}, {fb(LOG2E)}, v{vT+k}") for k in range(4)]
            L+=[I(f"v_exp_f32 v{vT+k}, v{vT+k}") for k in range(4)]
            L+=[I(f"v_max_f32 v{K+x}, 0, v{K+x}") for x in r]
            L+=[I(f"v_add_f32 v{K+r[k]}, v{K+r[k]}, v{vT+k}") for k in range(4)]
            L+=[I(f"v_add_f32 v{K+x}, {fb(1e-6)}, v{K+x}") for x in r]
            L+=[I(f"v_mul_f32 v{V+x}, v{V+x}, v{S+x}") for x in r]
            L+=[I(f"v_cvt_pk_bf16_f32 v{PK+2*h+k}, v{K+r[2*k]}, v{K+r[2*k+1]}") for k in range(2)]
            L+=[I(f"v_cvt_pk_bf16_f32 v{PV+2*h+k}, v{V+r[2*k]}, v{V+r[2*k+1]}") for k in range(2)]
        L+=[I(f"v_mov_b32 v{vT}, s{sONES}")]
        L+=[I(f"v_cndmask_b32 v{PV+k}, v{PV+k}, v{vT}, s[{MONE}:{MONE+1}]") for k in range(8)]
        M=[I(f"v_mfma_f32_32x32x16_bf16 {v(K,16)}, {v(PK,4)}, {v(PV,4)}, 0"),
           I(f"v_mfma_f32_32x32x16_bf16 {v(K,16)}, {v(PK+4,4)}, {v(PV+4,4)}, {v(K,16)}")]
        Wr=[I(f"ds_write_b128 v{vKXW}, {v(K+4*q,4)} offset:{q*1024}") for q in range(4)]
        rd2=[I(f"ds_read_b128 {v(S+4*q,4)}, v{vKXR} offset:{q*4096}") for q in range(4)]
        R=rd2+[W(lg=rd2[-1])]
        R+=[I(f"v_add_f32 v{S+k}, v{S+k}, v{S+4+k}") for k in range(4)]
        R+=[I(f"v_add_f32 v{S+8+k}, v{S+8+k}, v{S+12+k}") for k in range(4)]
        R+=[I(f"v_add_f32 v{S+k}, v{S+k}, v{S+8+k}") for k in range(4)]
        R.append(I(f"buffer_store_dwordx4 {v(S,4)}, v{vKP}, {srd(SWS)}, s{sKP} offen sc1"))
        return L,M,Wr,R
    def chk(s, regs):
        t=[f"v_max3_u32 v230, v{regs[0]}, v{regs[1]}, v{regs[2]}"]; r=regs[3:]
        if len(regs)>=8: t.append(f"v_max3_u32 v231, v{r[0]}, v{r[1]}, v{r[2]}"); r=r[3:]
        else: t.append(f"v_mov_b32 v231, v{r[0]}"); r=r[1:]
        k=0
        while r:
            t.append(f"v_max3_u32 v{230+k}, v{230+k}, v{r[0]}, v{r[1]}"); r=r[2:]; k^=1
        return t+["v_max_u32 v230, v230, v231","v_cmp_eq_u32 vcc, -1, v230"]
    def kv_l1(s):
        t=f"buffer_load_dwordx4 v[192:195], v{vKR}, {srd(SWS)}, s{sKR} offen sc1"; ld=I(t)
        L=[W(vm=ld)]+s.retry(s.chk([192,193,194,195]),[t])
        for rot in (4,8): L+=[I(f"v_add_f32_dpp v{192+k}, v{192+k}, v{192+k} row_ror:{rot} row_mask:0xf bank_mask:0xf") for k in range(4)]
        for sw in ("v_permlane16_swap_b32","v_permlane32_swap_b32"):
            L+=[I(f"v_mov_b32 v{196+k}, v{192+k}") for k in range(4)]
            L+=[I(f"{sw} v{192+k}, v{196+k}") for k in range(4)]
            L+=[I(f"v_add_f32 v{192+k}, v{192+k}, v{196+k}") for k in range(4)]
        L+=[I("v_cvt_pk_bf16_f32 v196, v192, v193"), I("v_cvt_pk_bf16_f32 v197, v194, v195"),
            I(f"buffer_store_dwordx2 v[196:197], v{vKFs}, {srd(SWS)}, s{sKFst} offen sc1")]
        return ld,L
    def aload_txt(s, n):
        pp,i=kmap(n); L=[]
        so=f"s{sA+pp}"
        if i>=4: L.append(f"s_add_u32 s{sT2}, s{sA+pp}, {(i//4)*4096}"); so=f"s{sT2}"
        return L+[f"buffer_load_dwordx4 {s.areg(n,mb)}, v{vL16 if mb==0 else s.vA1}, {srd(SWS)}, {so} offen offset:{(i%4)*1024} sc1" for mb in range(2)]
    def areg(s,n,mb=None):
        b=X+8*(n%14)
        return list(range(b,b+8)) if mb is None else v(b+4*mb,4)
    def aload(s, n):
        L=[I(t) for t in s.aload_txt(n)]; s.tok_a[n]=L[-1]; return L
    def gapinfo(s, g):
        if g<56: return 0,g>>1,g&1
        if g<168: return 1,(g-56)>>2,(g-56)&3
        if s.ty==0: return 2,(g-168)>>2,(g-168)&3
        return 3+(g-168)//56,((g-168)%56)>>1,g&1
    def trd(s, g):
        ps,pos,u=s.gapinfo(g); dst=(g%8)*4; L=[]
        for t in range(2):
            if ps in (1,2):
                slot=[[2,3,4,2],[3,4,2,3]][ps-1][pos//7]
                L.append(I(f"ds_read_b64_tr_b16 {a(dst+2*t,2)}, v{vTQ+2*(u>>1)+slot//2-1} offset:{(slot&1)*SLOT+(u&1)*7168+(pos%7)*1024+t*512}"))
            elif ps==4:
                pl=pos%14
                L.append(I(f"ds_read_b64_tr_b16 {a(dst+2*t,2)}, v{vQ+u} offset:{(pos//14)*SLOT+2*(pl//7)*7168+(pl%7)*1024+t*512}"))
            else:
                slot={0:0,3:3}[ps]+pos//14; pl=pos%14
                L.append(I(f"ds_read_b64_tr_b16 {a(dst+2*t,2)}, v{vTR+slot//2} offset:{(slot&1)*SLOT+(u+2*(pl//7))*7168+(pl%7)*1024+t*256}"))
        return L
    def phase1(s):
        p=s.p; s.tok_a={}; s.tok_h={}; s.vA1=198; o=s.o; segs=[]
        def seg(g0,g1,L): segs.append([g0,g1,list(L),0])
        Q=[]
        wl=o("wlen",10)
        for x in s.selC: x.tag="inl"
        seg(28,29,s.selC)
        wsched=o("wsched",{"Q0":(0,14),"Q1":(15,36),"Q2":(37,58),"Q3":(81,100),"h0":(109,132),"h1":(137,160),"f0":(165,188),"f1":(193,214)})
        if wl: wsched={k:((a_,a_+wl) if a_>50 else (a_,b_)) for k,(a_,b_) in wsched.items()}
        for nm,(g0,g1) in wsched.items():
            it=s.witems(nm,o("wper",1))
            for k,x in enumerate(it): Q.append((g0+(g1-g0)*k/len(it),x))
        seg(*o("hclr",(4,40)),s.hclr)
        s.tok_w["clr"]=s.tok_clr
        conf={24:["k1"],52:["Q0","clr"],80:["Q1"],108:["Q2"],136:["Q3"],164:["h0"],192:["h1"],220:["f0"],248:["f1"]}
        e1,eM,eW,eR=s.kv_epi(); ke=o("kvbar",108)
        seg(58,ke-12,e1); seg(ke-11,ke-10,eM[:1]); seg(ke-9,ke-8,eM[1:]); seg(ke-4,ke-1,eW); seg(ke+1,ke+8,eR)
        seg(171,223 if s.ty else o("gAend",226),s.gelu(ACC,aU,16,0,True)+s.gelu(ACC+16,aU+16,16,2,True))
        if s.ty: seg(228,o("g3end",274),s.gelu(ACC+32,ACC+48,16,4))
        gt=f"buffer_load_dword v{vPOLL+1}, off, {srd(SD)}, 0 offset:128 sc1"; gld=I(gt)
        seg(1,2,[gld])
        seg(53,54,[W(vm=gld)]+s.retry([f"v_cmp_eq_u32 vcc, 0, v{vPOLL+1}"],[gt])+[I(f"s_cmp_lg_u32 s{sW}, 0"),I(f"s_cselect_b32 s{sFKst}, 0x40000000, s{sFKst}"),
            I(f"buffer_store_dword v{vONE}, v{vZ}, {srd(SWS)}, s{sFKst} offen sc1")])
        ct=f"buffer_load_dword v{vPOLL+1}, v{vPA31}, {srd(SWS)}, s{sFKld} offen sc1"; cld=I(ct)
        gk=o("gkv",166); kld,kred=s.kv_l1()
        seg(gk-45,gk-44,[cld]); seg(gk-1,gk,[W(vm=cld)]+s.retry([f"v_cmp_eq_u32 vcc, 0, v{vPOLL+1}"],[ct])+[kld])
        seg(o("gfa",238),o("gfa",238)+1,s.flagst(1,[s.tok_h[1],s.hclr[-1]]))
        seg(o("gfb",264),o("gfb",264)+1,s.flagst(2,s.tok_h[3]))
        plA,pcA=s.poll(1); seg(o("gpa",266),o("gpa",266)+1,[I(f"v_and_b32 v{vPA7}, 28, v{vPA31}"),plA])
        T=lines(f"""
        s_mov_b32 s{SWD}, s16
        s_and_b32 s{SWD+1}, s17, 0xffff
        s_mov_b32 s{SWD+2}, {1792*896}
        """)
        T[2]=I(f"s_mul_i32 s{SWD+2}, s{sV2}, {1792*896}"); seg(26,27,T); T=[]
        if o("warm",1):
            T+=lines(f"""
            s_mov_b32 s{SWD+2}, {1792*896}
            s_lshl_b32 s{sC}, s{sWG}, 2
            s_add_u32 s{sC}, s{sC}, s{sW}
            v_lshlrev_b32 v{vTCH}, 2, v{vL16}
            s_mul_i32 s{sT3}, s{sC}, 1568
            s_mov_b64 exec, 0x1ffffff
            buffer_load_dword a255, v{vTCH}, {srd(SWD)}, s{sT3} offen
            s_mul_i32 s{SWD+2}, s{sV2}, {1792*896}
            s_lshr_b32 s{sT3}, s{sC}, 1
            s_mul_i32 s{sT3}, s{sT3}, 3136
            s_add_u32 s{sT3}, s{sT3}, 3072
            s_mov_b32 exec_lo, -1
            s_mov_b32 exec_hi, 0x1ffff
            buffer_load_dword a255, v{vTCH}, {srd(SW1)}, s{sT3} offen
            s_mov_b32 s{sP}, s{SD}
            s_mov_b32 s{sHc}, s{SD+1}
            s_mov_b32 s{SD}, s8
            s_and_b32 s{SD+1}, s9, 0xffff
            s_mov_b32 s{SD+2}, {448*896}
            s_mul_i32 s{sT3}, s{sC}, 392
            s_mov_b64 exec, 0x7f
            buffer_load_dword a255, v{vTCH}, {srd(SD)}, s{sT3} offen
            s_mov_b64 exec, -1
            """)
            for x in T: x.tag="inl"
        seg(o("gwarm",60),o("gwarm",60)+1,T)
        seg(o("gred",196),o("gred",196)+10,kred)
        kft=[f"buffer_load_dwordx4 {v(200+4*q,4)}, v{vL16}, {srd(SWS)}, s{sKF} offen offset:{q*1024} sc1" for q in range(4)]
        kf=[I(t) for t in kft]
        if s.ty: seg(o("gkf",252),o("gkf",252)+4,kf)
        seg(o("gsrd",222),o("gsrd",222)+2,lines(f"""
        s_mov_b32 s{SWO}, s8
        s_and_b32 s{SWO+1}, s9, 0xffff
        s_mul_i32 s{SWO+2}, s{sV2}, {448*896}
        s_mov_b32 s{SOUT}, s18
        s_and_b32 s{SOUT+1}, s19, 0xffff
        s_mov_b32 s{SOUT+2}, {2048*896}
        """))
        seg(166,168,lines(f"""
        v_add_u32 v{s.vBT[2]}, 0x10000, v{vBT[0]}
        v_add_u32 v{s.vBT[3]}, 0x10000, v{vBT[1]}
        """))
        if s.ty==1: seg(200,204,lines(f"""
        v_bfe_u32 v230, v{vL16}, 6, 2
        v_lshrrev_b32 v231, 9, v{vL16}
        v_mul_u32_u24 v231, 7168, v231
        v_lshl_add_u32 v231, v230, 7, v231
        v_add_u32 v231, {2*SLOT}, v231
        v_and_b32 v230, 0x7f, v{vBT[0]}
        v_add_u32 v{vQ}, v230, v231
        v_and_b32 v{vQ+1}, 64, v230
        v_and_b32 v230, 63, v230
        v_add_u32 v230, 56, v230
        v_xor_b32 v230, v230, v{vQ+1}
        v_add_u32 v{vQ+1}, v230, v231
        """))
        NR=s.NR=o("NR",19); pace=o("bpace",4); lag=o("blag",30); t=float(o("b0",60))
        free={e:(ENT_FREE[e]+1,None) for e in range(len(ENT))}; late=[]
        busy=set(); s.p2b=[]
        def slot(tt):
            g=int(tt)
            while g in busy: g+=1
            busy.add(g); return g
        for tt,x in Q:
            g=slot(tt); seg(g,g+1,x); assert g<o("gsrd",222)-1
        if o("bblock",(4,2)):
            for nm,(g0,g1) in wsched.items(): busy.update(range(g0-o("bblock",(4,2))[0],g1+o("bblock",(4,2))[1]))
        order=list(range(36))
        if o("border",0): order=list(range(16))+[16,17,20,21,28,29,18,19,22,23,30,31,24,25,32,33,26,27,34,35]
        pl=o("plead",None)
        for n in order:
            if pl: pace=pl[kmap(n)[0]]
            e=min(free,key=lambda k:(max(free[k][0],t),k)); tt=max(free[e][0],t); tok=free.pop(e)[1]
            L=([W(lg=tok)] if tok else [])+s.bdma(n,e)
            tt=slot(tt)
            if kmap(n)[1]>=14 and tt<=o("gsrd",222)+2: busy.discard(tt); tt=slot(o("gsrd",222)+3)
            if n>=o("nbp",36): s.p2b.append(L); continue
            if tt<278: seg(tt,tt+1,L)
            else: late.append((tt,L))
            if n<NR:
                R=[W(vm=s.tok_b[n],tag="wB")]+[s.btr(n,q,aB+8*n) for q in range(4)]
                if tt+lag<277: seg(int(tt+lag),int(tt+lag)+1,R)
                else: late.append((tt+lag,R))
                free[e]=(tt+lag+3,R[-1])
            t=tt+pace
        late.sort(key=lambda x:x[0])
        p(W(vm=s.tok_w["k0"])); p("s_barrier")
        p(s.stamp("B0",1))
        rd={}
        for g in range(4):
            rd[g]=s.trd(g); p(rd[g])
        for g in range(280):
            ps,pos,u=s.gapinfo(g)
            if g%2==0: p(W(lg=rd[g+1][-1]))
            if ps in (1,2): D=(a(aU+32*(ps-1)+16*(u>>1),16) if u&1 else v(ACC+32*(ps-1)+16*(u>>1),16))
            else: D=v(ACC+(0 if ps==4 else 32)+16*u,16)
            fr=a((g%8)*4,4); xr=v(X+4*pos,4); C=D if pos else "0"
            if ps==0: p(f"v_mfma_f32_32x32x16_bf16 {D}, {xr}, {fr}, {C}")
            else: p(f"v_mfma_f32_32x32x16_bf16 {D}, {fr}, {xr}, {C}")
            if g in BARS:
                p(W(vm=[s.tok_w[x] for x in conf[g]], lg=0, tag="wBar") if g in conf else W(lg=0))
                p("s_barrier")
                p(s.stamp(f"g{g}", g not in (52,108,164,220,276)))
                if g==164: p("; SPLIT")
            if g+4<280:
                rd[g+4]=s.trd(g+4); p(rd[g+4])
            tr=o("trace",None)
            if tr and tr[0]<=g<tr[1] and (g-tr[0])%tr[2]==0: p(s.stamp(f"t{g}"))
            p(f"; gap {g}")
            heads=[]; pure=[]; mixed=[]
            for sgm in segs:
                g0,g1,L,done=sgm
                if g<g0 or done>=len(L): continue
                tot=sum(x.cost for x in L); tgt=tot*(g-g0+1)/(g1-g0) if g<g1-1 else tot+1
                acc=sum(x.cost for x in L[:done]); body=[]
                ismem=lambda x: x.kind in("ds","vmem") and x.tag!="inl"
                nh=0
                while done<len(L) and ismem(L[done]) and (acc<tgt or (done>0 and not ismem(L[done-1]))) and nh<o("maxhead",4):
                    heads.append(L[done]); acc+=L[done].cost; done+=1; nh+=1
                while done<len(L) and (acc<tgt or L[done].kind=="label") and (not ismem(L[done]) or g==279):
                    body.append(L[done]); acc+=L[done].cost; done+=1
                (pure if all(x.kind in("valu","trans") for x in body) else mixed).append(body)
                sgm[3]=done
            p([x for x in heads if x.kind=="ds"]); p([x for x in heads if x.kind!="ds"])
            for b in pure+mixed: p(b)
        assert all(x[3]==len(x[2]) for x in segs)
        p(s.stamp("p1_mfma_done"))
        p(f"""
        v_add_u32 v{s.vA1}, {8*18432}, v{vL16}
        s_cmp_eq_u32 s{sV2}, 0
        s_cselect_b32 s{sT2}, 0x40000000, 0
        s_add_u32 s{sA}, s{sA}, s{sT2}
        s_add_u32 s{sA+1}, s{sA+1}, s{sT2}
        """)
        pk=o("pk",1); T=[]; tp=T.extend
        if s.ty==0:
            tp(s.gelu(ACC+32,aU+32,16,4,True,pk)+s.gelu(ACC+48,aU+48,16,6,True,pk))
        else:
            PQ=[216,vP]
            for hh in range(2):
                Q=ACC+16*hh
                for h in range(4):
                    r=[4*h+k for k in range(4)]
                    tp([I(f"v_pk_mul_f32 {v(vT+2*k,2)}, {v(Q+r[2*k],2)}, {v(vS,2)} op_sel:[0,1] op_sel_hi:[1,1]") for k in range(2)])
                    tp([I(f"v_min_f32 v{vT+k}, 0, v{vT+k}") for k in range(4)])
                    tp([I(f"v_exp_f32 v{vT+k}, v{vT+k}") for k in range(4)])
                    tp([I(f"v_max_f32 v{Q+x}, 0, v{Q+x}") for x in r])
                    tp([I(f"v_pk_fma_f32 {v(Q+r[2*k],2)}, {v(Q+r[2*k],2)}, {v(vS,2)}, {v(vT+2*k,2)} op_sel_hi:[1,0,1]") for k in range(2)])
                    tp([I(f"v_add_f32 v{Q+x}, {fb(1e-6)}, v{Q+x}") for x in r])
                    tp([I(f"v_cvt_pk_bf16_f32 v{PQ[hh]+2*h+k}, v{Q+r[2*k]}, v{Q+r[2*k+1]}") for k in range(2)])
                tp([I(f"v_cndmask_b32 v{PQ[hh]+6+k}, v{PQ[hh]+6+k}, 0, s[{MHI}:{MHI+1}]") for k in range(2)])
                if hh==0:
                    c=s.stamp("pre_kf",1)+[W(vm=kf[-1])]+s.retry(s.chk(list(range(200,216))),kft)+s.stamp("kf_ok",1)
                    for x in c: x.tag=x.tag or "atom"
                    tp(c)
                N=ACC+32+16*hh
                tp(lines(f"""
                v_mfma_f32_32x32x16_bf16 {v(N,16)}, {v(200+8*hh,4)}, {v(PQ[hh],4)}, 0
                v_mfma_f32_32x32x16_bf16 {v(N,16)}, {v(204+8*hh,4)}, {v(PQ[hh]+4,4)}, {v(N,16)}
                """))
            for hh in range(2):
                N=ACC+32+16*hh; PO=ACC+8*hh
                tp(lines(f"""
                v_mov_b32 v230, v{N+12}
                v_mov_b32 v231, v{N+12}
                v_permlane32_swap_b32 v230, v231
                v_add_f32 v230, {fb(1e-6)}, v231
                v_rcp_f32 v230, v230
                """))
                tp([I(f"v_pk_mul_f32 {v(N+2*k,2)}, {v(N+2*k,2)}, v[230:231] op_sel_hi:[1,0]") for k in range(8)])
                tp([I(f"v_cvt_pk_bf16_f32 v{PO+k}, v{N+2*k}, v{N+2*k+1}") for k in range(8)])
                tp([I(f"v_cndmask_b32 v{PO+6+k}, v{PO+6+k}, 0, s[{MHI}:{MHI+1}]") for k in range(2)])
                tp([s.hstore(PO+4*f,6+2*hh+f) for f in range(2)])
        plB,pcB=s.poll(2)
        M=[s.stamp("pre_flagA",1)+list(pcA)+s.stamp("flagA",1)]
        npb=o("npb",3)
        for n in range(8):
            M.append(s.aload(n))
            if n==npb: M.append([plB])
        M+=[L for _,L in late]
        M.append(s.stamp("pre_flagB",1)+list(pcB)+s.stamp("flagB",1))
        for n in range(8,14): M.append(s.aload(n))
        tot=sum(x.cost for x in T); step=o("tstep",26); acc=0; nxt=o("tfirst",0)
        for x in T:
            if M and acc>=nxt and x.tag!="atom" and x.kind!="vmem": p(M.pop(0)); nxt+=step
            p(x); acc+=x.cost
        s.rest=M
        p(s.stamp("tail_done"))
        p(f"s_cmp_eq_u32 s{sV2}, 0"); p("s_cbranch_scc1 L_fin")
    def phase2(s):
        p=s.p; o=s.o; NR=s.NR
        vXR=204
        adr=[]
        vEW,vER,vO=216,220,222
        adr=lines(f"""
        v_lshrrev_b32 v230, 7, v{vL16}
        s_lshl_b32 s{sT3}, s{sW}, 3
        v_add_u32 v231, s{sT3}, v230
        v_mul_u32_u24 v231, 896, v231
        v_and_b32 v{vO}, 0x70, v{vL16}
        v_add_u32 v{vO}, v{vO}, v231
        v_add_u32 v{vO+1}, {32*896}, v{vO}
        v_bfe_u32 v231, v{vL16}, 4, 2
        v_lshlrev_b32 v231, 1, v231
        v_xor_b32 v231, v231, v230
        v_lshlrev_b32 v231, 4, v231
        v_lshl_add_u32 v231, v230, 8, v231
        v_bfe_u32 v230, v{vL16}, 6, 1
        v_lshl_add_u32 v231, v230, 7, v231
        s_lshl_b32 s{sT3}, s{sW}, 13
        v_add_u32 v{vER}, s{sT3}, v231
        v_xor_b32 v{vER+1}, 16, v{vER}
        v_bfe_u32 v230, v{vL16}, 4, 3
        v_lshrrev_b32 v231, 9, v{vL16}
        v_xor_b32 v231, v231, v230
        v_lshlrev_b32 v231, 4, v231
        v_lshl_add_u32 v231, v230, 8, v231
        v_bfe_u32 v230, v{vL16}, 7, 2
        v_lshl_add_u32 v231, v230, 13, v231
        v_add_u32 v{vEW}, s{sWB2}, v231
        v_xor_b32 v{vEW+1}, 32, v{vEW}
        v_xor_b32 v{vEW+2}, 64, v{vEW}
        v_xor_b32 v{vEW+3}, 0x60, v{vEW}
        """)
        while s.rest:
            p(s.rest.pop(0)); p(adr[:6]); adr=adr[6:]
        p(adr)
        groups=[(16,20),(20,24),(24,28),(28,32),(32,36)]
        n_s=groups[0][0]
        def gchk(n0,n1):
            return [W(vm=s.tok_a[n1-1])]+s.retry(s.chk([r for n in range(n0,n1) for r in s.areg(n)]),[t for n in range(n0,n1) for t in s.aload_txt(n)])
        breg=lambda n: aB+8*n if n<NR else (n%4)*8
        rb={}
        p(W(lg=0)); p(s.stamp("p2_start"))
        pend=[]; nxt=14; nC=o("nC",4); al=[]; bl=[]
        for n in range(33):
            p(pend); pend=[]
            if n in (8,16,24): p(s.stamp(f"p2_n{n}"))
            if n<n_s and n>=NR: p(W(vm=s.tok_a[n], lg=rb[n]))
            elif n<n_s: p(W(vm=s.tok_a[n]))
            elif n>=NR: p(W(lg=rb[n]))
            for q in range(4):
                nbk,mb=q>>1,q&1; D=ACC+16*q
                p(f"v_mfma_f32_32x32x16_bf16 {v(D,16)}, {a(breg(n)+nbk*4,4)}, {s.areg(n,mb)}, {v(D,16) if n else 0}")
                if NR<=n+1<36:
                    if q==0:
                        p(W(vm=s.tok_b[n+1])); p(s.btr(n+1,0,breg(n+1))); p(s.btr(n+1,1,breg(n+1)))
                    if q==1:
                        p(s.btr(n+1,2,breg(n+1))); rb[n+1]=p(s.btr(n+1,3,breg(n+1)))
                if n==32 and q>=2:
                    m=32+q; p(W(vm=s.tok_b[m]))
                    for k in range(4): rb[m]=p(s.btr(m,k,breg(m)))
                if q==2 and s.i_sent==4 and nxt<36:
                    al=s.aload(nxt); nxt+=1; post=[x for x in al if x.kind=="salu"]; al=[x for x in al if x.kind!="salu"]
                else: post=[]
                if q==3 and s.i_sent==4: p(al); al=[]
                if q==1: p(bl); bl=[]
                if q==0 and s.p2b and n>=o("p2b0",0):
                    bl=s.p2b.pop(0); post=[x for x in bl if x.kind!="vmem"]; bl=[x for x in bl if x.kind=="vmem"]
                if q==3:
                    if s.i_sent==6 and n==nC: p(pcC); p(s.stamp("flagC",1))
                    k=0
                    while s.i_sent==6 and nxt<36 and nxt<=n+14 and k<2 and (nxt<16 or n>=nC):
                        p(s.aload(nxt)); nxt+=1; k+=1
                    if n==24:
                        xr0=p(f"buffer_load_dwordx4 {v(vXR,4)}, v{vO}, {srd(SX)}, s{sOUT} offen")
                        xr1=p(f"buffer_load_dwordx4 {v(vXR+4,4)}, v{vO+1}, {srd(SX)}, s{sOUT} offen")
                ng=[g for g in groups if g[0]==n+1]
                if ng:
                    if q==0: pend=gchk(*ng[0])
                    k=(len(pend)+3-q)//(4-q) if q<3 else 0
                    if q<3: p(pend[:k]); pend=pend[k:]
                p(post)
        p(pend); p(W(lg=0))
        def wr(q): return [I(f"ds_write_b128 v{vEW+i}, {v(ACC+16*q+4*i,4)} offset:{(q&1)*32768+(q>>1)*128}") for i in range(4)]
        un=[I(f"v_lshlrev_b32 v{80+2*k}, 16, v{vXR+k}") for k in range(8)]+[I(f"v_and_b32 v{81+2*k}, 0xffff0000, v{vXR+k}") for k in range(8)]
        for q in range(4):
            nbk,mb=q>>1,q&1; D=ACC+16*q
            for n in range(33,36):
                p(f"v_mfma_f32_32x32x16_bf16 {v(D,16)}, {a(breg(n)+nbk*4,4)}, {s.areg(n,mb)}, {v(D,16)}")
                if q>=2 and n<35: p(wr(q-2)[2*(n-33):2*(n-33)+2])
                if q==0 and n==33: p(W(vm=xr1))
                if q<2: p(un[:3]); un=un[3:]
        p(s.stamp("p2_mfma_done"))
        p(un); p(wr(2)); p(wr(3))
        p(W(lg=0)); p("s_barrier")
        rr=[]
        for w in range(4):
            for c in range(4): rr.append(p(f"ds_read_b128 {v(16+16*w+4*c,4)}, v{vER+(c&1)} offset:{w*2048+(c>>1)*32768}"))
        p(W(lg=rr[7]))
        for k in range(8): p(f"v_pk_add_f32 {v(16+2*k,2)}, {v(16+2*k,2)}, {v(32+2*k,2)}")
        for k in range(8): p(f"v_pk_add_f32 {v(16+2*k,2)}, {v(16+2*k,2)}, {v(80+2*k,2)}")
        p(W(lg=rr[15]))
        for k in range(8): p(f"v_pk_add_f32 {v(48+2*k,2)}, {v(48+2*k,2)}, {v(64+2*k,2)}")
        of=o("outflag","sc1")
        for h in range(2):
            for k in range(4*h,4*h+4): p(f"v_pk_add_f32 {v(16+2*k,2)}, {v(16+2*k,2)}, {v(48+2*k,2)}")
            for k in range(4*h,4*h+4): p(f"v_cvt_pk_bf16_f32 v{96+k}, v{16+2*k}, v{17+2*k}")
            p(f"buffer_store_dwordx4 {v(96+4*h,4)}, v{vO+h}, {srd(SOUT)}, s{sOUT} offen {of}")
        p("L_fin:")
        if s.stamps:
            p(W(vm=0)); p(s.stamp("end"))
            p(f"s_lshl_b32 s{sT}, s{sMI}, 4\ns_add_u32 s{sT}, s{sT}, s{sJ}\ns_lshl_b32 s{sT}, s{sT}, 2\ns_add_u32 s{sT}, s{sT}, s{sW}\ns_lshl_b32 s{sT}, s{sT}, 8\ns_add_u32 s{sT}, s{sT}, {WS_ST}")
            p(f"v_lshrrev_b32 v{vL4}, 2, v{vL16}")
            p(f"buffer_store_dword v0, v{vL4}, {srd(SWS)}, s{sT} offen")
            if s.o("dbgwg",None) is not None:
                p(f"s_memrealtime s[{sSTMP}:{sSTMP+1}]\ns_waitcnt lgkmcnt(0)\nv_readlane_b32 s{sSPIN}, v0, 63\ns_nop 3\ns_sub_u32 s{sSTMP}, s{sSTMP}, s{sSPIN}\nv_readlane_b32 s{sSPIN}, v0, 0\ns_nop 3\nv_subrev_u32 v0, s{sSPIN}, v0\nv_writelane_b32 v0, s{sSTMP}, 0")
                p(f"s_cmp_lg_u32 s{sT}, {WS_ST+s.o('dbgwg',0)*256}\ns_cbranch_scc1 L_end\ns_mov_b64 exec, 0xffff")
                if s.o("warm",1): p(f"s_mov_b32 s{SD}, s{sP}\ns_mov_b32 s{SD+1}, s{sHc}\ns_mov_b32 s{SD+2}, 256")
                p(f"buffer_store_dword v0, v{vL4}, {srd(SD)}, 0 offen")
        if s.o("fixspan",0):
            p(W(vm=0)); p(f"v_readfirstlane_b32 s{sT}, v0\nL_fix:\ns_memrealtime s[{sSTMP}:{sSTMP+1}]\ns_waitcnt lgkmcnt(0)\ns_sub_u32 s{sSTMP}, s{sSTMP}, s{sT}\ns_cmp_lt_u32 s{sSTMP}, {s.opt['fixspan']}\ns_cbranch_scc1 L_fix")
        p("L_end:"); p("s_endpgm")
    def build(s):
        A,eA=s.one()
        g=Gen(stamps=s.stamps, ty=1, **s.opt); g.stnames=s.stnames; B,eB=g.one()
        ia=[i for i,x in enumerate(A) if x.text=="; SPLIT"][0]; ib=[i for i,x in enumerate(B) if x.text=="; SPLIT"][0]
        assert [x.text for x in A[:ia]]==[x.text for x in B[:ib]], "prefix differs"
        import re
        e=[i for i,x in enumerate(B) if x.op=="s_endpgm"][0]
        suf=B[ib+1:e+1]; defd={x.op[:-1] for x in suf if x.kind=="label"}
        blk=[];
        for x in B[e+1:]:
            if x.kind=="label" and re.fullmatch(r"L_spin\d+:",x.op): blk.append([])
            if x.op!="L_codeend:": blk[-1].append(x)
        for b in blk:
            if "L_ok"+b[0].op[6:-1] in defd: suf+=b; defd|={x.op[:-1] for x in b if x.kind=="label"}
        ren=lambda t: re.sub(r"\bL_\w+", lambda m: m.group(0)+"_B" if m.group(0) in defd else m.group(0), t)
        body=[x.text for x in A[:ia]]+[f"s_cmp_lg_u32 s{sTY}, 0","s_cbranch_scc1 L_typeB"]+[x.text for x in A[ia+1:-1]]+[".p2align 6","L_typeB:"]+[ren(x.text) for x in suf]+["L_codeend:"]
        s.ninstr=len(body); s.pads+=g.pads
        return s.wrap("\n".join(body)+"\n"), eA+eB
    def one(s):
        s.prologue(); s.phase1(); s.phase2()
        s.p.add(s.ool); s.p("L_codeend:")
        for pat in s.o("drop",[]):
            for x in s.p.L:
                if pat in x.text: x.text="; dropped"; x.kind="dir"; x.R=[]; x.W=[]; x.op=""; x.lds=False
        import re
        for a_,b_ in s.o("subst",[]):
            for x in s.p.L:
                if x.kind in("vmem","valu"): x.text=re.sub(a_,b_,x.text)
        for x in s.p.L:
            if x.waitfor and x.tag in s.o("dropw",[]): x.waitfor=(None,0 if x.waitfor[1]==0 else None); x.text="s_nop 0"
            if x.waitfor==(None,None): x.waitfor=None; x.kind="nop"; x.cost=1
        s.p.resolve()
        if s.o("nocomp",0):
            fl=("v_mul_f32","v_fma_f32","v_add_f32","v_min_f32","v_max_f32","v_cvt_pk","v_pk_","v_accvgpr","v_max3","v_max_u32","v_permlane")
            keep=[]
            for i,x in enumerate(s.p.L):
                if x.kind in("mfma","ds","dot","trans") or x.op.startswith(fl): continue
                if x.op=="s_cbranch_vccnz" and (s.p.L[i-1].op.startswith(("v_cmp_u","v_cmp_eq"))): continue
                keep.append(x)
            s.p.L=keep
        if s.o("nomem",0):
            s.p.L=[x for x in s.p.L if not ((x.kind=="vmem" and "v0, v" not in x.text) or x.op=="s_cbranch_vccnz")]
        s.p.check(fix=True); s.pads=s.p.pads
        errs=s.p.check()
        return s.p.L, errs
    def wrap(s, body):
        hdr=f"""; Fused LayerNorm + linear attention + GEGLU FFN + residual, one persistent launch (generated by dev/gen.py)
; @launch grid=(256,1,1) block=(256,1,1) lds={LDS}
.amdgcn_target "amdgcn-amd-amdhsa--gfx950"
.text
.globl {KN}
.p2align 8
.type {KN},@function
{KN}:
"""
        ftr=f""".section .rodata,"a"
.p2align 6
.amdhsa_kernel {KN}
  .amdhsa_next_free_vgpr 512
  .amdhsa_next_free_sgpr 102
  .amdhsa_accum_offset 256
  .amdhsa_group_segment_fixed_size 0
  .amdhsa_kernarg_size 80
  .amdhsa_user_sgpr_count 2
  .amdhsa_user_sgpr_kernarg_segment_ptr 1
  .amdhsa_system_sgpr_workgroup_id_x 1
.end_amdhsa_kernel
"""
        return hdr+body+ftr
if __name__=="__main__":
    import argparse
    ap=argparse.ArgumentParser(); ap.add_argument("-o",default="k.s"); ap.add_argument("--stamps",action="store_true"); ap.add_argument("-v",action="store_true"); ap.add_argument("--opt",default="{}")
    ar=ap.parse_args()
    g=Gen(stamps=ar.stamps, **eval(ar.opt)); txt,errs=g.build()
    for e in errs: print("ERR",e)
    if ar.v:
        for x in g.pads: print("pad",x)
    open(ar.o,"w").write(txt)
    print("instrs",g.ninstr,"errors",len(errs))
    from build import build
    build(ar.o)
```

```python
import sys, struct
from emit import Prog, I, W, Ins
KN = "parallel_sum__linear_attn_block__geglu_ffn__prompt_kernel"
def fb(x): return "0x%08x" % struct.unpack("<I", struct.pack("<f", x))[0]
SLOT=28672; KVX=143360; STAT=159744; LDS=163840
WS_KVP=0x900000; WS_KF=0xA00000; WS_FH=0xA10000; WS_FK=0xA14000; WS_ST=0xB00000; WS_SZ=0xC00000
LOG2E=1.4426950408889634
K0C=-2*0.7978845608028654*LOG2E; K1C=K0C*0.044715
sHc,sKF,sKR,sOUT=0,1,2,3
sA=4; sKP,sKFst=6,7
sW,sT=10,11
sBA,sBL,sBH,sBO=12,14,20,22
SX,SW0,SW1,SW4,SWS,SD=24,28,32,36,40,44
SWD,SWO,SOUT=SW0,SW1,SW4
C26,C35=48,55
CBQ,CB0,CB3,CB4=62,66,68,70
sWB7,sWB2=72,73; sH=74; sV2,sNB,sWG,sMI,sJ,sTY,sMB=77,78,79,80,81,82,83
sFHst,sFHld,sFKst,sFKld=84,85,86,87
sXM,sXC,sXR,sXT=84,85,86,87
MONE,MHI=88,90; sT2=92; sOLO,sOHI,sONES=93,94,95; sSTMP=96; sSPIN=98; sC,sP,sT3=99,100,101; sHK=sSPIN
def srd(n): return f"s[{n}:{n+3}]"
vL16,vWc,vWq,vW3,vW4,vW0=1,2,3,4,5,6
vB,vB2=6,7
vTR=8; vK0,vK1,vV,vS,vC2=11,12,13,14,15
X=16; ACC=128
vZ,vONE,vPOLL,vL4,vPA31=224,225,226,228,229
vPA7,vTCH=4,231
vTQ=232; vBT=[236,237,232,233,226,228]; vKFs,vKR=238,239
vSTR,vKXW,vKXR,vKP=240,241,242,243
vT=244; vP=248
aU=32; aB=96
vQ=234
vU=240
def v(a,n=1): return f"v{a}" if n==1 else f"v[{a}:{a+n-1}]"
def a(x,n=1): return f"a{x}" if n==1 else f"a[{x}:{x+n-1}]"
def lines(t): return [I(l.strip()) for l in t.strip().split("\n") if l.strip()]
def kmap(n):
    if n<16:
        st,r=n//8,n%8; pp,q=r//4,r%4
        return pp,(2*st+q if q<2 else 8+2*st+q-2)
    return ((n-16)%4)//2, [12,4,14,6,16][(n-16)//4]+n%2
BARS=[24,52,80,108,136,164,192,220,248,276]
ENT=[(4*e)*2048 for e in range(17)]+[KVX,KVX+8192]
ENT_FREE=[24]*3+[52]*4+[248]*3+[276]*4+[220]*3+[136,136]

class Gen:
    def __init__(s, stamps=False, ty=0, **opt):
        s.ty=ty; s.vBT=list(vBT)
        if ty==0: s.vBT[2:4]=[vTR,vTR+1]
        s.p=Prog(); s.ool=[]; s.stamps=stamps; s.stnames=[]; s.opt=opt; s.lbl=0
    def o(s,k,d): return s.opt.get(k,d)
    def stamp(s, name="", fine=False):
        if not s.stamps or (fine and not s.o("fine",0)): return []
        if name in s.stnames: k=s.stnames.index(name)
        else: k=len(s.stnames); s.stnames.append(name)
        return [I(f"{'s_memrealtime' if s.o('rt',0) else 's_memtime'} s[{sSTMP}:{sSTMP+1}]"), I("s_waitcnt lgkmcnt(0)"), I(f"v_writelane_b32 v0, s{sSTMP}, {k}")]
    def retry(s, test, reload, retest=None):
        n=s.lbl; s.lbl+=1
        chk=[I(t) for t in test]+[I(f"s_cbranch_vccnz L_spin{n}"), I(f"L_ok{n}:")]
        s.ool += [I(f"L_spin{n}:"), I(f"s_mov_b32 s{sSPIN}, 0x8000"), I(f"L_spinl{n}:"), I("s_waitcnt vmcnt(0)")]
        s.ool += [I(t,count=False) for t in reload]+[I("s_waitcnt vmcnt(0)")]+[I(t) for t in (retest or test)]
        s.ool += [I(f"s_cbranch_vccz L_ok{n}"), I(f"s_sub_u32 s{sSPIN}, s{sSPIN}, 1"), I(f"s_cmp_lg_u32 s{sSPIN}, 0"),
                  I(f"s_cbranch_scc1 L_spinl{n}"), I(f"s_branch L_ok{n}")]
        return chk
    def wdma(s, name):
        k,i0=name[0],int(name[1])
        vb,cb,sr,tb,slot={"k":(vW0,CB0+i0,SW0,C26,i0), "Q":(vWq,CBQ+i0,SW1,C35,[2,3,4,2][i0]),
                          "h":(vW3,CB3+i0,SW1,C35,3+i0), "f":(vW4,CB4+i0,SW4,C26,2+i0)}[k]
        L=[I(f"v_add_u32 v{vWc}, s{cb}, v{vb}")]
        for i in range(7):
            if i in (0,4): L.append(I(f"s_add_u32 m0, s{sWB7}, {slot*SLOT+(4096 if i==4 else 0)}"))
            L.append(I(f"buffer_load_dwordx4 v{vWc}, {srd(sr)}, s{tb+i} offen offset:{(i%4)*1024} lds"))
        s.tok_w[name]=L[-1]
        return L
    def witems(s, name, per):
        L=s.wdma(name); first=L[0]; D=[x for x in L if x.kind=="vmem"]; m0=[x for x in L if "m0" in x.W]; out=[]
        i=0
        while i<7:
            k=min(per,(4 if i<4 else 7)-i)
            out.append(([first] if i==0 else [])+[I(m0[i//4].text)]+D[i:i+k]); i+=k
        return out
    def bdma(s, n, e):
        pp,i=kmap(n)
        base,sr,k=(sBA+pp,SWD,i) if i<8 else (sBL+pp,SWD,i-8) if i<12 else (sBH+pp,SWD,i-12) if i<14 else (sBO+pp,SWO,None)
        off=k*14336 if k is not None else ((i-14)//2*28+(i-14)%2*16)*896
        L=[I(f"s_add_u32 m0, s{sWB2}, {ENT[e]}"), I(f"s_add_u32 s{sT}, s{base}, {off}"),
           I(f"buffer_load_dwordx4 v{vB}, {srd(sr)}, s{sT} offen lds"),
           I(f"buffer_load_dwordx4 v{vB2}, {srd(sr)}, s{sT} offen offset:1024 lds")]
        s.tok_b[n]=L[-1]; s.ent[n]=e
        return L
    def btr(s, n, q, dst):
        nbk,t=q>>1,q&1; ad=ENT[s.ent[n]]
        return I(f"ds_read_b64_tr_b16 {a(dst+nbk*4+2*t,2)}, v{s.vBT[2*(ad>>16)+nbk]} offset:{(ad&0xffff)+t*1024}")
    def prologue(s):
        p=s.p; s.tok_w={}; s.tok_b={}; s.ent={}
        if s.o("fixspan",0): p(f"s_memrealtime s[{sSTMP}:{sSTMP+1}]")
        if s.stamps: p(f"{'s_memrealtime' if s.o('rt',0) else 's_memtime'} s[{sSTMP}:{sSTMP+1}]")
        p(f"""
        s_cmp_ge_u32 s2, 256
        s_cbranch_scc1 L_end
        s_load_dwordx4 s[4:7], s[0:1], 0
        s_load_dwordx4 s[20:23], s[0:1], 64
        s_load_dwordx2 s[8:9], s[0:1], 16
        s_load_dwordx4 s[12:15], s[0:1], 32
        s_load_dwordx4 s[16:19], s[0:1], 48
        s_getpc_b64 s[{SD}:{SD+1}]
        L_pc:
        v_lshrrev_b32 v192, 6, v0
        v_and_b32 v193, 63, v0
        v_readfirstlane_b32 s{sW}, v192
        v_lshlrev_b32 v{vL16}, 4, v193
        s_and_b32 s{sT}, s2, 7
        s_lshr_b32 s{sT2}, s2, 3
        s_and_b32 s{SD+1}, s{SD+1}, 0xffff
        s_mov_b32 s{SD+2}, L_codeend-L_pc
        s_mov_b32 s{SD+3}, 0x20000
        s_lshl_b32 s3, s{sT2}, 11
        v_cmp_gt_u32 vcc, 8, v193
        v_lshlrev_b32 v194, 6, v193
        v_lshl_add_u32 v194, v192, 9, v194
        v_bfrev_b32 v{vZ}, 2
        v_cndmask_b32 v194, v{vZ}, v194, vcc
        v_cmp_gt_u32 vcc, 4, v193
        s_mov_b32 s{sWG}, s2
        buffer_load_dword a255, v194, {srd(SD)}, s3 offen
        v_cndmask_b32 v{vKFs}, v{vZ}, v{vL16}, vcc
        s_and_b32 s{sMI}, s{sT}, 1
        s_lshl_b32 s{sMI}, s{sMI}, 3
        s_and_b32 s3, s{sT2}, 7
        s_add_u32 s{sMI}, s{sMI}, s3
        s_lshr_b32 s{sJ}, s{sT}, 1
        s_lshl_b32 s{sJ}, s{sJ}, 2
        s_lshr_b32 s3, s{sT2}, 3
        s_add_u32 s{sJ}, s{sJ}, s3
        {["s_add_u32 s%d, s%d, s%d"%(sC,sMI,sJ),"s_mov_b32 s%d, s%d"%(sC,sMI),"s_mov_b32 s%d, 0"%sC,"s_lshl_b32 s%d, s%d, 1"%(sC,sMI)][s.o("rot",0)]}
        s_and_b32 s{sC}, s{sC}, 3
        s_mul_i32 s{sXC}, s{sC}, 7
        s_lshr_b32 s{sXC}, s{sXC}, 2
        v_lshrrev_b32 v222, 3, v193
        v_mul_u32_u24 v222, 896, v222
        v_lshrrev_b32 v196, 4, v193
        v_and_b32 v197, 7, v193
        v_xor_b32 v196, v196, v197
        v_lshl_add_u32 v222, v196, 4, v222
        v_xor_b32 v223, 64, v222
        s_lshl_b32 s{sH}, s{sMI}, 2
        s_add_u32 s{sH}, s{sH}, s{sW}
        s_mul_i32 s{sXR}, s{sH}, {32*896}
        s_add_u32 s{sXM}, s{sW}, 1
        s_mul_i32 s{sXM}, s{sXM}, {SLOT}
        s_mov_b32 s{SX+2}, {2048*896}
        s_mov_b32 s{SX+3}, 0x20000
        s_waitcnt lgkmcnt(0)
        s_mov_b32 s{SX}, s4
        s_and_b32 s{SX+1}, s5, 0xffff
        """)
        if s.stamps:
            s.stnames.append("start") if "start" not in s.stnames else None
            p(f"v_mov_b32 v0, 0\nv_writelane_b32 v0, s{sSTMP}, 0"); p(s.stamp("kernarg",1))
            if s.o("dbgwg",None) is not None: p(f"s_memrealtime s[{sSTMP}:{sSTMP+1}]\ns_waitcnt lgkmcnt(0)\nv_writelane_b32 v0, s{sSTMP}, 63")
        if s.o("fixspan",0): p(f"v_mov_b32 v0, s{sSTMP}")
        p("s_cmp_lg_u32 s2, 0"); p("s_cbranch_scc1 L_noclr")
        p(f"""
        s_mov_b32 s{SWS}, s22
        s_and_b32 s{SWS+1}, s23, 0xffff
        s_mov_b32 s{SWS+2}, {WS_SZ}
        s_mov_b32 s{SWS+3}, 0x20000
        v_mov_b32 v200, 0
        v_mov_b32 v201, 0
        v_mov_b32 v202, 0
        v_mov_b32 v203, 0
        v_lshrrev_b32 v204, 1, v193
        v_and_b32 v205, 16, v{vL16}
        v_lshl_add_u32 v204, v204, 7, v205
        s_lshl_b32 s3, s{sW}, 12
        s_add_u32 s3, s3, {WS_FH}
        s_mov_b32 s4, {WS_FK}
        """)
        p(I(f"buffer_store_dwordx4 v[200:203], v204, {srd(SWS)}, s3 offen sc1", count=False))
        p(I(f"buffer_store_dwordx4 v[200:203], v{vL16}, {srd(SWS)}, s4 offen sc1", count=False))
        p("L_noclr:")
        tok_x=[]
        def xdma(P):
            L=[I(f"s_add_u32 m0, s{sXM}, {P*4096}"), I(f"s_lshl_b32 s{sXT}, s{sXC}, 7"), I(f"s_add_u32 s{sXT}, s{sXT}, s{sXR}")]
            for t in range(4):
                tk=I(f"buffer_load_dwordx4 v{222+(t&1)}, {srd(SX)}, s{sXT} offen offset:{t*1024} lds"); L.append(tk)
                if t<3: L.append(I(f"s_add_u32 s{sXT}, s{sXT}, 6144"))
            tok_x.append(tk)
            if P<6: L+=[I(f"s_add_u32 s{sXC}, s{sXC}, 1"), I(f"s_cmp_eq_u32 s{sXC}, 7"), I(f"s_cselect_b32 s{sXC}, 0, s{sXC}")]
            return L
        NX0=s.o("nx0",3)
        for P in range(NX0): p(xdma(P))
        p(s.stamp("x_first_issued",1))
        p(f"""
        s_mul_i32 s{sMB}, s{sT2}, 37
        s_lshr_b32 s{sMB}, s{sMB}, 8
        s_mul_i32 s3, s{sMB}, 7
        s_sub_u32 s{sNB}, s{sT2}, s3
        s_cmp_lt_u32 s{sT2}, 28
        s_cselect_b32 s{sV2}, 1, 0
        s_lshl_b32 s{sT}, s{sT}, 2
        s_add_u32 s{sMB}, s{sMB}, s{sT}
        s_mul_i32 s{sWB7}, s{sW}, 7168
        s_lshl_b32 s{sWB2}, s{sW}, 11
        s_and_b32 s{sTY}, s{sJ}, 1
        s_lshr_b32 s{sP}, s{sJ}, 1
        s_sub_u32 s{SW0}, s6, 3072
        s_subb_u32 s{SW0+1}, s7, 0
        s_and_b32 s{SW0+1}, s{SW0+1}, 0xffff
        s_mov_b32 s{SW0+2}, {448*2688+3072}
        s_mov_b32 s{SW0+3}, 0x20000
        s_and_b32 s5, s{sW}, 1
        s_lshr_b32 s4, s{sW}, 1
        s_cmp_eq_u32 s5, 0
        s_cselect_b32 s{SW1}, s12, s14
        s_cselect_b32 s{SW1+1}, s13, s15
        s_sub_u32 s{SW1}, s{SW1}, 3072
        s_subb_u32 s{SW1+1}, s{SW1+1}, 0
        s_and_b32 s{SW1+1}, s{SW1+1}, 0xffff
        s_mov_b32 s{SW1+2}, {448*3584+3072}
        s_mov_b32 s{SW1+3}, 0x20000
        s_mov_b32 s{SWS}, s22
        s_and_b32 s{SWS+1}, s23, 0xffff
        s_mov_b32 s{SWS+2}, {WS_SZ}
        s_mov_b32 s{SWS+3}, 0x20000
        s_mov_b32 s{SD}, s20
        s_and_b32 s{SD+1}, s21, 0xffff
        s_mov_b32 s{SD+2}, 256
        s_mov_b32 s{SD+3}, 0x20000
        """)
        for i in range(7):
            bias=3072-1024*(i%4)
            p(f"s_mov_b32 s{C26+i}, {i*16*2688+bias}"); p(f"s_mov_b32 s{C35+i}, {i*16*3584+bias}")
        for i in range(4): p(f"s_add_u32 s3, s{sC}, {i}\ns_and_b32 s3, s3, 3\ns_mul_i32 s{CBQ+i}, s3, {112*3584}")
        for i in range(2): p(f"s_add_u32 s3, s{sC}, s4\ns_add_u32 s3, s3, {2*i}\ns_and_b32 s3, s3, 3\ns_mul_i32 s{CB0+i}, s3, {112*2688}\ns_mul_i32 s{CB3+i}, s3, {112*3584}")
        p(f"""
        s_and_b32 s14, s{sP}, 1
        s_mul_i32 s15, s{sP}, 448
        s_mul_i32 s6, s14, 192
        s_sub_u32 s13, 256, s6
        s_lshl_b32 s7, s6, 1
        s_sub_u32 s7, 384, s7
        s_mul_i32 s21, s{sP}, 112
        s_cmp_eq_u32 s{sTY}, 0
        s_cselect_b32 s6, s6, s13
        s_cselect_b32 s{SW4}, s{SW1}, s{SW0}
        s_cselect_b32 s{SW4+1}, s{SW1+1}, s{SW0+1}
        s_cselect_b32 s{SW4+2}, s{SW1+2}, s{SW0+2}
        s_cselect_b64 s[{CB3}:{CB3+1}], s[{CBQ}:{CBQ+1}], s[{CB3}:{CB3+1}]
        s_cselect_b64 s[{CB4}:{CB4+1}], s[{CBQ+2}:{CBQ+3}], s[{CB0}:{CB0+1}]
        s_cselect_b64 vcc, -1, 0
        s_mov_b32 s{SW4+3}, 0x20000
        s_add_u32 s6, s6, s15
        s_add_u32 s7, s7, s15
        s_lshr_b32 s3, s{sJ}, 3
        s_and_b32 s3, s3, {s.o("hswap",1)}
        s_xor_b32 s{sHK}, s{sJ}, s3
        s_mul_i32 s13, s5, 896
        s_mul_i32 s3, s{sHK}, 56
        s_add_u32 s13, s13, s3
        s_add_u32 s13, s13, 896
        v_lshrrev_b32 v197, 2, v193
        v_and_b32 v198, 48, v{vL16}
        v_mul_u32_u24 v{vW0}, 2688, v197
        v_add3_u32 v{vW0}, v{vW0}, v198, s13
        v_mul_u32_u24 v{vW3}, 3584, v197
        v_add3_u32 v{vW3}, v{vW3}, v198, s7
        v_lshrrev_b32 v197, 3, v193
        v_bfe_u32 v198, v193, 4, 1
        v_lshlrev_b32 v198, 6, v198
        v_and_b32 v199, 0x70, v{vL16}
        v_xor_b32 v198, v198, v199
        v_mul_u32_u24 v199, 896, v197
        v_add_u32 v{vB2}, v199, v198
        s_lshl_b32 s5, s5, 3
        v_add_u32 v199, s5, v197
        v_mul_u32_u24 v199, 2688, v199
        v_add3_u32 v{vW4}, v199, v198, s21
        s_lshl_b32 s4, s4, 3
        v_add_u32 v197, s4, v197
        v_mul_u32_u24 v197, 3584, v197
        v_add3_u32 v{vWq}, v197, v198, s6
        v_add_u32 v197, 128, v{vWq}
        v_cndmask_b32 v{vW3}, v{vW3}, v197, vcc
        v_cndmask_b32 v{vW4}, v{vW4}, v197, vcc
        s_lshl_b32 s3, s{sH}, 3
        s_add_u32 s3, s3, s{sP}
        s_mul_i32 s{sH}, s3, 18432
        s_lshl_b32 s3, s{sTY}, 13
        s_add_u32 s{sH}, s{sH}, s3
        s_add_u32 s{sH+1}, s{sH}, 4096
        s_add_u32 s{sH+2}, s{sH}, 8192
        s_lshl_b32 s{sKF}, s{sP}, 12
        s_add_u32 s{sKF}, s{sKF}, {WS_KF}
        s_cmp_eq_u32 s{sTY}, 0
        s_cselect_b32 s{sHc}, 0x40000000, s{sH+2}
        s_cselect_b32 s{sKF}, 0x40000000, s{sKF}
        s_lshl_b32 s3, s{sHK}, 16
        s_add_u32 s3, s3, {WS_KVP}
        s_lshl_b32 s4, s{sMI}, 12
        s_add_u32 s{sKR}, s3, s4
        s_lshl_b32 s4, s{sW}, 14
        s_add_u32 s{sKP}, s3, s4
        s_lshl_b32 s4, s{sMI}, 8
        s_add_u32 s{sKP}, s{sKP}, s4
        s_lshl_b32 s{sKFst}, s{sHK}, 11
        s_add_u32 s{sKFst}, s{sKFst}, {WS_KF}
        s_lshr_b32 s3, s{sMI}, 3
        s_lshl_b32 s3, s3, 10
        s_add_u32 s{sKFst}, s{sKFst}, s3
        s_bfe_u32 s3, s{sMI}, 0x10002
        s_lshl_b32 s3, s3, 3
        s_add_u32 s{sKFst}, s{sKFst}, s3
        s_and_b32 s3, s{sMI}, 3
        s_lshl_b32 s3, s3, 2
        s_add_u32 s3, s3, s{sW}
        s_lshl_b32 s3, s3, 6
        s_add_u32 s{sKFst}, s{sKFst}, s3
        s_mov_b32 s{sOLO}, 0x3f80
        s_mov_b32 s{sOHI}, 0x3f800000
        s_mov_b32 s{sONES}, 0x3f803f80
        s_mov_b32 s{MONE}, 0x10000000
        s_mov_b32 s{MONE+1}, 0x10000000
        s_mov_b32 s{MHI}, 0
        s_mov_b32 s{MHI+1}, -1
        s_add_u32 s{sT}, s{sMB}, s{sNB}
        """)
        for pp in range(2):
            p(f"""
            s_add_u32 s3, s{sT}, {pp}
            s_and_b32 s3, s3, 1
            s_mul_i32 s{sT3}, s3, {96*896}
            s_lshl_b32 s{sT2}, s{sW}, 1
            s_add_u32 s3, s3, s{sT2}
            s_mul_i32 s{sT2}, s3, {224*896}
            s_add_u32 s{sBA+pp}, s{sT2}, s{sT3}
            s_sub_u32 s{sBL+pp}, s{sT2}, s{sT3}
            s_sub_u32 s{sBH+pp}, s{sBL+pp}, s{sT3}
            s_add_u32 s{sBL+pp}, s{sBL+pp}, {128*896}
            s_add_u32 s{sBH+pp}, s{sBH+pp}, {192*896}
            s_mul_i32 s{sBO+pp}, s3, {56*896}
            s_lshl_b32 s{sA+pp}, s{sMB}, 4
            s_add_u32 s{sA+pp}, s{sA+pp}, s3
            s_mul_i32 s{sA+pp}, s{sA+pp}, 18432
            """)
        p(f"""
        s_mul_i32 s{sOUT}, s{sMB}, {64*896}
        s_lshl_b32 s{sNB}, s{sNB}, 7
        s_add_u32 s{sOUT}, s{sOUT}, s{sNB}
        v_add_u32 v{vB2}, s{sNB}, v{vB2}
        v_lshrrev_b32 v197, 5, v193
        v_bfe_u32 v198, v193, 2, 2
        v_bfe_u32 v199, v193, 4, 1
        v_and_b32 v200, 3, v193
        v_lshlrev_b32 v200, 3, v200
        v_lshl_add_u32 v200, v199, 5, v200
        v_lshl_add_u32 v201, v197, 3, v198
        v_lshl_add_u32 v{vTR}, v201, 6, v200
        v_add_u32 v{vTR+1}, {2*SLOT}, v{vTR}
        v_add_u32 v{vTR+2}, {4*SLOT}, v{vTR}
        v_bfe_u32 v199, v193, 3, 1
        v_lshl_add_u32 v200, v199, 6, v200
        v_lshl_add_u32 v200, v198, 7, v200
        v_mul_u32_u24 v201, 14336, v197
        v_add_u32 v201, v200, v201
        v_add_u32 v{vTQ}, {2*SLOT}, v201
        v_add_u32 v{vTQ+1}, {4*SLOT}, v201
        v_xor_b32 v{vTQ+2}, 64, v{vTQ}
        v_xor_b32 v{vTQ+3}, 64, v{vTQ+1}
        v_lshl_add_u32 v200, v197, 9, v200
        v_add_u32 v{vBT[0]}, s{sWB2}, v200
        v_xor_b32 v{vBT[1]}, 64, v{vBT[0]}
        v_add_u32 v{vBT[4]}, 0x20000, v{vBT[0]}
        v_add_u32 v{vBT[5]}, 0x20000, v{vBT[1]}
        v_and_b32 v198, 31, v193
        v_bfe_u32 v199, v193, 1, 3
        v_xor_b32 v199, v199, v197
        v_lshlrev_b32 v199, 4, v199
        v_lshl_add_u32 v199, v198, 7, v199
        v_add_u32 v199, s{sXM}, v199
        s_mul_i32 s{sT}, s{sC}, 7
        s_and_b32 s{sT}, s{sT}, 3
        """)
        for m in range(4):
            p(f"""
            s_add_u32 s{sT2}, s{sT}, {m}
            s_and_b32 s{sT3}, s{sT2}, 3
            s_lshl_b32 s{sT3}, s{sT3}, 5
            v_xor_b32 v{204+m}, s{sT3}, v199
            s_lshr_b32 s{sT2}, s{sT2}, 2
            s_lshl_b32 s{sT3}, s{sT2}, 12
            v_add_u32 v{204+m}, s{sT3}, v{204+m}
            s_mul_i32 s{sT3}, s{sT2}, {7*4096}
            v_subrev_u32 v{212+m}, s{sT3}, v{204+m}
            """)
        p(f"""
        s_lshl_b32 s{sT2}, s{sW}, 7
        s_add_u32 s{sT2}, s{sT2}, {STAT}
        v_lshl_add_u32 v{vSTR}, v197, 4, s{sT2}
        v_lshl_add_u32 v230, v198, 2, s{sT2}
        s_lshl_b32 s{sT2}, s{sW}, 12
        s_add_u32 s{sT2}, s{sT2}, {KVX}
        v_add_u32 v{vKXW}, s{sT2}, v{vL16}
        s_lshl_b32 s{sT2}, s{sW}, 10
        s_add_u32 s{sT2}, s{sT2}, {KVX}
        v_add_u32 v{vKXR}, s{sT2}, v{vL16}
        v_lshrrev_b32 v200, 4, v193
        v_and_b32 v201, 0xf0, v{vL16}
        v_lshl_add_u32 v{vKP}, v200, 12, v201
        v_lshrrev_b32 v200, 2, v193
        v_and_b32 v201, 48, v{vL16}
        v_lshl_add_u32 v200, v200, 8, v201
        s_lshl_b32 s{sT2}, s{sW}, 6
        v_add_u32 v{vKR}, s{sT2}, v200
        v_cmp_eq_u32 vcc, 0, v193
        v_mov_b32 v{vONE}, 1
        v_cndmask_b32 v{vZ}, v{vZ}, 0, vcc
        v_lshlrev_b32 v{vPA31}, 2, v198
        v_mov_b32 v208, 0
        v_mov_b32 v209, 0
        v_mov_b32 v210, 0
        v_mov_b32 v211, 0
        v_mov_b32 v216, -1
        v_mov_b32 v217, -1
        v_mov_b32 v218, -1
        v_mov_b32 v219, -1
        """)
        p(s.stamp("setup_done",1))
        clr=[I(f"buffer_store_dwordx4 v[216:219], v{vKP}, {srd(SWS)}, s{sKP} offen sc1"),
             I(f"buffer_store_dwordx2 v[216:217], v{vKFs}, {srd(SWS)}, s{sKFst} offen sc1")]
        s.i_sent=4 if s.o("sentC",1) else 6
        hc=[]
        for i in range(s.i_sent,10):
            hc.append(f"buffer_store_dwordx4 {v(vP,4)}, v{vL16}, {srd(SWS)}, s{sH+i//4 if i<8 else sHc} offen offset:{(i%4)*1024} sc1")
        s.hclr=[I(f"v_mov_b32 v{vP+k}, -1") for k in range(4)]+[I(t) for t in hc]
        def stats(G):
            for q in range(4):
                for r in range(4):
                    x=X+(G*4+q)*4+r
                    p(f"v_dot2_f32_bf16 v{208+(r&1)}, v{x}, s{sONES}, v{208+(r&1)}")
                    p(f"v_dot2_f32_bf16 v{210+(r&1)}, v{x}, v{x}, v{210+(r&1)}")
        prev=None; todo=[xdma(P) for P in range(NX0,7)]
        k0=s.witems("k0",1)+[[clr[0]],[clr[1]]]; per=-(-len(k0)//(NX0+1))
        def stats2(G, items):
            L=[]
            for q in range(4):
                for r in range(4):
                    x=X+(G*4+q)*4+r
                    L.append(I(f"v_dot2_f32_bf16 v{208+(r&1)}, v{x}, s{sONES}, v{208+(r&1)}"))
                    L.append(I(f"v_dot2_f32_bf16 v{210+(r&1)}, v{x}, v{x}, v{210+(r&1)}"))
            for k,it in enumerate(items): L[32*k//len(items)]=[L[32*k//len(items)]]+it
            p(L)
        for G in range(7):
            if todo: p(todo.pop(0)); it=[]
            else: it=k0[:per]; k0=k0[per:]
            p(W(vm=tok_x[min(G+1,6)]))
            p(s.stamp(f"x{G}",1))
            for q in range(4):
                tk=p(f"ds_read_b128 {v(X+(G*4+q)*4,4)}, v{(204 if G<6 else 212)+q} offset:{G*4096}")
            if prev is not None:
                p(W(lg=prev)); stats2(G-1,it)
            prev=tk
        s.tok_clr=clr[-1]
        p(W(lg=0))
        p(s.stamp("x_in_regs"))
        p("s_barrier")
        p(f"s_or_b32 s{sT}, s{sWG}, s{sW}\ns_cmp_lg_u32 s{sT}, 0\ns_cbranch_scc1 L_nogo")
        p(I(f"buffer_store_dword v{vONE}, v{vZ}, {srd(SD)}, 0 offen offset:128 sc1", count=False))
        p("L_nogo:")
        p(f"""
        s_lshl_b32 s{sT}, s{sMI}, 2
        s_add_u32 s{sT}, s{sT}, s{sW}
        s_lshr_b32 s{sT2}, s{sT}, 1
        s_lshl_b32 s{sT2}, s{sT2}, 2
        s_lshr_b32 s{sT3}, s{sJ}, 2
        s_add_u32 s{sT2}, s{sT2}, s{sT3}
        s_lshl_b32 s{sFHst}, s{sT2}, 7
        s_and_b32 s{sT}, s{sT}, 1
        s_lshl_b32 s{sT}, s{sT}, 2
        s_and_b32 s{sT3}, s{sJ}, 3
        s_add_u32 s{sT}, s{sT}, s{sT3}
        s_lshl_b32 s{sT}, s{sT}, 2
        s_add_u32 s{sFHst}, s{sFHst}, s{sT}
        s_add_u32 s{sFHst}, s{sFHst}, {WS_FH}
        s_lshl_b32 s{sFHld}, s{sMB}, 2
        s_add_u32 s{sFHld}, s{sFHld}, s{sW}
        s_lshl_b32 s{sFHld}, s{sFHld}, 7
        s_add_u32 s{sFHld}, s{sFHld}, {WS_FH}
        s_cmp_eq_u32 s{sV2}, 0
        s_cselect_b32 s{sFHld}, {WS_FH}, s{sFHld}
        s_lshl_b32 s{sFKld}, s{sP}, 7
        s_add_u32 s{sFKld}, s{sFKld}, {WS_FK}
        s_lshl_b32 s{sT}, s{sTY}, 4
        s_add_u32 s{sT}, s{sT}, s{sMI}
        s_lshl_b32 s{sT}, s{sT}, 2
        s_add_u32 s{sFKst}, s{sFKld}, s{sT}
        """)
        stats2(6,k0)
        p(f"""
        v_add_f32 v208, v208, v209
        v_add_f32 v210, v210, v211
        v_mov_b32 v209, v208
        v_mov_b32 v211, v210
        v_permlane32_swap_b32 v208, v209
        v_permlane32_swap_b32 v210, v211
        v_add_f32 v208, v208, v209
        v_add_f32 v210, v210, v211
        v_mul_f32 v208, {fb(1/448)}, v208
        v_mul_f32 v210, {fb(1/448)}, v210
        v_fma_f32 v210, -v208, v208, v210
        v_max_f32 v210, 0, v210
        v_add_f32 v{vV}, {fb(1e-5)}, v210
        v_rsq_f32 v{vS}, v{vV}
        v_mul_f32 v{vK0}, {fb(K0C)}, v{vS}
        v_mul_f32 v{vC2}, {fb(LOG2E)}, v{vS}
        v_mul_f32 v209, v{vS}, v{vS}
        v_mul_f32 v209, v209, v{vS}
        v_mul_f32 v{vK1}, {fb(K1C)}, v209
        ds_write_b32 v230, v{vS}
        """)
        dm=[]
        for nm in s.o("cdma",["k1"]): dm+=s.wdma(nm)
        nd=sum(1 for x in dm if x.kind=="vmem"); di=0; iss=0
        for g in range(57):
            x0=X+g*2; bk=212+4*(g&1); pb=212+4*((g+1)&1)
            if g<56:
                p(f"v_dot2_f32_bf16 v{bk}, v{x0}, s{sOLO}, v208 neg_lo:[0,0,1]")
                p(f"v_dot2_f32_bf16 v{bk+1}, v{x0}, s{sOHI}, v208 neg_lo:[0,0,1]")
                p(f"v_dot2_f32_bf16 v{bk+2}, v{x0+1}, s{sOLO}, v208 neg_lo:[0,0,1]")
                p(f"v_dot2_f32_bf16 v{bk+3}, v{x0+1}, s{sOHI}, v208 neg_lo:[0,0,1]")
            if g>0:
                p(f"v_cvt_pk_bf16_f32 v{x0-2}, v{pb}, v{pb+1}"); p(f"v_cvt_pk_bf16_f32 v{x0-1}, v{pb+2}, v{pb+3}")
            while di<len(dm) and iss<nd*(g+1)/57:
                p(dm[di]); iss+=dm[di].kind=="vmem"; di+=1
        assert di==len(dm)
        p(f"v_mov_b32 v{vB}, v{vB2}\nv_add_u32 v{vB2}, 6144, v{vB2}")
        s.selC=lines(f"s_cmp_eq_u32 s{sTY}, 0\n"+"\n".join(f"s_cselect_b32 s{C26+i}, s{C35+i}, s{C26+i}" for i in range(7)))
        p(s.stamp("centered"))
    def hstore(s, P, i):
        x=I(f"buffer_store_dwordx4 {v(P,4)}, v{vL16}, {srd(SWS)}, s{sH+i//4} offen offset:{(i%4)*1024} sc1"); s.tok_h[i]=x; return x
    def flagst(s, val, tok):
        return [W(vm=tok,tag="wFl"), I(f"v_mov_b32 v{vONE}, {val}"), I(f"buffer_store_dword v{vONE}, v{vZ}, {srd(SWS)}, s{sFHst} offen sc1")]
    def poll(s, val):
        t=f"buffer_load_dword v{vPOLL+1}, v{vPA7}, {srd(SWS)}, s{sFHld} offen sc1"
        ld=I(t); return ld, [W(vm=ld)]+s.retry([f"v_cmp_gt_u32 vcc, {val}, v{vPOLL+1}"], [t])
    def gelu(s, G, U, n, i0, acc=False, pk=False):
        L=[]
        for f in range(n//8):
            P=vP+4*(f&1)
            for h in range(2):
                r=[f*8+h*4+k for k in range(4)]
                if pk:
                    if acc: L+=[I(f"v_accvgpr_read_b32 v{vU+k}, a{U+r[k]}") for k in range(4)]
                    g2=[v(G+r[2*k],2) for k in range(2)]; u2=[v(vU+2*k if acc else U+r[2*k],2) for k in range(2)]; t2=[v(vT+2*k,2) for k in range(2)]
                    L+=[I(f"v_pk_mul_f32 {t2[k]}, {g2[k]}, {g2[k]}") for k in range(2)]
                    L+=[I(f"v_pk_fma_f32 {t2[k]}, {t2[k]}, {v(vK1,2)}, {v(vK0-1,2)} op_sel:[0,0,1] op_sel_hi:[1,0,1]") for k in range(2)]
                    L+=[I(f"v_pk_mul_f32 {t2[k]}, {t2[k]}, {g2[k]}") for k in range(2)]
                    L+=[I(f"v_pk_mul_f32 {g2[k]}, {g2[k]}, {u2[k]}") for k in range(2)]
                    L+=[I(f"v_exp_f32 v{vT+k}, v{vT+k}") for k in range(4)]
                    L+=[I(f"v_pk_fma_f32 {t2[k]}, {t2[k]}, {v(vV-1,2)}, {v(vV-1,2)} op_sel:[0,1,1] op_sel_hi:[1,1,1]") for k in range(2)]
                    L+=[I(f"v_rcp_f32 v{vT+k}, v{vT+k}") for k in range(4)]
                    L+=[I(f"v_pk_mul_f32 {g2[k]}, {g2[k]}, {t2[k]}") for k in range(2)]
                    L+=[I(f"v_cvt_pk_bf16_f32 v{P+2*h+k}, v{G+r[2*k]}, v{G+r[2*k+1]}") for k in range(2)]
                    continue
                L+=[I(f"v_mul_f32 v{vT+k}, v{G+r[k]}, v{G+r[k]}") for k in range(4)]
                L+=[I(f"v_fma_f32 v{vT+k}, v{vT+k}, v{vK1}, v{vK0}") for k in range(4)]
                L+=[I(f"v_mul_f32 v{vT+k}, v{vT+k}, v{G+r[k]}") for k in range(4)]
                if acc: L+=[I(f"v_accvgpr_read_b32 v{vU+k}, a{U+r[k]}") for k in range(4)]
                L+=[I(f"v_exp_f32 v{vT+k}, v{vT+k}") for k in range(4)]
                L+=[I(f"v_mul_f32 v{G+r[k]}, v{G+r[k]}, v{vU+k if acc else U+r[k]}") for k in range(4)]
                L+=[I(f"v_fma_f32 v{vT+k}, v{vT+k}, v{vV}, v{vV}") for k in range(4)]
                L+=[I(f"v_rcp_f32 v{vT+k}, v{vT+k}") for k in range(4)]
                L+=[I(f"v_mul_f32 v{G+r[k]}, v{G+r[k]}, v{vT+k}") for k in range(4)]
                L+=[I(f"v_cvt_pk_bf16_f32 v{P+2*h+k}, v{G+r[2*k]}, v{G+r[2*k+1]}") for k in range(2)]
            L.append(s.hstore(P,i0+f))
        return L
    def kv_epi(s):
        K=ACC+32; V=ACC+48; S=192; PK=208; PV=216; L=[]
        rd=[I(f"ds_read_b128 {v(S+4*i,4)}, v{vSTR} offset:{32*i}") for i in range(4)]
        L+=rd+[W(lg=rd[-1])]
        for h in range(4):
            r=[4*h+k for k in range(4)]
            L+=[I(f"v_mul_f32 v{K+x}, v{K+x}, v{S+x}") for x in r]
            L+=[I(f"v_min_f32 v{vT+k}, 0, v{K+r[k]}") for k in range(4)]
            L+=[I(f"v_mul_f32 v{vT+k}, {fb(LOG2E)}, v{vT+k}") for k in range(4)]
            L+=[I(f"v_exp_f32 v{vT+k}, v{vT+k}") for k in range(4)]
            L+=[I(f"v_max_f32 v{K+x}, 0, v{K+x}") for x in r]
            L+=[I(f"v_add_f32 v{K+r[k]}, v{K+r[k]}, v{vT+k}") for k in range(4)]
            L+=[I(f"v_add_f32 v{K+x}, {fb(1e-6)}, v{K+x}") for x in r]
            L+=[I(f"v_mul_f32 v{V+x}, v{V+x}, v{S+x}") for x in r]
            L+=[I(f"v_cvt_pk_bf16_f32 v{PK+2*h+k}, v{K+r[2*k]}, v{K+r[2*k+1]}") for k in range(2)]
            L+=[I(f"v_cvt_pk_bf16_f32 v{PV+2*h+k}, v{V+r[2*k]}, v{V+r[2*k+1]}") for k in range(2)]
        L+=[I(f"v_mov_b32 v{vT}, s{sONES}")]
        L+=[I(f"v_cndmask_b32 v{PV+k}, v{PV+k}, v{vT}, s[{MONE}:{MONE+1}]") for k in range(8)]
        M=[I(f"v_mfma_f32_32x32x16_bf16 {v(K,16)}, {v(PK,4)}, {v(PV,4)}, 0"),
           I(f"v_mfma_f32_32x32x16_bf16 {v(K,16)}, {v(PK+4,4)}, {v(PV+4,4)}, {v(K,16)}")]
        Wr=[I(f"ds_write_b128 v{vKXW}, {v(K+4*q,4)} offset:{q*1024}") for q in range(4)]
        rd2=[I(f"ds_read_b128 {v(S+4*q,4)}, v{vKXR} offset:{q*4096}") for q in range(4)]
        R=rd2+[W(lg=rd2[-1])]
        R+=[I(f"v_add_f32 v{S+k}, v{S+k}, v{S+4+k}") for k in range(4)]
        R+=[I(f"v_add_f32 v{S+8+k}, v{S+8+k}, v{S+12+k}") for k in range(4)]
        R+=[I(f"v_add_f32 v{S+k}, v{S+k}, v{S+8+k}") for k in range(4)]
        R.append(I(f"buffer_store_dwordx4 {v(S,4)}, v{vKP}, {srd(SWS)}, s{sKP} offen sc1"))
        return L,M,Wr,R
    def chk(s, regs):
        t=[f"v_max3_u32 v230, v{regs[0]}, v{regs[1]}, v{regs[2]}"]; r=regs[3:]
        if len(regs)>=8: t.append(f"v_max3_u32 v231, v{r[0]}, v{r[1]}, v{r[2]}"); r=r[3:]
        else: t.append(f"v_mov_b32 v231, v{r[0]}"); r=r[1:]
        k=0
        while r:
            t.append(f"v_max3_u32 v{230+k}, v{230+k}, v{r[0]}, v{r[1]}"); r=r[2:]; k^=1
        return t+["v_max_u32 v230, v230, v231","v_cmp_eq_u32 vcc, -1, v230"]
    def kv_l1(s):
        t=f"buffer_load_dwordx4 v[192:195], v{vKR}, {srd(SWS)}, s{sKR} offen sc1"; ld=I(t)
        L=[W(vm=ld)]+s.retry(s.chk([192,193,194,195]),[t])
        for rot in (4,8): L+=[I(f"v_add_f32_dpp v{192+k}, v{192+k}, v{192+k} row_ror:{rot} row_mask:0xf bank_mask:0xf") for k in range(4)]
        for sw in ("v_permlane16_swap_b32","v_permlane32_swap_b32"):
            L+=[I(f"v_mov_b32 v{196+k}, v{192+k}") for k in range(4)]
            L+=[I(f"{sw} v{192+k}, v{196+k}") for k in range(4)]
            L+=[I(f"v_add_f32 v{192+k}, v{192+k}, v{196+k}") for k in range(4)]
        L+=[I("v_cvt_pk_bf16_f32 v196, v192, v193"), I("v_cvt_pk_bf16_f32 v197, v194, v195"),
            I(f"buffer_store_dwordx2 v[196:197], v{vKFs}, {srd(SWS)}, s{sKFst} offen sc1")]
        return ld,L
    def aload_txt(s, n):
        pp,i=kmap(n); L=[]
        so=f"s{sA+pp}"
        if i>=4: L.append(f"s_add_u32 s{sT2}, s{sA+pp}, {(i//4)*4096}"); so=f"s{sT2}"
        return L+[f"buffer_load_dwordx4 {s.areg(n,mb)}, v{vL16 if mb==0 else s.vA1}, {srd(SWS)}, {so} offen offset:{(i%4)*1024} sc1" for mb in range(2)]
    def areg(s,n,mb=None):
        b=X+8*(n%14)
        return list(range(b,b+8)) if mb is None else v(b+4*mb,4)
    def aload(s, n):
        L=[I(t) for t in s.aload_txt(n)]; s.tok_a[n]=L[-1]; return L
    def gapinfo(s, g):
        if g<56: return 0,g>>1,g&1
        if g<168: return 1,(g-56)>>2,(g-56)&3
        if s.ty==0: return 2,(g-168)>>2,(g-168)&3
        return 3+(g-168)//56,((g-168)%56)>>1,g&1
    def trd(s, g):
        ps,pos,u=s.gapinfo(g); dst=(g%8)*4; L=[]
        for t in range(2):
            if ps in (1,2):
                slot=[[2,3,4,2],[3,4,2,3]][ps-1][pos//7]
                L.append(I(f"ds_read_b64_tr_b16 {a(dst+2*t,2)}, v{vTQ+2*(u>>1)+slot//2-1} offset:{(slot&1)*SLOT+(u&1)*7168+(pos%7)*1024+t*512}"))
            elif ps==4:
                pl=pos%14
                L.append(I(f"ds_read_b64_tr_b16 {a(dst+2*t,2)}, v{vQ+u} offset:{(pos//14)*SLOT+2*(pl//7)*7168+(pl%7)*1024+t*512}"))
            else:
                slot={0:0,3:3}[ps]+pos//14; pl=pos%14
                L.append(I(f"ds_read_b64_tr_b16 {a(dst+2*t,2)}, v{vTR+slot//2} offset:{(slot&1)*SLOT+(u+2*(pl//7))*7168+(pl%7)*1024+t*256}"))
        return L
    def phase1(s):
        p=s.p; s.tok_a={}; s.tok_h={}; s.vA1=198; o=s.o; segs=[]
        def seg(g0,g1,L): segs.append([g0,g1,list(L),0])
        Q=[]
        wl=o("wlen",10)
        for x in s.selC: x.tag="inl"
        seg(28,29,s.selC)
        wsched=o("wsched",{"Q0":(0,14),"Q1":(15,36),"Q2":(37,58),"Q3":(81,100),"h0":(109,132),"h1":(137,160),"f0":(165,188),"f1":(193,214)})
        if wl: wsched={k:((a_,a_+wl) if a_>50 else (a_,b_)) for k,(a_,b_) in wsched.items()}
        for nm,(g0,g1) in wsched.items():
            it=s.witems(nm,o("wper",1))
            for k,x in enumerate(it): Q.append((g0+(g1-g0)*k/len(it),x))
        seg(*o("hclr",(4,40)),s.hclr)
        s.tok_w["clr"]=s.tok_clr
        conf={24:["k1"],52:["Q0","clr"],80:["Q1"],108:["Q2"],136:["Q3"],164:["h0"],192:["h1"],220:["f0"],248:["f1"]}
        e1,eM,eW,eR=s.kv_epi(); ke=o("kvbar",108)
        seg(58,ke-12,e1); seg(ke-11,ke-10,eM[:1]); seg(ke-9,ke-8,eM[1:]); seg(ke-4,ke-1,eW); seg(ke+1,ke+8,eR)
        seg(171,223 if s.ty else o("gAend",226),s.gelu(ACC,aU,16,0,True)+s.gelu(ACC+16,aU+16,16,2,True))
        if s.ty: seg(228,o("g3end",274),s.gelu(ACC+32,ACC+48,16,4))
        gt=f"buffer_load_dword v{vPOLL+1}, off, {srd(SD)}, 0 offset:128 sc1"; gld=I(gt)
        seg(1,2,[gld])
        seg(53,54,[W(vm=gld)]+s.retry([f"v_cmp_eq_u32 vcc, 0, v{vPOLL+1}"],[gt])+[I(f"s_cmp_lg_u32 s{sW}, 0"),I(f"s_cselect_b32 s{sFKst}, 0x40000000, s{sFKst}"),
            I(f"buffer_store_dword v{vONE}, v{vZ}, {srd(SWS)}, s{sFKst} offen sc1")])
        ct=f"buffer_load_dword v{vPOLL+1}, v{vPA31}, {srd(SWS)}, s{sFKld} offen sc1"; cld=I(ct)
        gk=o("gkv",166); kld,kred=s.kv_l1()
        seg(gk-45,gk-44,[cld]); seg(gk-1,gk,[W(vm=cld)]+s.retry([f"v_cmp_eq_u32 vcc, 0, v{vPOLL+1}"],[ct])+[kld])
        seg(o("gfa",238),o("gfa",238)+1,s.flagst(1,[s.tok_h[1],s.hclr[-1]]))
        seg(o("gfb",264),o("gfb",264)+1,s.flagst(2,s.tok_h[3]))
        plA,pcA=s.poll(1); seg(o("gpa",266),o("gpa",266)+1,[I(f"v_and_b32 v{vPA7}, 28, v{vPA31}"),plA])
        T=lines(f"""
        s_mov_b32 s{SWD}, s16
        s_and_b32 s{SWD+1}, s17, 0xffff
        s_mov_b32 s{SWD+2}, {1792*896}
        """)
        T[2]=I(f"s_mul_i32 s{SWD+2}, s{sV2}, {1792*896}"); seg(26,27,T); T=[]
        if o("warm",1):
            T+=lines(f"""
            s_mov_b32 s{SWD+2}, {1792*896}
            s_lshl_b32 s{sC}, s{sWG}, 2
            s_add_u32 s{sC}, s{sC}, s{sW}
            v_lshlrev_b32 v{vTCH}, 2, v{vL16}
            s_mul_i32 s{sT3}, s{sC}, 1568
            s_mov_b64 exec, 0x1ffffff
            buffer_load_dword a255, v{vTCH}, {srd(SWD)}, s{sT3} offen
            s_mul_i32 s{SWD+2}, s{sV2}, {1792*896}
            s_lshr_b32 s{sT3}, s{sC}, 1
            s_mul_i32 s{sT3}, s{sT3}, 3136
            s_add_u32 s{sT3}, s{sT3}, 3072
            s_mov_b32 exec_lo, -1
            s_mov_b32 exec_hi, 0x1ffff
            buffer_load_dword a255, v{vTCH}, {srd(SW1)}, s{sT3} offen
            s_mov_b32 s{sP}, s{SD}
            s_mov_b32 s{sHc}, s{SD+1}
            s_mov_b32 s{SD}, s8
            s_and_b32 s{SD+1}, s9, 0xffff
            s_mov_b32 s{SD+2}, {448*896}
            s_mul_i32 s{sT3}, s{sC}, 392
            s_mov_b64 exec, 0x7f
            buffer_load_dword a255, v{vTCH}, {srd(SD)}, s{sT3} offen
            s_mov_b64 exec, -1
            """)
            for x in T: x.tag="inl"
        seg(o("gwarm",60),o("gwarm",60)+1,T)
        seg(o("gred",196),o("gred",196)+10,kred)
        kft=[f"buffer_load_dwordx4 {v(200+4*q,4)}, v{vL16}, {srd(SWS)}, s{sKF} offen offset:{q*1024} sc1" for q in range(4)]
        kf=[I(t) for t in kft]
        if s.ty: seg(o("gkf",252),o("gkf",252)+4,kf)
        seg(o("gsrd",222),o("gsrd",222)+2,lines(f"""
        s_mov_b32 s{SWO}, s8
        s_and_b32 s{SWO+1}, s9, 0xffff
        s_mul_i32 s{SWO+2}, s{sV2}, {448*896}
        s_mov_b32 s{SOUT}, s18
        s_and_b32 s{SOUT+1}, s19, 0xffff
        s_mov_b32 s{SOUT+2}, {2048*896}
        """))
        seg(166,168,lines(f"""
        v_add_u32 v{s.vBT[2]}, 0x10000, v{vBT[0]}
        v_add_u32 v{s.vBT[3]}, 0x10000, v{vBT[1]}
        """))
        if s.ty==1: seg(200,204,lines(f"""
        v_bfe_u32 v230, v{vL16}, 6, 2
        v_lshrrev_b32 v231, 9, v{vL16}
        v_mul_u32_u24 v231, 7168, v231
        v_lshl_add_u32 v231, v230, 7, v231
        v_add_u32 v231, {2*SLOT}, v231
        v_and_b32 v230, 0x7f, v{vBT[0]}
        v_add_u32 v{vQ}, v230, v231
        v_and_b32 v{vQ+1}, 64, v230
        v_and_b32 v230, 63, v230
        v_add_u32 v230, 56, v230
        v_xor_b32 v230, v230, v{vQ+1}
        v_add_u32 v{vQ+1}, v230, v231
        """))
        NR=s.NR=o("NR",19); pace=o("bpace",4); lag=o("blag",30); t=float(o("b0",60))
        free={e:(ENT_FREE[e]+1,None) for e in range(len(ENT))}; late=[]
        busy=set(); s.p2b=[]
        def slot(tt):
            g=int(tt)
            while g in busy: g+=1
            busy.add(g); return g
        for tt,x in Q:
            g=slot(tt); seg(g,g+1,x); assert g<o("gsrd",222)-1
        if o("bblock",(4,2)):
            for nm,(g0,g1) in wsched.items(): busy.update(range(g0-o("bblock",(4,2))[0],g1+o("bblock",(4,2))[1]))
        order=list(range(36))
        if o("border",0): order=list(range(16))+[16,17,20,21,28,29,18,19,22,23,30,31,24,25,32,33,26,27,34,35]
        pl=o("plead",None)
        for n in order:
            if pl: pace=pl[kmap(n)[0]]
            e=min(free,key=lambda k:(max(free[k][0],t),k)); tt=max(free[e][0],t); tok=free.pop(e)[1]
            L=([W(lg=tok)] if tok else [])+s.bdma(n,e)
            tt=slot(tt)
            if kmap(n)[1]>=14 and tt<=o("gsrd",222)+2: busy.discard(tt); tt=slot(o("gsrd",222)+3)
            if n>=o("nbp",36): s.p2b.append(L); continue
            if tt<278: seg(tt,tt+1,L)
            else: late.append((tt,L))
            if n<NR:
                R=[W(vm=s.tok_b[n],tag="wB")]+[s.btr(n,q,aB+8*n) for q in range(4)]
                if tt+lag<277: seg(int(tt+lag),int(tt+lag)+1,R)
                else: late.append((tt+lag,R))
                free[e]=(tt+lag+3,R[-1])
            t=tt+pace
        late.sort(key=lambda x:x[0])
        p(W(vm=s.tok_w["k0"])); p("s_barrier")
        p(s.stamp("B0",1))
        rd={}
        for g in range(4):
            rd[g]=s.trd(g); p(rd[g])
        for g in range(280):
            ps,pos,u=s.gapinfo(g)
            if g%2==0: p(W(lg=rd[g+1][-1]))
            if ps in (1,2): D=(a(aU+32*(ps-1)+16*(u>>1),16) if u&1 else v(ACC+32*(ps-1)+16*(u>>1),16))
            else: D=v(ACC+(0 if ps==4 else 32)+16*u,16)
            fr=a((g%8)*4,4); xr=v(X+4*pos,4); C=D if pos else "0"
            if ps==0: p(f"v_mfma_f32_32x32x16_bf16 {D}, {xr}, {fr}, {C}")
            else: p(f"v_mfma_f32_32x32x16_bf16 {D}, {fr}, {xr}, {C}")
            if g in BARS:
                p(W(vm=[s.tok_w[x] for x in conf[g]], lg=0, tag="wBar") if g in conf else W(lg=0))
                p("s_barrier")
                p(s.stamp(f"g{g}", g not in (52,108,164,220,276)))
                if g==164: p("; SPLIT")
            if g+4<280:
                rd[g+4]=s.trd(g+4); p(rd[g+4])
            tr=o("trace",None)
            if tr and tr[0]<=g<tr[1] and (g-tr[0])%tr[2]==0: p(s.stamp(f"t{g}"))
            p(f"; gap {g}")
            heads=[]; pure=[]; mixed=[]
            for sgm in segs:
                g0,g1,L,done=sgm
                if g<g0 or done>=len(L): continue
                tot=sum(x.cost for x in L); tgt=tot*(g-g0+1)/(g1-g0) if g<g1-1 else tot+1
                acc=sum(x.cost for x in L[:done]); body=[]
                ismem=lambda x: x.kind in("ds","vmem") and x.tag!="inl"
                nh=0
                while done<len(L) and ismem(L[done]) and (acc<tgt or (done>0 and not ismem(L[done-1]))) and nh<o("maxhead",4):
                    heads.append(L[done]); acc+=L[done].cost; done+=1; nh+=1
                while done<len(L) and (acc<tgt or L[done].kind=="label") and (not ismem(L[done]) or g==279):
                    body.append(L[done]); acc+=L[done].cost; done+=1
                (pure if all(x.kind in("valu","trans") for x in body) else mixed).append(body)
                sgm[3]=done
            p([x for x in heads if x.kind=="ds"]); p([x for x in heads if x.kind!="ds"])
            for b in pure+mixed: p(b)
        assert all(x[3]==len(x[2]) for x in segs)
        p(s.stamp("p1_mfma_done"))
        p(f"""
        v_add_u32 v{s.vA1}, {8*18432}, v{vL16}
        s_cmp_eq_u32 s{sV2}, 0
        s_cselect_b32 s{sT2}, 0x40000000, 0
        s_add_u32 s{sA}, s{sA}, s{sT2}
        s_add_u32 s{sA+1}, s{sA+1}, s{sT2}
        """)
        pk=o("pk",1); T=[]; tp=T.extend
        if s.ty==0:
            tp(s.gelu(ACC+32,aU+32,16,4,True,pk)+s.gelu(ACC+48,aU+48,16,6,True,pk))
        else:
            PQ=[216,vP]
            for hh in range(2):
                Q=ACC+16*hh
                for h in range(4):
                    r=[4*h+k for k in range(4)]
                    tp([I(f"v_pk_mul_f32 {v(vT+2*k,2)}, {v(Q+r[2*k],2)}, {v(vS,2)} op_sel:[0,1] op_sel_hi:[1,1]") for k in range(2)])
                    tp([I(f"v_min_f32 v{vT+k}, 0, v{vT+k}") for k in range(4)])
                    tp([I(f"v_exp_f32 v{vT+k}, v{vT+k}") for k in range(4)])
                    tp([I(f"v_max_f32 v{Q+x}, 0, v{Q+x}") for x in r])
                    tp([I(f"v_pk_fma_f32 {v(Q+r[2*k],2)}, {v(Q+r[2*k],2)}, {v(vS,2)}, {v(vT+2*k,2)} op_sel_hi:[1,0,1]") for k in range(2)])
                    tp([I(f"v_add_f32 v{Q+x}, {fb(1e-6)}, v{Q+x}") for x in r])
                    tp([I(f"v_cvt_pk_bf16_f32 v{PQ[hh]+2*h+k}, v{Q+r[2*k]}, v{Q+r[2*k+1]}") for k in range(2)])
                tp([I(f"v_cndmask_b32 v{PQ[hh]+6+k}, v{PQ[hh]+6+k}, 0, s[{MHI}:{MHI+1}]") for k in range(2)])
                if hh==0:
                    c=s.stamp("pre_kf",1)+[W(vm=kf[-1])]+s.retry(s.chk(list(range(200,216))),kft)+s.stamp("kf_ok",1)
                    for x in c: x.tag=x.tag or "atom"
                    tp(c)
                N=ACC+32+16*hh
                tp(lines(f"""
                v_mfma_f32_32x32x16_bf16 {v(N,16)}, {v(200+8*hh,4)}, {v(PQ[hh],4)}, 0
                v_mfma_f32_32x32x16_bf16 {v(N,16)}, {v(204+8*hh,4)}, {v(PQ[hh]+4,4)}, {v(N,16)}
                """))
            for hh in range(2):
                N=ACC+32+16*hh; PO=ACC+8*hh
                tp(lines(f"""
                v_mov_b32 v230, v{N+12}
                v_mov_b32 v231, v{N+12}
                v_permlane32_swap_b32 v230, v231
                v_add_f32 v230, {fb(1e-6)}, v231
                v_rcp_f32 v230, v230
                """))
                tp([I(f"v_pk_mul_f32 {v(N+2*k,2)}, {v(N+2*k,2)}, v[230:231] op_sel_hi:[1,0]") for k in range(8)])
                tp([I(f"v_cvt_pk_bf16_f32 v{PO+k}, v{N+2*k}, v{N+2*k+1}") for k in range(8)])
                tp([I(f"v_cndmask_b32 v{PO+6+k}, v{PO+6+k}, 0, s[{MHI}:{MHI+1}]") for k in range(2)])
                tp([s.hstore(PO+4*f,6+2*hh+f) for f in range(2)])
        plB,pcB=s.poll(2)
        M=[s.stamp("pre_flagA",1)+list(pcA)+s.stamp("flagA",1)]
        npb=o("npb",3)
        for n in range(8):
            M.append(s.aload(n))
            if n==npb: M.append([plB])
        M+=[L for _,L in late]
        M.append(s.stamp("pre_flagB",1)+list(pcB)+s.stamp("flagB",1))
        for n in range(8,14): M.append(s.aload(n))
        tot=sum(x.cost for x in T); step=o("tstep",26); acc=0; nxt=o("tfirst",0)
        for x in T:
            if M and acc>=nxt and x.tag!="atom" and x.kind!="vmem": p(M.pop(0)); nxt+=step
            p(x); acc+=x.cost
        s.rest=M
        p(s.stamp("tail_done"))
        p(f"s_cmp_eq_u32 s{sV2}, 0"); p("s_cbranch_scc1 L_fin")
    def phase2(s):
        p=s.p; o=s.o; NR=s.NR
        vXR=204
        adr=[]
        vEW,vER,vO=216,220,222
        adr=lines(f"""
        v_lshrrev_b32 v230, 7, v{vL16}
        s_lshl_b32 s{sT3}, s{sW}, 3
        v_add_u32 v231, s{sT3}, v230
        v_mul_u32_u24 v231, 896, v231
        v_and_b32 v{vO}, 0x70, v{vL16}
        v_add_u32 v{vO}, v{vO}, v231
        v_add_u32 v{vO+1}, {32*896}, v{vO}
        v_bfe_u32 v231, v{vL16}, 4, 2
        v_lshlrev_b32 v231, 1, v231
        v_xor_b32 v231, v231, v230
        v_lshlrev_b32 v231, 4, v231
        v_lshl_add_u32 v231, v230, 8, v231
        v_bfe_u32 v230, v{vL16}, 6, 1
        v_lshl_add_u32 v231, v230, 7, v231
        s_lshl_b32 s{sT3}, s{sW}, 13
        v_add_u32 v{vER}, s{sT3}, v231
        v_xor_b32 v{vER+1}, 16, v{vER}
        v_bfe_u32 v230, v{vL16}, 4, 3
        v_lshrrev_b32 v231, 9, v{vL16}
        v_xor_b32 v231, v231, v230
        v_lshlrev_b32 v231, 4, v231
        v_lshl_add_u32 v231, v230, 8, v231
        v_bfe_u32 v230, v{vL16}, 7, 2
        v_lshl_add_u32 v231, v230, 13, v231
        v_add_u32 v{vEW}, s{sWB2}, v231
        v_xor_b32 v{vEW+1}, 32, v{vEW}
        v_xor_b32 v{vEW+2}, 64, v{vEW}
        v_xor_b32 v{vEW+3}, 0x60, v{vEW}
        """)
        while s.rest:
            p(s.rest.pop(0)); p(adr[:6]); adr=adr[6:]
        p(adr)
        groups=[(16,20),(20,24),(24,28),(28,32),(32,36)]
        n_s=groups[0][0]
        def gchk(n0,n1):
            return [W(vm=s.tok_a[n1-1])]+s.retry(s.chk([r for n in range(n0,n1) for r in s.areg(n)]),[t for n in range(n0,n1) for t in s.aload_txt(n)])
        breg=lambda n: aB+8*n if n<NR else (n%4)*8
        rb={}
        p(W(lg=0)); p(s.stamp("p2_start"))
        pend=[]; nxt=14; nC=o("nC",4); al=[]; bl=[]
        for n in range(33):
            p(pend); pend=[]
            if n in (8,16,24): p(s.stamp(f"p2_n{n}"))
            if n<n_s and n>=NR: p(W(vm=s.tok_a[n], lg=rb[n]))
            elif n<n_s: p(W(vm=s.tok_a[n]))
            elif n>=NR: p(W(lg=rb[n]))
            for q in range(4):
                nbk,mb=q>>1,q&1; D=ACC+16*q
                p(f"v_mfma_f32_32x32x16_bf16 {v(D,16)}, {a(breg(n)+nbk*4,4)}, {s.areg(n,mb)}, {v(D,16) if n else 0}")
                if NR<=n+1<36:
                    if q==0:
                        p(W(vm=s.tok_b[n+1])); p(s.btr(n+1,0,breg(n+1))); p(s.btr(n+1,1,breg(n+1)))
                    if q==1:
                        p(s.btr(n+1,2,breg(n+1))); rb[n+1]=p(s.btr(n+1,3,breg(n+1)))
                if n==32 and q>=2:
                    m=32+q; p(W(vm=s.tok_b[m]))
                    for k in range(4): rb[m]=p(s.btr(m,k,breg(m)))
                if q==2 and s.i_sent==4 and nxt<36:
                    al=s.aload(nxt); nxt+=1; post=[x for x in al if x.kind=="salu"]; al=[x for x in al if x.kind!="salu"]
                else: post=[]
                if q==3 and s.i_sent==4: p(al); al=[]
                if q==1: p(bl); bl=[]
                if q==0 and s.p2b and n>=o("p2b0",0):
                    bl=s.p2b.pop(0); post=[x for x in bl if x.kind!="vmem"]; bl=[x for x in bl if x.kind=="vmem"]
                if q==3:
                    if s.i_sent==6 and n==nC: p(pcC); p(s.stamp("flagC",1))
                    k=0
                    while s.i_sent==6 and nxt<36 and nxt<=n+14 and k<2 and (nxt<16 or n>=nC):
                        p(s.aload(nxt)); nxt+=1; k+=1
                    if n==24:
                        xr0=p(f"buffer_load_dwordx4 {v(vXR,4)}, v{vO}, {srd(SX)}, s{sOUT} offen")
                        xr1=p(f"buffer_load_dwordx4 {v(vXR+4,4)}, v{vO+1}, {srd(SX)}, s{sOUT} offen")
                ng=[g for g in groups if g[0]==n+1]
                if ng:
                    if q==0: pend=gchk(*ng[0])
                    k=(len(pend)+3-q)//(4-q) if q<3 else 0
                    if q<3: p(pend[:k]); pend=pend[k:]
                p(post)
        p(pend); p(W(lg=0))
        def wr(q): return [I(f"ds_write_b128 v{vEW+i}, {v(ACC+16*q+4*i,4)} offset:{(q&1)*32768+(q>>1)*128}") for i in range(4)]
        un=[I(f"v_lshlrev_b32 v{80+2*k}, 16, v{vXR+k}") for k in range(8)]+[I(f"v_and_b32 v{81+2*k}, 0xffff0000, v{vXR+k}") for k in range(8)]
        for q in range(4):
            nbk,mb=q>>1,q&1; D=ACC+16*q
            for n in range(33,36):
                p(f"v_mfma_f32_32x32x16_bf16 {v(D,16)}, {a(breg(n)+nbk*4,4)}, {s.areg(n,mb)}, {v(D,16)}")
                if q>=2 and n<35: p(wr(q-2)[2*(n-33):2*(n-33)+2])
                if q==0 and n==33: p(W(vm=xr1))
                if q<2: p(un[:3]); un=un[3:]
        p(s.stamp("p2_mfma_done"))
        p(un); p(wr(2)); p(wr(3))
        p(W(lg=0)); p("s_barrier")
        rr=[]
        for w in range(4):
            for c in range(4): rr.append(p(f"ds_read_b128 {v(16+16*w+4*c,4)}, v{vER+(c&1)} offset:{w*2048+(c>>1)*32768}"))
        p(W(lg=rr[7]))
        for k in range(8): p(f"v_pk_add_f32 {v(16+2*k,2)}, {v(16+2*k,2)}, {v(32+2*k,2)}")
        for k in range(8): p(f"v_pk_add_f32 {v(16+2*k,2)}, {v(16+2*k,2)}, {v(80+2*k,2)}")
        p(W(lg=rr[15]))
        for k in range(8): p(f"v_pk_add_f32 {v(48+2*k,2)}, {v(48+2*k,2)}, {v(64+2*k,2)}")
        of=o("outflag","sc1")
        for h in range(2):
            for k in range(4*h,4*h+4): p(f"v_pk_add_f32 {v(16+2*k,2)}, {v(16+2*k,2)}, {v(48+2*k,2)}")
            for k in range(4*h,4*h+4): p(f"v_cvt_pk_bf16_f32 v{96+k}, v{16+2*k}, v{17+2*k}")
            p(f"buffer_store_dwordx4 {v(96+4*h,4)}, v{vO+h}, {srd(SOUT)}, s{sOUT} offen {of}")
        p("L_fin:")
        if s.stamps:
            p(W(vm=0)); p(s.stamp("end"))
            p(f"s_lshl_b32 s{sT}, s{sMI}, 4\ns_add_u32 s{sT}, s{sT}, s{sJ}\ns_lshl_b32 s{sT}, s{sT}, 2\ns_add_u32 s{sT}, s{sT}, s{sW}\ns_lshl_b32 s{sT}, s{sT}, 8\ns_add_u32 s{sT}, s{sT}, {WS_ST}")
            p(f"v_lshrrev_b32 v{vL4}, 2, v{vL16}")
            p(f"buffer_store_dword v0, v{vL4}, {srd(SWS)}, s{sT} offen")
            if s.o("dbgwg",None) is not None:
                p(f"s_memrealtime s[{sSTMP}:{sSTMP+1}]\ns_waitcnt lgkmcnt(0)\nv_readlane_b32 s{sSPIN}, v0, 63\ns_nop 3\ns_sub_u32 s{sSTMP}, s{sSTMP}, s{sSPIN}\nv_readlane_b32 s{sSPIN}, v0, 0\ns_nop 3\nv_subrev_u32 v0, s{sSPIN}, v0\nv_writelane_b32 v0, s{sSTMP}, 0")
                p(f"s_cmp_lg_u32 s{sT}, {WS_ST+s.o('dbgwg',0)*256}\ns_cbranch_scc1 L_end\ns_mov_b64 exec, 0xffff")
                if s.o("warm",1): p(f"s_mov_b32 s{SD}, s{sP}\ns_mov_b32 s{SD+1}, s{sHc}\ns_mov_b32 s{SD+2}, 256")
                p(f"buffer_store_dword v0, v{vL4}, {srd(SD)}, 0 offen")
        if s.o("fixspan",0):
            p(W(vm=0)); p(f"v_readfirstlane_b32 s{sT}, v0\nL_fix:\ns_memrealtime s[{sSTMP}:{sSTMP+1}]\ns_waitcnt lgkmcnt(0)\ns_sub_u32 s{sSTMP}, s{sSTMP}, s{sT}\ns_cmp_lt_u32 s{sSTMP}, {s.opt['fixspan']}\ns_cbranch_scc1 L_fix")
        p("L_end:"); p("s_endpgm")
    def build(s):
        A,eA=s.one()
        g=Gen(stamps=s.stamps, ty=1, **s.opt); g.stnames=s.stnames; B,eB=g.one()
        ia=[i for i,x in enumerate(A) if x.text=="; SPLIT"][0]; ib=[i for i,x in enumerate(B) if x.text=="; SPLIT"][0]
        assert [x.text for x in A[:ia]]==[x.text for x in B[:ib]], "prefix differs"
        import re
        e=[i for i,x in enumerate(B) if x.op=="s_endpgm"][0]
        suf=B[ib+1:e+1]; defd={x.op[:-1] for x in suf if x.kind=="label"}
        blk=[];
        for x in B[e+1:]:
            if x.kind=="label" and re.fullmatch(r"L_spin\d+:",x.op): blk.append([])
            if x.op!="L_codeend:": blk[-1].append(x)
        for b in blk:
            if "L_ok"+b[0].op[6:-1] in defd: suf+=b; defd|={x.op[:-1] for x in b if x.kind=="label"}
        ren=lambda t: re.sub(r"\bL_\w+", lambda m: m.group(0)+"_B" if m.group(0) in defd else m.group(0), t)
        body=[x.text for x in A[:ia]]+[f"s_cmp_lg_u32 s{sTY}, 0","s_cbranch_scc1 L_typeB"]+[x.text for x in A[ia+1:-1]]+[".p2align 6","L_typeB:"]+[ren(x.text) for x in suf]+["L_codeend:"]
        s.ninstr=len(body); s.pads+=g.pads
        return s.wrap("\n".join(body)+"\n"), eA+eB
    def one(s):
        s.prologue(); s.phase1(); s.phase2()
        s.p.add(s.ool); s.p("L_codeend:")
        for pat in s.o("drop",[]):
            for x in s.p.L:
                if pat in x.text: x.text="; dropped"; x.kind="dir"; x.R=[]; x.W=[]; x.op=""; x.lds=False
        import re
        for a_,b_ in s.o("subst",[]):
            for x in s.p.L:
                if x.kind in("vmem","valu"): x.text=re.sub(a_,b_,x.text)
        for x in s.p.L:
            if x.waitfor and x.tag in s.o("dropw",[]): x.waitfor=(None,0 if x.waitfor[1]==0 else None); x.text="s_nop 0"
            if x.waitfor==(None,None): x.waitfor=None; x.kind="nop"; x.cost=1
        s.p.resolve()
        if s.o("nocomp",0):
            fl=("v_mul_f32","v_fma_f32","v_add_f32","v_min_f32","v_max_f32","v_cvt_pk","v_pk_","v_accvgpr","v_max3","v_max_u32","v_permlane")
            keep=[]
            for i,x in enumerate(s.p.L):
                if x.kind in("mfma","ds","dot","trans") or x.op.startswith(fl): continue
                if x.op=="s_cbranch_vccnz" and (s.p.L[i-1].op.startswith(("v_cmp_u","v_cmp_eq"))): continue
                keep.append(x)
            s.p.L=keep
        if s.o("nomem",0):
            s.p.L=[x for x in s.p.L if not ((x.kind=="vmem" and "v0, v" not in x.text) or x.op=="s_cbranch_vccnz")]
        s.p.check(fix=True); s.pads=s.p.pads
        errs=s.p.check()
        return s.p.L, errs
    def wrap(s, body):
        hdr=f"""; Fused LayerNorm + linear attention + GEGLU FFN + residual, one persistent launch (generated by dev/gen.py)
; @launch grid=(256,1,1) block=(256,1,1) lds={LDS}
.amdgcn_target "amdgcn-amd-amdhsa--gfx950"
.text
.globl {KN}
.p2align 8
.type {KN},@function
{KN}:
"""
        ftr=f""".section .rodata,"a"
.p2align 6
.amdhsa_kernel {KN}
  .amdhsa_next_free_vgpr 512
  .amdhsa_next_free_sgpr 102
  .amdhsa_accum_offset 256
  .amdhsa_group_segment_fixed_size 0
  .amdhsa_kernarg_size 80
  .amdhsa_user_sgpr_count 2
  .amdhsa_user_sgpr_kernarg_segment_ptr 1
  .amdhsa_system_sgpr_workgroup_id_x 1
.end_amdhsa_kernel
"""
        return hdr+body+ftr
if __name__=="__main__":
    import argparse
    ap=argparse.ArgumentParser(); ap.add_argument("-o",default="k.s"); ap.add_argument("--stamps",action="store_true"); ap.add_argument("-v",action="store_true"); ap.add_argument("--opt",default="{}")
    ar=ap.parse_args()
    g=Gen(stamps=ar.stamps, **eval(ar.opt)); txt,errs=g.build()
    for e in errs: print("ERR",e)
    if ar.v:
        for x in g.pads: print("pad",x)
    open(ar.o,"w").write(txt)
    print("instrs",g.ninstr,"errors",len(errs))
    from build import build
    build(ar.o)
```

```python
import sys, struct
from emit import Prog, I, W, Ins
KN = "parallel_sum__linear_attn_block__geglu_ffn__prompt_kernel"
def fb(x): return "0x%08x" % struct.unpack("<I", struct.pack("<f", x))[0]
SLOT=28672; KVX=143360; STAT=159744; LDS=163840
WS_KVP=0x900000; WS_KF=0xA00000; WS_FH=0xA10000; WS_FK=0xA14000; WS_ST=0xB00000; WS_SZ=0xC00000
LOG2E=1.4426950408889634
K0C=-2*0.7978845608028654*LOG2E; K1C=K0C*0.044715
sHc,sKF,sKR,sOUT=0,1,2,3
sA=4; sKP,sKFst=6,7
sW,sT=10,11
sBA,sBL,sBH,sBO=12,14,20,22
SX,SW0,SW1,SW4,SWS,SD=24,28,32,36,40,44
SWD,SWO,SOUT=SW0,SW1,SW4
C26,C35=48,55
CBQ,CB0,CB3,CB4=62,66,68,70
sWB7,sWB2=72,73; sH=74; sV2,sNB,sWG,sMI,sJ,sTY,sMB=77,78,79,80,81,82,83
sFHst,sFHld,sFKst,sFKld=84,85,86,87
sXM,sXC,sXR,sXT=84,85,86,87
MONE,MHI=88,90; sT2=92; sOLO,sOHI,sONES=93,94,95; sSTMP=96; sSPIN=98; sC,sP,sT3=99,100,101; sHK=sSPIN
def srd(n): return f"s[{n}:{n+3}]"
vL16,vWc,vWq,vW3,vW4,vW0=1,2,3,4,5,6
vB,vB2=6,7
vTR=8; vK0,vK1,vV,vS,vC2=11,12,13,14,15
X=16; ACC=128
vZ,vONE,vPOLL,vL4,vPA31=224,225,226,228,229
vPA7,vTCH=4,231
vTQ=232; vBT=[236,237,232,233,226,228]; vKFs,vKR=238,239
vSTR,vKXW,vKXR,vKP=240,241,242,243
vT=244; vP=248
aU=32; aB=96
vQ=234
vU=240
def v(a,n=1): return f"v{a}" if n==1 else f"v[{a}:{a+n-1}]"
def a(x,n=1): return f"a{x}" if n==1 else f"a[{x}:{x+n-1}]"
def lines(t): return [I(l.strip()) for l in t.strip().split("\n") if l.strip()]
def kmap(n):
    if n<16:
        st,r=n//8,n%8; pp,q=r//4,r%4
        return pp,(2*st+q if q<2 else 8+2*st+q-2)
    return ((n-16)%4)//2, [12,4,14,6,16][(n-16)//4]+n%2
BARS=[24,52,80,108,136,164,192,220,248,276]
ENT=[(4*e)*2048 for e in range(17)]+[KVX,KVX+8192]
ENT_FREE=[24]*3+[52]*4+[248]*3+[276]*4+[220]*3+[136,136]

class Gen:
    def __init__(s, stamps=False, ty=0, **opt):
        s.ty=ty; s.vBT=list(vBT)
        if ty==0: s.vBT[2:4]=[vTR,vTR+1]
        s.p=Prog(); s.ool=[]; s.stamps=stamps; s.stnames=[]; s.opt=opt; s.lbl=0
    def o(s,k,d): return s.opt.get(k,d)
    def stamp(s, name="", fine=False):
        if not s.stamps or (fine and not s.o("fine",0)): return []
        if name in s.stnames: k=s.stnames.index(name)
        else: k=len(s.stnames); s.stnames.append(name)
        return [I(f"{'s_memrealtime' if s.o('rt',0) else 's_memtime'} s[{sSTMP}:{sSTMP+1}]"), I("s_waitcnt lgkmcnt(0)"), I(f"v_writelane_b32 v0, s{sSTMP}, {k}")]
    def retry(s, test, reload, retest=None):
        n=s.lbl; s.lbl+=1
        chk=[I(t) for t in test]+[I(f"s_cbranch_vccnz L_spin{n}"), I(f"L_ok{n}:")]
        s.ool += [I(f"L_spin{n}:"), I(f"s_mov_b32 s{sSPIN}, 0x8000"), I(f"L_spinl{n}:"), I("s_waitcnt vmcnt(0)")]
        s.ool += [I(t,count=False) for t in reload]+[I("s_waitcnt vmcnt(0)")]+[I(t) for t in (retest or test)]
        s.ool += [I(f"s_cbranch_vccz L_ok{n}"), I(f"s_sub_u32 s{sSPIN}, s{sSPIN}, 1"), I(f"s_cmp_lg_u32 s{sSPIN}, 0"),
                  I(f"s_cbranch_scc1 L_spinl{n}"), I(f"s_branch L_ok{n}")]
        return chk
    def wdma(s, name):
        k,i0=name[0],int(name[1])
        vb,cb,sr,tb,slot={"k":(vW0,CB0+i0,SW0,C26,i0), "Q":(vWq,CBQ+i0,SW1,C35,[2,3,4,2][i0]),
                          "h":(vW3,CB3+i0,SW1,C35,3+i0), "f":(vW4,CB4+i0,SW4,C26,2+i0)}[k]
        L=[I(f"v_add_u32 v{vWc}, s{cb}, v{vb}")]
        for i in range(7):
            if i in (0,4): L.append(I(f"s_add_u32 m0, s{sWB7}, {slot*SLOT+(4096 if i==4 else 0)}"))
            L.append(I(f"buffer_load_dwordx4 v{vWc}, {srd(sr)}, s{tb+i} offen offset:{(i%4)*1024} lds"))
        s.tok_w[name]=L[-1]
        return L
    def witems(s, name, per):
        L=s.wdma(name); first=L[0]; D=[x for x in L if x.kind=="vmem"]; m0=[x for x in L if "m0" in x.W]; out=[]
        i=0
        while i<7:
            k=min(per,(4 if i<4 else 7)-i)
            out.append(([first] if i==0 else [])+[I(m0[i//4].text)]+D[i:i+k]); i+=k
        return out
    def bdma(s, n, e):
        pp,i=kmap(n)
        base,sr,k=(sBA+pp,SWD,i) if i<8 else (sBL+pp,SWD,i-8) if i<12 else (sBH+pp,SWD,i-12) if i<14 else (sBO+pp,SWO,None)
        off=k*14336 if k is not None else ((i-14)//2*28+(i-14)%2*16)*896
        L=[I(f"s_add_u32 m0, s{sWB2}, {ENT[e]}"), I(f"s_add_u32 s{sT}, s{base}, {off}"),
           I(f"buffer_load_dwordx4 v{vB}, {srd(sr)}, s{sT} offen lds"),
           I(f"buffer_load_dwordx4 v{vB2}, {srd(sr)}, s{sT} offen offset:1024 lds")]
        s.tok_b[n]=L[-1]; s.ent[n]=e
        return L
    def btr(s, n, q, dst):
        nbk,t=q>>1,q&1; ad=ENT[s.ent[n]]
        return I(f"ds_read_b64_tr_b16 {a(dst+nbk*4+2*t,2)}, v{s.vBT[2*(ad>>16)+nbk]} offset:{(ad&0xffff)+t*1024}")
    def prologue(s):
        p=s.p; s.tok_w={}; s.tok_b={}; s.ent={}
        if s.o("fixspan",0): p(f"s_memrealtime s[{sSTMP}:{sSTMP+1}]")
        if s.stamps: p(f"{'s_memrealtime' if s.o('rt',0) else 's_memtime'} s[{sSTMP}:{sSTMP+1}]")
        p(f"""
        s_cmp_ge_u32 s2, 256
        s_cbranch_scc1 L_end
        s_load_dwordx4 s[4:7], s[0:1], 0
        s_load_dwordx4 s[20:23], s[0:1], 64
        s_load_dwordx2 s[8:9], s[0:1], 16
        s_load_dwordx4 s[12:15], s[0:1], 32
        s_load_dwordx4 s[16:19], s[0:1], 48
        s_getpc_b64 s[{SD}:{SD+1}]
        L_pc:
        v_lshrrev_b32 v192, 6, v0
        v_and_b32 v193, 63, v0
        v_readfirstlane_b32 s{sW}, v192
        v_lshlrev_b32 v{vL16}, 4, v193
        s_and_b32 s{sT}, s2, 7
        s_lshr_b32 s{sT2}, s2, 3
        s_and_b32 s{SD+1}, s{SD+1}, 0xffff
        s_mov_b32 s{SD+2}, L_codeend-L_pc
        s_mov_b32 s{SD+3}, 0x20000
        s_lshl_b32 s3, s{sT2}, 11
        v_cmp_gt_u32 vcc, 8, v193
        v_lshlrev_b32 v194, 6, v193
        v_lshl_add_u32 v194, v192, 9, v194
        v_bfrev_b32 v{vZ}, 2
        v_cndmask_b32 v194, v{vZ}, v194, vcc
        v_cmp_gt_u32 vcc, 4, v193
        s_mov_b32 s{sWG}, s2
        buffer_load_dword a255, v194, {srd(SD)}, s3 offen
        v_cndmask_b32 v{vKFs}, v{vZ}, v{vL16}, vcc
        s_and_b32 s{sMI}, s{sT}, 1
        s_lshl_b32 s{sMI}, s{sMI}, 3
        s_and_b32 s3, s{sT2}, 7
        s_add_u32 s{sMI}, s{sMI}, s3
        s_lshr_b32 s{sJ}, s{sT}, 1
        s_lshl_b32 s{sJ}, s{sJ}, 2
        s_lshr_b32 s3, s{sT2}, 3
        s_add_u32 s{sJ}, s{sJ}, s3
        {["s_add_u32 s%d, s%d, s%d"%(sC,sMI,sJ),"s_mov_b32 s%d, s%d"%(sC,sMI),"s_mov_b32 s%d, 0"%sC,"s_lshl_b32 s%d, s%d, 1"%(sC,sMI)][s.o("rot",1)]}
        s_and_b32 s{sC}, s{sC}, 3
        s_mul_i32 s{sXC}, s{sC}, 7
        s_lshr_b32 s{sXC}, s{sXC}, 2
        v_lshrrev_b32 v222, 3, v193
        v_mul_u32_u24 v222, 896, v222
        v_lshrrev_b32 v196, 4, v193
        v_and_b32 v197, 7, v193
        v_xor_b32 v196, v196, v197
        v_lshl_add_u32 v222, v196, 4, v222
        v_xor_b32 v223, 64, v222
        s_lshl_b32 s{sH}, s{sMI}, 2
        s_add_u32 s{sH}, s{sH}, s{sW}
        s_mul_i32 s{sXR}, s{sH}, {32*896}
        s_add_u32 s{sXM}, s{sW}, 1
        s_mul_i32 s{sXM}, s{sXM}, {SLOT}
        s_mov_b32 s{SX+2}, {2048*896}
        s_mov_b32 s{SX+3}, 0x20000
        s_waitcnt lgkmcnt(0)
        s_mov_b32 s{SX}, s4
        s_and_b32 s{SX+1}, s5, 0xffff
        """)
        if s.stamps:
            s.stnames.append("start") if "start" not in s.stnames else None
            p(f"v_mov_b32 v0, 0\nv_writelane_b32 v0, s{sSTMP}, 0"); p(s.stamp("kernarg",1))
            p(f"s_memrealtime s[{sSTMP}:{sSTMP+1}]\ns_waitcnt lgkmcnt(0)\nv_writelane_b32 v0, s{sSTMP}, 63")
        if s.o("fixspan",0): p(f"v_mov_b32 v0, s{sSTMP}")
        p("s_cmp_lg_u32 s2, 0"); p("s_cbranch_scc1 L_noclr")
        p(f"""
        s_mov_b32 s{SWS}, s22
        s_and_b32 s{SWS+1}, s23, 0xffff
        s_mov_b32 s{SWS+2}, {WS_SZ}
        s_mov_b32 s{SWS+3}, 0x20000
        v_mov_b32 v200, 0
        v_mov_b32 v201, 0
        v_mov_b32 v202, 0
        v_mov_b32 v203, 0
        v_lshrrev_b32 v204, 1, v193
        v_and_b32 v205, 16, v{vL16}
        v_lshl_add_u32 v204, v204, 7, v205
        s_lshl_b32 s3, s{sW}, 12
        s_add_u32 s3, s3, {WS_FH}
        s_mov_b32 s4, {WS_FK}
        """)
        p(I(f"buffer_store_dwordx4 v[200:203], v204, {srd(SWS)}, s3 offen sc1", count=False))
        p(I(f"buffer_store_dwordx4 v[200:203], v{vL16}, {srd(SWS)}, s4 offen sc1", count=False))
        p("L_noclr:")
        if s.o("xtouch",1): p(f"""
        s_lshl_b32 s3, s{sMI}, 4
        s_add_u32 s3, s3, s{sJ}
        s_lshl_b32 s3, s3, 2
        s_add_u32 s3, s3, s{sW}
        s_mul_i32 s3, s3, 1792
        v_lshlrev_b32 v221, 7, v193
        s_mov_b64 exec, 0x3fff
        buffer_load_dword a255, v221, {srd(SX)}, s3 offen
        s_mov_b64 exec, -1
        """)
        tok_x=[]
        def xdma(P):
            L=[I(f"s_add_u32 m0, s{sXM}, {P*4096}"), I(f"s_lshl_b32 s{sXT}, s{sXC}, 7"), I(f"s_add_u32 s{sXT}, s{sXT}, s{sXR}")]
            for t in range(4):
                tk=I(f"buffer_load_dwordx4 v{222+(t&1)}, {srd(SX)}, s{sXT} offen offset:{t*1024} lds"); L.append(tk)
                if t<3: L.append(I(f"s_add_u32 s{sXT}, s{sXT}, 6144"))
            tok_x.append(tk)
            if P<6: L+=[I(f"s_add_u32 s{sXC}, s{sXC}, 1"), I(f"s_cmp_eq_u32 s{sXC}, 7"), I(f"s_cselect_b32 s{sXC}, 0, s{sXC}")]
            return L
        NX0=s.o("nx0",3)
        S=[]; P0S=[]
        def q(t, dst=None): (S if dst is None else dst).extend(lines(t))
        q(f"""
        v_lshrrev_b32 v197, 5, v193
        v_and_b32 v198, 31, v193
        v_bfe_u32 v199, v193, 1, 3
        v_xor_b32 v199, v199, v197
        v_lshlrev_b32 v199, 4, v199
        v_lshl_add_u32 v199, v198, 7, v199
        v_add_u32 v199, s{sXM}, v199
        s_mul_i32 s{sP}, s{sC}, 7
        s_and_b32 s{sP}, s{sP}, 3
        v_mov_b32 v160, 0x3f803f80
        v_mov_b32 v161, 0x3f803f80
        v_mov_b32 v162, 0x3f803f80
        v_mov_b32 v163, 0x3f803f80
        """)
        for m in range(4):
            q(f"""
            s_add_u32 s3, s{sP}, {m}
            s_and_b32 s{sT3}, s3, 3
            s_lshl_b32 s{sT3}, s{sT3}, 5
            v_xor_b32 v{204+m}, s{sT3}, v199
            s_lshr_b32 s3, s3, 2
            s_lshl_b32 s{sT3}, s3, 12
            v_add_u32 v{204+m}, s{sT3}, v{204+m}
            s_mul_i32 s{sT3}, s3, {7*4096}
            v_subrev_u32 v{212+m}, s{sT3}, v{204+m}
            """)
        nS0=len(S)
        q(f"""
        s_mul_i32 s{sMB}, s{sT2}, 37
        s_lshr_b32 s{sMB}, s{sMB}, 8
        s_mul_i32 s3, s{sMB}, 7
        s_sub_u32 s{sNB}, s{sT2}, s3
        s_cmp_lt_u32 s{sT2}, 28
        s_cselect_b32 s{sV2}, 1, 0
        s_and_b32 s3, s{sT}, 1
        s_lshl_b32 s3, s3, 4
        s_add_u32 s{sMB}, s{sMB}, s3
        s_lshr_b32 s{sT}, s{sT}, 1
        s_lshl_b32 s{sT}, s{sT}, 2
        s_add_u32 s{sMB}, s{sMB}, s{sT}
        s_mul_i32 s{sWB7}, s{sW}, 7168
        s_lshl_b32 s{sWB2}, s{sW}, 11
        s_and_b32 s{sTY}, s{sJ}, 1
        s_lshr_b32 s{sP}, s{sJ}, 1
        s_sub_u32 s{SW0}, s6, 3072
        s_subb_u32 s{SW0+1}, s7, 0
        s_and_b32 s{SW0+1}, s{SW0+1}, 0xffff
        s_mov_b32 s{SW0+2}, {448*2688+3072}
        s_mov_b32 s{SW0+3}, 0x20000
        s_and_b32 s5, s{sW}, 1
        s_lshr_b32 s4, s{sW}, 1
        s_cmp_eq_u32 s5, 0
        s_cselect_b32 s{SW1}, s12, s14
        s_cselect_b32 s{SW1+1}, s13, s15
        s_sub_u32 s{SW1}, s{SW1}, 3072
        s_subb_u32 s{SW1+1}, s{SW1+1}, 0
        s_and_b32 s{SW1+1}, s{SW1+1}, 0xffff
        s_mov_b32 s{SW1+2}, {448*3584+3072}
        s_mov_b32 s{SW1+3}, 0x20000
        s_mov_b32 s{SWS}, s22
        s_and_b32 s{SWS+1}, s23, 0xffff
        s_mov_b32 s{SWS+2}, {WS_SZ}
        s_mov_b32 s{SWS+3}, 0x20000
        s_mov_b32 s{SD}, s20
        s_and_b32 s{SD+1}, s21, 0xffff
        s_mov_b32 s{SD+2}, 256
        s_mov_b32 s{SD+3}, 0x20000
        """)
        for i in range(7):
            bias=3072-1024*(i%4)
            q(f"s_mov_b32 s{C26+i}, {i*16*2688+bias}"); q(f"s_mov_b32 s{C35+i}, {i*16*3584+bias}")
        for i in range(4): q(f"s_add_u32 s3, s{sC}, {i}\ns_and_b32 s3, s3, 3\ns_mul_i32 s{CBQ+i}, s3, {112*3584}")
        for i in range(2): q(f"s_add_u32 s3, s{sC}, s4\ns_add_u32 s3, s3, {2*i}\ns_and_b32 s3, s3, 3\ns_mul_i32 s{CB0+i}, s3, {112*2688}\ns_mul_i32 s{CB3+i}, s3, {112*3584}")
        q(f"""
        s_and_b32 s14, s{sP}, 1
        s_mul_i32 s15, s{sP}, 448
        s_mul_i32 s6, s14, 192
        s_sub_u32 s13, 256, s6
        s_lshl_b32 s7, s6, 1
        s_sub_u32 s7, 384, s7
        s_mul_i32 s21, s{sP}, 112
        s_cmp_eq_u32 s{sTY}, 0
        s_cselect_b32 s6, s6, s13
        s_cselect_b32 s{SW4}, s{SW1}, s{SW0}
        s_cselect_b32 s{SW4+1}, s{SW1+1}, s{SW0+1}
        s_cselect_b32 s{SW4+2}, s{SW1+2}, s{SW0+2}
        s_cselect_b64 s[{CB3}:{CB3+1}], s[{CBQ}:{CBQ+1}], s[{CB3}:{CB3+1}]
        s_cselect_b64 s[{CB4}:{CB4+1}], s[{CBQ+2}:{CBQ+3}], s[{CB0}:{CB0+1}]
        s_cselect_b64 vcc, -1, 0
        s_mov_b32 s{SW4+3}, 0x20000
        s_add_u32 s6, s6, s15
        s_add_u32 s7, s7, s15
        s_lshr_b32 s3, s{sJ}, 3
        s_and_b32 s3, s3, {s.o("hswap",1)}
        s_xor_b32 s{sHK}, s{sJ}, s3
        s_mul_i32 s13, s5, 896
        s_mul_i32 s3, s{sHK}, 56
        s_add_u32 s13, s13, s3
        s_add_u32 s13, s13, 896
        v_lshrrev_b32 v197, 2, v193
        v_and_b32 v198, 48, v{vL16}
        v_mul_u32_u24 v{vW0}, 2688, v197
        v_add3_u32 v{vW0}, v{vW0}, v198, s13
        v_mul_u32_u24 v{vW3}, 3584, v197
        v_add3_u32 v{vW3}, v{vW3}, v198, s7
        v_lshrrev_b32 v197, 3, v193
        v_bfe_u32 v198, v193, 4, 1
        v_lshlrev_b32 v198, 6, v198
        v_and_b32 v199, 0x70, v{vL16}
        v_xor_b32 v198, v198, v199
        v_mul_u32_u24 v199, 896, v197
        v_add_u32 v{vB2}, v199, v198
        s_lshl_b32 s5, s5, 3
        v_add_u32 v199, s5, v197
        v_mul_u32_u24 v199, 2688, v199
        v_add3_u32 v{vW4}, v199, v198, s21
        s_lshl_b32 s4, s4, 3
        v_add_u32 v197, s4, v197
        v_mul_u32_u24 v197, 3584, v197
        v_add3_u32 v{vWq}, v197, v198, s6
        v_add_u32 v197, 128, v{vWq}
        v_cndmask_b32 v{vW3}, v{vW3}, v197, vcc
        v_cndmask_b32 v{vW4}, v{vW4}, v197, vcc
        s_lshl_b32 s3, s{sH}, 3
        s_add_u32 s3, s3, s{sP}
        s_mul_i32 s{sH}, s3, 18432
        s_lshl_b32 s3, s{sTY}, 13
        s_add_u32 s{sH}, s{sH}, s3
        s_add_u32 s{sH+1}, s{sH}, 4096
        s_add_u32 s{sH+2}, s{sH}, 8192
        s_lshl_b32 s{sKF}, s{sP}, 12
        s_add_u32 s{sKF}, s{sKF}, {WS_KF}
        s_cmp_eq_u32 s{sTY}, 0
        s_cselect_b32 s{sHc}, 0x40000000, s{sH+2}
        s_cselect_b32 s{sKF}, 0x40000000, s{sKF}
        s_lshl_b32 s3, s{sHK}, 16
        s_add_u32 s3, s3, {WS_KVP}
        s_lshl_b32 s4, s{sMI}, 12
        s_add_u32 s{sKR}, s3, s4
        s_lshl_b32 s4, s{sW}, 14
        s_add_u32 s{sKP}, s3, s4
        s_lshl_b32 s4, s{sMI}, 8
        s_add_u32 s{sKP}, s{sKP}, s4
        s_lshl_b32 s{sKFst}, s{sHK}, 11
        s_add_u32 s{sKFst}, s{sKFst}, {WS_KF}
        s_lshr_b32 s3, s{sMI}, 3
        s_lshl_b32 s3, s3, 10
        s_add_u32 s{sKFst}, s{sKFst}, s3
        s_bfe_u32 s3, s{sMI}, 0x10002
        s_lshl_b32 s3, s3, 3
        s_add_u32 s{sKFst}, s{sKFst}, s3
        s_and_b32 s3, s{sMI}, 3
        s_lshl_b32 s3, s3, 2
        s_add_u32 s3, s3, s{sW}
        s_lshl_b32 s3, s3, 6
        s_add_u32 s{sKFst}, s{sKFst}, s3
        s_mov_b32 s{sOLO}, 0x3f80
        s_mov_b32 s{sOHI}, 0x3f800000
        s_mov_b32 s{sONES}, 0x3f803f80
        s_mov_b32 s{MONE}, 0x10000000
        s_mov_b32 s{MONE+1}, 0x10000000
        s_mov_b32 s{MHI}, 0
        s_mov_b32 s{MHI+1}, -1
        """)
        q(f"s_add_u32 s{sT}, s{sMB}, s{sNB}",P0S)
        for pp in range(2):
            q(f"""
            s_add_u32 s{sC}, s{sT}, {pp}
            s_and_b32 s{sC}, s{sC}, 1
            s_mul_i32 s{sT3}, s{sC}, {96*896}
            s_lshl_b32 s{sT2}, s{sW}, 1
            s_add_u32 s{sC}, s{sC}, s{sT2}
            s_mul_i32 s{sT2}, s{sC}, {224*896}
            s_add_u32 s{sBA+pp}, s{sT2}, s{sT3}
            s_sub_u32 s{sBL+pp}, s{sT2}, s{sT3}
            s_sub_u32 s{sBH+pp}, s{sBL+pp}, s{sT3}
            s_add_u32 s{sBL+pp}, s{sBL+pp}, {128*896}
            s_add_u32 s{sBH+pp}, s{sBH+pp}, {192*896}
            s_mul_i32 s{sBO+pp}, s{sC}, {56*896}
            s_lshl_b32 s{sA+pp}, s{sMB}, 4
            s_add_u32 s{sA+pp}, s{sA+pp}, s{sC}
            s_mul_i32 s{sA+pp}, s{sA+pp}, 18432
            """,P0S)
        q(f"""
        s_mul_i32 s{sOUT}, s{sMB}, {64*896}
        s_lshl_b32 s{sT2}, s{sNB}, 7
        s_add_u32 s{sOUT}, s{sOUT}, s{sT2}
        v_add_u32 v{vB2}, s{sT2}, v{vB2}
        v_lshrrev_b32 v197, 5, v193
        v_bfe_u32 v198, v193, 2, 2
        v_bfe_u32 v199, v193, 4, 1
        v_and_b32 v200, 3, v193
        v_lshlrev_b32 v200, 3, v200
        v_lshl_add_u32 v200, v199, 5, v200
        v_lshl_add_u32 v201, v197, 3, v198
        v_lshl_add_u32 v{vTR}, v201, 6, v200
        v_add_u32 v{vTR+1}, {2*SLOT}, v{vTR}
        v_add_u32 v{vTR+2}, {4*SLOT}, v{vTR}
        v_bfe_u32 v199, v193, 3, 1
        v_lshl_add_u32 v200, v199, 6, v200
        v_lshl_add_u32 v200, v198, 7, v200
        v_mul_u32_u24 v201, 14336, v197
        v_add_u32 v201, v200, v201
        v_add_u32 v{vTQ}, {2*SLOT}, v201
        v_add_u32 v{vTQ+1}, {4*SLOT}, v201
        v_xor_b32 v{vTQ+2}, 64, v{vTQ}
        v_xor_b32 v{vTQ+3}, 64, v{vTQ+1}
        v_lshl_add_u32 v200, v197, 9, v200
        v_add_u32 v{vBT[0]}, s{sWB2}, v200
        v_xor_b32 v{vBT[1]}, 64, v{vBT[0]}
        v_add_u32 v{vBT[4]}, 0x20000, v{vBT[0]}
        v_add_u32 v{vBT[5]}, 0x20000, v{vBT[1]}
        v_and_b32 v198, 31, v193
        s_lshl_b32 s{sT2}, s{sW}, 7
        s_add_u32 s{sT2}, s{sT2}, {STAT}
        v_lshl_add_u32 v{vSTR}, v197, 4, s{sT2}
        v_lshl_add_u32 v230, v198, 2, s{sT2}
        s_lshl_b32 s{sT2}, s{sW}, 12
        s_add_u32 s{sT2}, s{sT2}, {KVX}
        v_add_u32 v{vKXW}, s{sT2}, v{vL16}
        s_lshl_b32 s{sT2}, s{sW}, 10
        s_add_u32 s{sT2}, s{sT2}, {KVX}
        v_add_u32 v{vKXR}, s{sT2}, v{vL16}
        v_lshrrev_b32 v200, 4, v193
        v_and_b32 v201, 0xf0, v{vL16}
        v_lshl_add_u32 v{vKP}, v200, 12, v201
        v_lshrrev_b32 v200, 2, v193
        v_and_b32 v201, 48, v{vL16}
        v_lshl_add_u32 v200, v200, 8, v201
        s_lshl_b32 s{sT2}, s{sW}, 6
        v_add_u32 v{vKR}, s{sT2}, v200
        v_cmp_eq_u32 vcc, 0, v193
        v_mov_b32 v{vONE}, 1
        v_cndmask_b32 v{vZ}, v{vZ}, 0, vcc
        v_lshlrev_b32 v{vPA31}, 2, v198
        v_mov_b32 v216, -1
        v_mov_b32 v217, -1
        v_mov_b32 v218, -1
        v_mov_b32 v219, -1
        """)
        clr=[I(f"buffer_store_dwordx4 v[216:219], v{vKP}, {srd(SWS)}, s{sKP} offen sc1"),
             I(f"buffer_store_dwordx2 v[216:217], v{vKFs}, {srd(SWS)}, s{sKFst} offen sc1")]
        s.i_sent=4 if s.o("sentC",1) else 6
        hc=[]
        s.fl=s.o("flagD",0)
        for i in range(s.i_sent,10 if not s.fl else 0):
            hc.append(f"buffer_store_dwordx4 {v(vP,4)}, v{vL16}, {srd(SWS)}, s{sH+i//4 if i<8 else sHc} offen offset:{(i%4)*1024} sc1")
        s.hclr=[I(f"v_mov_b32 v{vP+k}, -1") for k in range(4)]+[I(t) for t in hc]
        def groups(L):
            rd=("s_cselect","s_subb","s_addc","s_cbranch"); out=[[]]
            for k,x in enumerate(L):
                nx=[y for y in L[k:] if y.kind=="salu" and not y.op.startswith("s_mov")]
                if out[-1] and not (nx and nx[0].op.startswith(rd)): out.append([])
                out[-1].append(x)
            return out
        if s.o("dot",1): S=[x for x in S if not x.text.startswith("v_mov_b32 v16")]
        SG=groups(S); nev=28+14; ev=[0]
        def fill(front=False):
            ev[0]+=1; tgt=len(S)*ev[0]/s.o("sfill",16); done=len(S)-sum(len(g) for g in SG)
            while SG and done<tgt: g=SG.pop(0); p(g); done+=len(g)
        def xitems(P):
            L=xdma(P); out=[[]]
            for x in L:
                out[-1].append(x)
                if x.kind=="vmem": out.append([])
            out[-2]+=out[-1]; return out[:-1]
        XI=[xitems(P) for P in range(7)]
        w1=lines(f"""
        s_lshr_b32 s{sT3}, s{sWG}, 3
        s_lshl_b32 s{sT3}, s{sT3}, 1
        s_lshr_b32 s{sXT}, s{sW}, 1
        s_add_u32 s{sT3}, s{sT3}, s{sXT}
        s_and_b32 s{sXT}, s{sWG}, 1
        s_lshl_b32 s{sXT}, s{sXT}, 6
        s_add_u32 s{sT3}, s{sT3}, s{sXT}
        s_mul_i32 s{sT3}, s{sT3}, 7
        s_lshr_b32 s{sT3}, s{sT3}, 1
        s_mul_i32 s{sT3}, s{sT3}, 3584
        s_lshr_b32 s{sXT}, s{sJ}, 2
        s_mul_i32 s{sXT}, s{sXT}, 896
        s_add_u32 s{sT3}, s{sT3}, s{sXT}
        s_add_u32 s{sT3}, s{sT3}, 3072
        s_lshl_b32 s{sXT}, s{sWG}, 2
        s_add_u32 s{sXT}, s{sXT}, s{sW}
        s_mul_i32 s{sXT}, s{sXT}, 1176
        s_add_u32 s{sXT}, s{sXT}, 3072
        v_mul_u32_u24 v231, 37, v193
        v_lshrrev_b32 v231, 8, v231
        v_mul_u32_u24 v231, {3584-896}, v231
        v_lshl_add_u32 v231, v193, 7, v231
        v_lshlrev_b32 v221, 7, v193
        s_mov_b64 exec, 0x3ff
        buffer_load_dword a255, v221, {srd(SW0)}, s{sXT} offen
        s_mov_b64 exec, 0xfffffff
        buffer_load_dword a255, v231, {srd(SW1)}, s{sT3} offen
        s_mov_b64 exec, -1
        """)
        def xissue(P):
            for it in XI[P]: p(it); fill()
            if P==s.o("wpos",6):
                while not any(x.text.startswith(f"s_mov_b32 s{SW1+3},") for x in p.L): p(SG.pop(0))
                p(w1)
        for P in range(NX0): xissue(P)
        p(s.stamp("x_first_issued",1))
        k0=s.witems("k0",1); per=-(-len(k0)//(NX0+1)); prev=None
        dot=s.o("dot",1)
        def stat(G,items):
            for qq in range(4):
                xr=v(X+(G*4+qq)*4,4); z=(G==0 and qq==0)
                if dot:
                    for r in range(4):
                        x=X+(G*4+qq)*4+r; zz=z and r<2
                        p(f"v_dot2_f32_bf16 v{208+(r&1)}, v{x}, s{sONES}, {0 if zz else 'v%d'%(208+(r&1))}")
                        p(f"v_dot2_f32_bf16 v{210+(r&1)}, v{x}, v{x}, {0 if zz else 'v%d'%(210+(r&1))}")
                    if items: p(items.pop(0))
                else:
                    p(f"v_mfma_f32_32x32x16_bf16 v[128:143], v[160:163], {xr}, {'0' if z else 'v[128:143]'}")
                    if items: p(items.pop(0))
                    p(f"v_mfma_f32_32x32x16_bf16 v[144:159], {xr}, {xr}, {'0' if z else 'v[144:159]'}")
                if qq&1: fill()
        for G in range(7):
            if G+NX0<7: xissue(G+NX0); it=[]
            else:
                while SG: p(SG.pop(0))
                it=k0[:per]; k0=k0[per:]
            p(W(vm=tok_x[min(G+1,6)]))
            p(s.stamp(f"x{G}",1))
            for qq in range(4):
                tk=p(f"ds_read_b128 {v(X+(G*4+qq)*4,4)}, v{(204 if G<6 else 212)+qq} offset:{G*4096}")
            if prev is not None:
                p(W(lg=prev)); stat(G-1,it)
            prev=tk
        s.tok_clr=clr[-1]
        p(W(lg=0))
        p(s.stamp("x_in_regs"))
        p("s_barrier")
        p(f"s_or_b32 s{sT}, s{sWG}, s{sW}\ns_cmp_lg_u32 s{sT}, 0\ns_cbranch_scc1 L_nogo")
        p(I(f"buffer_store_dword v{vONE}, v{vZ}, {srd(SD)}, 0 offen offset:128 sc1", count=False))
        p("L_nogo:")
        stat(6,k0); p(k0); p(clr)
        q(f"""
        s_lshl_b32 s{sT}, s{sMI}, 2
        s_add_u32 s{sT}, s{sT}, s{sW}
        s_lshr_b32 s{sT2}, s{sT}, 1
        s_lshl_b32 s{sT2}, s{sT2}, 2
        s_lshr_b32 s{sT3}, s{sJ}, 2
        s_add_u32 s{sT2}, s{sT2}, s{sT3}
        s_lshl_b32 s{sFHst}, s{sT2}, 7
        s_and_b32 s{sT}, s{sT}, 1
        s_lshl_b32 s{sT}, s{sT}, 2
        s_and_b32 s{sT3}, s{sJ}, 3
        s_add_u32 s{sT}, s{sT}, s{sT3}
        s_lshl_b32 s{sT}, s{sT}, 2
        s_add_u32 s{sFHst}, s{sFHst}, s{sT}
        s_add_u32 s{sFHst}, s{sFHst}, {WS_FH}
        s_lshl_b32 s{sFHld}, s{sMB}, 2
        s_add_u32 s{sFHld}, s{sFHld}, s{sW}
        s_lshl_b32 s{sFHld}, s{sFHld}, 7
        s_add_u32 s{sFHld}, s{sFHld}, {WS_FH}
        s_cmp_eq_u32 s{sV2}, 0
        s_cselect_b32 s{sFHld}, {WS_FH}, s{sFHld}
        s_lshl_b32 s{sFKld}, s{sP}, 7
        s_add_u32 s{sFKld}, s{sFKld}, {WS_FK}
        s_lshl_b32 s{sT}, s{sTY}, 4
        s_add_u32 s{sT}, s{sT}, s{sMI}
        s_lshl_b32 s{sT}, s{sT}, 2
        s_add_u32 s{sFKst}, s{sFKld}, s{sT}
        """,P0S)
        s.P0S=groups(P0S)
        if dot: p("""
        v_add_f32 v208, v208, v209
        v_add_f32 v210, v210, v211
        v_mov_b32 v209, v208
        v_mov_b32 v211, v210
        v_permlane32_swap_b32 v208, v209
        v_permlane32_swap_b32 v210, v211
        v_add_f32 v208, v208, v209
        v_add_f32 v210, v210, v211
        """)
        else:
            for msk,st in ((0xaaaaaaaa,1),(0xcccccccc,2),(0xff00ff00,4),(0xffff0000,8)):
                p(f"s_mov_b32 vcc_lo, {hex(msk)}\ns_mov_b32 vcc_hi, {hex(msk)}")
                for k in range(0,16,2*st): p(f"v_cndmask_b32 v{144+k}, v{144+k}, v{144+k+st}, vcc")
            p("""
            s_mov_b32 vcc_lo, 0xf0f0f0f0
            s_mov_b32 vcc_hi, 0xf0f0f0f0
            v_mov_b32 v145, v144
            v_mov_b32 v208, v128
            v_permlane32_swap_b32 v144, v145
            v_cndmask_b32 v210, v144, v145, vcc
            """)
        p(f"""
        v_mul_f32 v208, {fb(1/448)}, v208
        v_mul_f32 v210, {fb(1/448)}, v210
        v_fma_f32 v210, -v208, v208, v210
        v_max_f32 v210, 0, v210
        v_add_f32 v{vV}, {fb(1e-5)}, v210
        v_rsq_f32 v{vS}, v{vV}
        v_mul_f32 v{vK0}, {fb(K0C)}, v{vS}
        v_mul_f32 v{vC2}, {fb(LOG2E)}, v{vS}
        v_mul_f32 v209, v{vS}, v{vS}
        v_mul_f32 v209, v209, v{vS}
        v_mul_f32 v{vK1}, {fb(K1C)}, v209
        ds_write_b32 v230, v{vS}
        """)
        dm=[]
        for nm in s.o("cdma",["k1"]): dm+=s.wdma(nm)
        nd=sum(1 for x in dm if x.kind=="vmem"); di=0; iss=0
        for g in range(57):
            x0=X+g*2; bk=212+4*(g&1); pb=212+4*((g+1)&1)
            if g<56:
                p(f"v_dot2_f32_bf16 v{bk}, v{x0}, s{sOLO}, v208 neg_lo:[0,0,1]")
                p(f"v_dot2_f32_bf16 v{bk+1}, v{x0}, s{sOHI}, v208 neg_lo:[0,0,1]")
                p(f"v_dot2_f32_bf16 v{bk+2}, v{x0+1}, s{sOLO}, v208 neg_lo:[0,0,1]")
                p(f"v_dot2_f32_bf16 v{bk+3}, v{x0+1}, s{sOHI}, v208 neg_lo:[0,0,1]")
            if g>0:
                p(f"v_cvt_pk_bf16_f32 v{x0-2}, v{pb}, v{pb+1}"); p(f"v_cvt_pk_bf16_f32 v{x0-1}, v{pb+2}, v{pb+3}")
            while di<len(dm) and iss<nd*(g+1)/57:
                p(dm[di]); iss+=dm[di].kind=="vmem"; di+=1
        assert di==len(dm)
        p(f"v_mov_b32 v{vB}, v{vB2}\nv_add_u32 v{vB2}, 6144, v{vB2}")
        s.selC=lines(f"s_cmp_eq_u32 s{sTY}, 0\n"+"\n".join(f"s_cselect_b32 s{C26+i}, s{C35+i}, s{C26+i}" for i in range(7)))
        p(s.stamp("centered"))
    def hstore(s, P, i):
        x=I(f"buffer_store_dwordx4 {v(P,4)}, v{vL16}, {srd(SWS)}, s{sH+i//4} offen offset:{(i%4)*1024} sc1"); s.tok_h[i]=x; return x
    def flagst(s, val, tok):
        return [W(vm=tok,tag="wFl"), I(f"v_mov_b32 v{vONE}, {val}"), I(f"buffer_store_dword v{vONE}, v{vZ}, {srd(SWS)}, s{sFHst} offen sc1")]
    def poll(s, val):
        t=f"buffer_load_dword v{vPOLL+1}, v{vPA7}, {srd(SWS)}, s{sFHld} offen sc1"
        ld=I(t); return ld, [W(vm=ld)]+s.retry([f"v_cmp_gt_u32 vcc, {val}, v{vPOLL+1}"], [t])
    def gelu(s, G, U, n, i0, acc=False, pk=False):
        L=[]
        for f in range(n//8):
            P=vP+4*(f&1)
            for h in range(2):
                r=[f*8+h*4+k for k in range(4)]
                if pk:
                    if acc: L+=[I(f"v_accvgpr_read_b32 v{vU+k}, a{U+r[k]}") for k in range(4)]
                    g2=[v(G+r[2*k],2) for k in range(2)]; u2=[v(vU+2*k if acc else U+r[2*k],2) for k in range(2)]; t2=[v(vT+2*k,2) for k in range(2)]
                    L+=[I(f"v_pk_mul_f32 {t2[k]}, {g2[k]}, {g2[k]}") for k in range(2)]
                    L+=[I(f"v_pk_fma_f32 {t2[k]}, {t2[k]}, {v(vK1,2)}, {v(vK0-1,2)} op_sel:[0,0,1] op_sel_hi:[1,0,1]") for k in range(2)]
                    L+=[I(f"v_pk_mul_f32 {t2[k]}, {t2[k]}, {g2[k]}") for k in range(2)]
                    L+=[I(f"v_pk_mul_f32 {g2[k]}, {g2[k]}, {u2[k]}") for k in range(2)]
                    L+=[I(f"v_exp_f32 v{vT+k}, v{vT+k}") for k in range(4)]
                    L+=[I(f"v_pk_fma_f32 {t2[k]}, {t2[k]}, {v(vV-1,2)}, {v(vV-1,2)} op_sel:[0,1,1] op_sel_hi:[1,1,1]") for k in range(2)]
                    L+=[I(f"v_rcp_f32 v{vT+k}, v{vT+k}") for k in range(4)]
                    L+=[I(f"v_pk_mul_f32 {g2[k]}, {g2[k]}, {t2[k]}") for k in range(2)]
                    L+=[I(f"v_cvt_pk_bf16_f32 v{P+2*h+k}, v{G+r[2*k]}, v{G+r[2*k+1]}") for k in range(2)]
                    continue
                L+=[I(f"v_mul_f32 v{vT+k}, v{G+r[k]}, v{G+r[k]}") for k in range(4)]
                L+=[I(f"v_fma_f32 v{vT+k}, v{vT+k}, v{vK1}, v{vK0}") for k in range(4)]
                L+=[I(f"v_mul_f32 v{vT+k}, v{vT+k}, v{G+r[k]}") for k in range(4)]
                if acc: L+=[I(f"v_accvgpr_read_b32 v{vU+k}, a{U+r[k]}") for k in range(4)]
                L+=[I(f"v_exp_f32 v{vT+k}, v{vT+k}") for k in range(4)]
                L+=[I(f"v_mul_f32 v{G+r[k]}, v{G+r[k]}, v{vU+k if acc else U+r[k]}") for k in range(4)]
                L+=[I(f"v_fma_f32 v{vT+k}, v{vT+k}, v{vV}, v{vV}") for k in range(4)]
                L+=[I(f"v_rcp_f32 v{vT+k}, v{vT+k}") for k in range(4)]
                L+=[I(f"v_mul_f32 v{G+r[k]}, v{G+r[k]}, v{vT+k}") for k in range(4)]
                L+=[I(f"v_cvt_pk_bf16_f32 v{P+2*h+k}, v{G+r[2*k]}, v{G+r[2*k+1]}") for k in range(2)]
            L.append(s.hstore(P,i0+f))
        return L
    def kv_epi(s):
        K=ACC+32; V=ACC+48; S=192; PK=208; PV=216; L=[]
        rd=[I(f"ds_read_b128 {v(S+4*i,4)}, v{vSTR} offset:{32*i}") for i in range(4)]
        L+=rd+[W(lg=rd[-1])]
        for h in range(4):
            r=[4*h+k for k in range(4)]
            L+=[I(f"v_mul_f32 v{K+x}, v{K+x}, v{S+x}") for x in r]
            L+=[I(f"v_min_f32 v{vT+k}, 0, v{K+r[k]}") for k in range(4)]
            L+=[I(f"v_mul_f32 v{vT+k}, {fb(LOG2E)}, v{vT+k}") for k in range(4)]
            L+=[I(f"v_exp_f32 v{vT+k}, v{vT+k}") for k in range(4)]
            L+=[I(f"v_max_f32 v{K+x}, 0, v{K+x}") for x in r]
            L+=[I(f"v_add_f32 v{K+r[k]}, v{K+r[k]}, v{vT+k}") for k in range(4)]
            L+=[I(f"v_add_f32 v{K+x}, {fb(1e-6)}, v{K+x}") for x in r]
            L+=[I(f"v_mul_f32 v{V+x}, v{V+x}, v{S+x}") for x in r]
            L+=[I(f"v_cvt_pk_bf16_f32 v{PK+2*h+k}, v{K+r[2*k]}, v{K+r[2*k+1]}") for k in range(2)]
            L+=[I(f"v_cvt_pk_bf16_f32 v{PV+2*h+k}, v{V+r[2*k]}, v{V+r[2*k+1]}") for k in range(2)]
        L+=[I(f"v_mov_b32 v{vT}, 0x3f803f80")]
        L+=[I(f"v_cndmask_b32 v{PV+k}, v{PV+k}, v{vT}, s[{MONE}:{MONE+1}]") for k in range(8)]
        M=[I(f"v_mfma_f32_32x32x16_bf16 {v(K,16)}, {v(PK,4)}, {v(PV,4)}, 0"),
           I(f"v_mfma_f32_32x32x16_bf16 {v(K,16)}, {v(PK+4,4)}, {v(PV+4,4)}, {v(K,16)}")]
        Wr=[I(f"ds_write_b128 v{vKXW}, {v(K+4*q,4)} offset:{q*1024}") for q in range(4)]
        rd2=[I(f"ds_read_b128 {v(S+4*q,4)}, v{vKXR} offset:{q*4096}") for q in range(4)]
        R=rd2+[W(lg=rd2[-1])]
        R+=[I(f"v_add_f32 v{S+k}, v{S+k}, v{S+4+k}") for k in range(4)]
        R+=[I(f"v_add_f32 v{S+8+k}, v{S+8+k}, v{S+12+k}") for k in range(4)]
        R+=[I(f"v_add_f32 v{S+k}, v{S+k}, v{S+8+k}") for k in range(4)]
        R.append(I(f"buffer_store_dwordx4 {v(S,4)}, v{vKP}, {srd(SWS)}, s{sKP} offen sc1"))
        return L,M,Wr,R
    def chk(s, regs):
        t=[f"v_max3_u32 v230, v{regs[0]}, v{regs[1]}, v{regs[2]}"]; r=regs[3:]
        if len(regs)>=8: t.append(f"v_max3_u32 v231, v{r[0]}, v{r[1]}, v{r[2]}"); r=r[3:]
        else: t.append(f"v_mov_b32 v231, v{r[0]}"); r=r[1:]
        k=0
        while r:
            t.append(f"v_max3_u32 v{230+k}, v{230+k}, v{r[0]}, v{r[1]}"); r=r[2:]; k^=1
        return t+["v_max_u32 v230, v230, v231","v_cmp_eq_u32 vcc, -1, v230"]
    def kv_l1(s):
        t=f"buffer_load_dwordx4 v[192:195], v{vKR}, {srd(SWS)}, s{sKR} offen sc1"; ld=I(t)
        L=[W(vm=ld)]+s.retry(s.chk([192,193,194,195]),[t])
        for rot in (4,8): L+=[I(f"v_add_f32_dpp v{192+k}, v{192+k}, v{192+k} row_ror:{rot} row_mask:0xf bank_mask:0xf") for k in range(4)]
        for sw in ("v_permlane16_swap_b32","v_permlane32_swap_b32"):
            L+=[I(f"v_mov_b32 v{196+k}, v{192+k}") for k in range(4)]
            L+=[I(f"{sw} v{192+k}, v{196+k}") for k in range(4)]
            L+=[I(f"v_add_f32 v{192+k}, v{192+k}, v{196+k}") for k in range(4)]
        L+=[I("v_cvt_pk_bf16_f32 v196, v192, v193"), I("v_cvt_pk_bf16_f32 v197, v194, v195"),
            I(f"buffer_store_dwordx2 v[196:197], v{vKFs}, {srd(SWS)}, s{sKFst} offen sc1")]
        return ld,L
    def aload_txt(s, n):
        pp,i=kmap(n); L=[]
        so=f"s{sA+pp}"
        if i>=4: L.append(f"s_add_u32 s{sT2}, s{sA+pp}, {(i//4)*4096}"); so=f"s{sT2}"
        return L+[f"buffer_load_dwordx4 {s.areg(n,mb)}, v{vL16 if mb==0 else s.vA1}, {srd(SWS)}, {so} offen offset:{(i%4)*1024} sc1" for mb in range(2)]
    def areg(s,n,mb=None):
        b=X+8*(n%14)
        return list(range(b,b+8)) if mb is None else v(b+4*mb,4)
    def aload(s, n):
        L=[I(t) for t in s.aload_txt(n)]; s.tok_a[n]=L[-1]; return L
    def gapinfo(s, g):
        if g<56: return 0,g>>1,g&1
        if g<168: return 1,(g-56)>>2,(g-56)&3
        if s.ty==0: return 2,(g-168)>>2,(g-168)&3
        return 3+(g-168)//56,((g-168)%56)>>1,g&1
    def trd(s, g):
        ps,pos,u=s.gapinfo(g); dst=(g%8)*4; L=[]
        for t in range(2):
            if ps in (1,2):
                slot=[[2,3,4,2],[3,4,2,3]][ps-1][pos//7]
                L.append(I(f"ds_read_b64_tr_b16 {a(dst+2*t,2)}, v{vTQ+2*(u>>1)+slot//2-1} offset:{(slot&1)*SLOT+(u&1)*7168+(pos%7)*1024+t*512}"))
            elif ps==4:
                pl=pos%14
                L.append(I(f"ds_read_b64_tr_b16 {a(dst+2*t,2)}, v{vQ+u} offset:{(pos//14)*SLOT+2*(pl//7)*7168+(pl%7)*1024+t*512}"))
            else:
                slot={0:0,3:3}[ps]+pos//14; pl=pos%14
                L.append(I(f"ds_read_b64_tr_b16 {a(dst+2*t,2)}, v{vTR+slot//2} offset:{(slot&1)*SLOT+(u+2*(pl//7))*7168+(pl%7)*1024+t*256}"))
        return L
    def phase1(s):
        p=s.p; s.tok_a={}; s.tok_h={}; s.vA1=198; o=s.o; segs=[]
        def seg(g0,g1,L): segs.append([g0,g1,list(L),0])
        Q=[]
        wl=o("wlen",10)
        for x in s.selC: x.tag="inl"
        seg(28,29,s.selC)
        for k,g in enumerate(s.P0S):
            g0=2+k*44//len(s.P0S); seg(g0,g0+1,g)
        wsched=o("wsched",{"Q0":(0,14),"Q1":(15,36),"Q2":(37,58),"Q3":(81,100),"h0":(109,132),"h1":(137,160),"f0":(165,188),"f1":(193,214)})
        if wl: wsched={k:((a_,a_+wl) if a_>50 else (a_,b_)) for k,(a_,b_) in wsched.items()}
        for nm,(g0,g1) in wsched.items():
            it=s.witems(nm,o("wper",1))
            for k,x in enumerate(it): Q.append((g0+(g1-g0)*k/len(it),x))
        if not s.fl: seg(*o("hclr",(4,40)),s.hclr)
        s.tok_w["clr"]=s.tok_clr
        conf={24:["k1"],52:["Q0","clr"],80:["Q1"],108:["Q2"],136:["Q3"],164:["h0"],192:["h1"],220:["f0"],248:["f1"]}
        e1,eM,eW,eR=s.kv_epi(); ke=o("kvbar",108)
        seg(58,ke-12,e1); seg(ke-11,ke-10,eM[:1]); seg(ke-9,ke-8,eM[1:]); seg(ke-4,ke-1,eW); seg(ke+1,ke+8,eR)
        seg(171,223 if s.ty else o("gAend",226),s.gelu(ACC,aU,16,0,True)+s.gelu(ACC+16,aU+16,16,2,True))
        if s.ty: seg(228,o("g3end",274),s.gelu(ACC+32,ACC+48,16,4))
        gt=f"buffer_load_dword v{vPOLL+1}, off, {srd(SD)}, 0 offset:128 sc1"; gld=I(gt)
        seg(1,2,[gld])
        seg(53,54,[W(vm=gld)]+s.retry([f"v_cmp_eq_u32 vcc, 0, v{vPOLL+1}"],[gt])+[I(f"s_cmp_lg_u32 s{sW}, 0"),I(f"s_cselect_b32 s{sFKst}, 0x40000000, s{sFKst}"),
            I(f"buffer_store_dword v{vONE}, v{vZ}, {srd(SWS)}, s{sFKst} offen sc1")])
        ct=f"buffer_load_dword v{vPOLL+1}, v{vPA31}, {srd(SWS)}, s{sFKld} offen sc1"; cld=I(ct)
        gk=o("gkv",166); kld,kred=s.kv_l1()
        seg(gk-45,gk-44,[cld]); seg(gk-1,gk,[W(vm=cld)]+s.retry([f"v_cmp_eq_u32 vcc, 0, v{vPOLL+1}"],[ct])+[kld])
        seg(o("gfa",238),o("gfa",238)+1,s.flagst(1,[s.tok_h[1]]+([] if s.fl else [s.hclr[-1]])))
        seg(o("gfb",264),o("gfb",264)+1,s.flagst(2,s.tok_h[3]))
        plA,pcA=s.poll(1); seg(o("gpa",266),o("gpa",266)+1,[I(f"v_and_b32 v{vPA7}, 28, v{vPA31}"),plA])
        T=lines(f"""
        s_mov_b32 s{SWD}, s16
        s_and_b32 s{SWD+1}, s17, 0xffff
        s_mov_b32 s{SWD+2}, {1792*896}
        s_lshl_b32 s{sOLO}, s{sWG}, 2
        s_add_u32 s{sOLO}, s{sOLO}, s{sW}
        s_mul_i32 s{sOHI}, s{sOLO}, 1568
        v_lshlrev_b32 v{vTCH}, 3, v{vL16}
        s_mov_b64 exec, 0x1fff
        buffer_load_dword a255, v{vTCH}, {srd(SWD)}, s{sOHI} offen
        s_mov_b64 exec, -1
        s_mul_i32 s{SWD+2}, s{sV2}, {1792*896}
        """)
        for x in T: x.tag="inl"
        seg(o("gwarmD",16),o("gwarmD",16)+1,T)
        T=lines(f"""
        s_mov_b32 s{sP}, s{SD}
        s_mov_b32 s{sHc}, s{SD+1}
        s_mov_b32 s{SD}, s8
        s_and_b32 s{SD+1}, s9, 0xffff
        s_mov_b32 s{SD+2}, {448*896}
        s_mul_i32 s{sOHI}, s{sOLO}, 392
        s_mov_b64 exec, 0xf
        buffer_load_dword a255, v{vTCH}, {srd(SD)}, s{sOHI} offen
        s_mov_b64 exec, -1
        """)
        for x in T: x.tag="inl"
        seg(o("gwarm",60),o("gwarm",60)+1,T)
        seg(o("gred",196),o("gred",196)+10,kred)
        kft=[f"buffer_load_dwordx4 {v(200+4*q,4)}, v{vL16}, {srd(SWS)}, s{sKF} offen offset:{q*1024} sc1" for q in range(4)]
        kf=[I(t) for t in kft]
        if s.ty: seg(o("gkf",252),o("gkf",252)+4,kf)
        seg(o("gsrd",222),o("gsrd",222)+2,lines(f"""
        s_mov_b32 s{SWO}, s8
        s_and_b32 s{SWO+1}, s9, 0xffff
        s_mul_i32 s{SWO+2}, s{sV2}, {448*896}
        s_mov_b32 s{SOUT}, s18
        s_and_b32 s{SOUT+1}, s19, 0xffff
        s_mov_b32 s{SOUT+2}, {2048*896}
        """))
        seg(166,168,lines(f"""
        v_add_u32 v{s.vBT[2]}, 0x10000, v{vBT[0]}
        v_add_u32 v{s.vBT[3]}, 0x10000, v{vBT[1]}
        """))
        if s.ty==1: seg(200,204,lines(f"""
        v_bfe_u32 v230, v{vL16}, 6, 2
        v_lshrrev_b32 v231, 9, v{vL16}
        v_mul_u32_u24 v231, 7168, v231
        v_lshl_add_u32 v231, v230, 7, v231
        v_add_u32 v231, {2*SLOT}, v231
        v_and_b32 v230, 0x7f, v{vBT[0]}
        v_add_u32 v{vQ}, v230, v231
        v_and_b32 v{vQ+1}, 64, v230
        v_and_b32 v230, 63, v230
        v_add_u32 v230, 56, v230
        v_xor_b32 v230, v230, v{vQ+1}
        v_add_u32 v{vQ+1}, v230, v231
        """))
        NR=s.NR=o("NR",19); pace=o("bpace",4); lag=o("blag",30); t=float(o("b0",60))
        free={e:(ENT_FREE[e]+1,None) for e in range(len(ENT))}; late=[]
        busy=set(); s.p2b=[]
        def slot(tt):
            g=int(tt)
            while g in busy: g+=1
            busy.add(g); return g
        for tt,x in Q:
            g=slot(tt); seg(g,g+1,x); assert g<o("gsrd",222)-1
        if o("bblock",(4,2)):
            for nm,(g0,g1) in wsched.items(): busy.update(range(g0-o("bblock",(4,2))[0],g1+o("bblock",(4,2))[1]))
        order=list(range(36))
        if o("border",0): order=list(range(16))+[16,17,20,21,28,29,18,19,22,23,30,31,24,25,32,33,26,27,34,35]
        pl=o("plead",None)
        for n in order:
            if pl: pace=pl[kmap(n)[0]]
            e=min(free,key=lambda k:(max(free[k][0],t),k)); tt=max(free[e][0],t); tok=free.pop(e)[1]
            L=([W(lg=tok)] if tok else [])+s.bdma(n,e)
            tt=slot(tt)
            if kmap(n)[1]>=14 and tt<=o("gsrd",222)+2: busy.discard(tt); tt=slot(o("gsrd",222)+3)
            if n>=o("nbp",36): s.p2b.append(L); continue
            if tt<278: seg(tt,tt+1,L)
            else: late.append((tt,L))
            if n<NR:
                R=[W(vm=s.tok_b[n],tag="wB")]+[s.btr(n,q,aB+8*n) for q in range(4)]
                if tt+lag<277: seg(int(tt+lag),int(tt+lag)+1,R)
                else: late.append((tt+lag,R))
                free[e]=(tt+lag+3,R[-1])
            t=tt+pace
        late.sort(key=lambda x:x[0])
        p(W(vm=s.tok_w["k0"])); p("s_barrier")
        p(s.stamp("B0",1))
        rd={}
        for g in range(4):
            rd[g]=s.trd(g); p(rd[g])
        for g in range(280):
            ps,pos,u=s.gapinfo(g)
            if g%2==0: p(W(lg=rd[g+1][-1]))
            if ps in (1,2): D=(a(aU+32*(ps-1)+16*(u>>1),16) if u&1 else v(ACC+32*(ps-1)+16*(u>>1),16))
            else: D=v(ACC+(0 if ps==4 else 32)+16*u,16)
            fr=a((g%8)*4,4); xr=v(X+4*pos,4); C=D if pos else "0"
            if ps==0: p(f"v_mfma_f32_32x32x16_bf16 {D}, {xr}, {fr}, {C}")
            else: p(f"v_mfma_f32_32x32x16_bf16 {D}, {fr}, {xr}, {C}")
            if g in BARS:
                p(W(vm=[s.tok_w[x] for x in conf[g]], lg=0, tag="wBar") if g in conf else W(lg=0))
                p("s_barrier")
                p(s.stamp(f"g{g}", g not in (52,108,164,220,276)))
                if g==164: p("; SPLIT")
            if g+4<280:
                rd[g+4]=s.trd(g+4); p(rd[g+4])
            tr=o("trace",None)
            if tr and tr[0]<=g<tr[1] and (g-tr[0])%tr[2]==0: p(s.stamp(f"t{g}"))
            p(f"; gap {g}")
            heads=[]; pure=[]; mixed=[]
            for sgm in segs:
                g0,g1,L,done=sgm
                if g<g0 or done>=len(L): continue
                tot=sum(x.cost for x in L); tgt=tot*(g-g0+1)/(g1-g0) if g<g1-1 else tot+1
                acc=sum(x.cost for x in L[:done]); body=[]
                ismem=lambda x: x.kind in("ds","vmem") and x.tag!="inl"
                nh=0
                while done<len(L) and ismem(L[done]) and (acc<tgt or (done>0 and not ismem(L[done-1]))) and nh<o("maxhead",4):
                    heads.append(L[done]); acc+=L[done].cost; done+=1; nh+=1
                while done<len(L) and (acc<tgt or L[done].kind=="label") and (not ismem(L[done]) or g==279):
                    body.append(L[done]); acc+=L[done].cost; done+=1
                (pure if all(x.kind in("valu","trans") for x in body) else mixed).append(body)
                sgm[3]=done
            p([x for x in heads if x.kind=="ds"]); p([x for x in heads if x.kind!="ds"])
            for b in pure+mixed: p(b)
        assert all(x[3]==len(x[2]) for x in segs)
        p(s.stamp("p1_mfma_done"))
        p(f"""
        v_add_u32 v{s.vA1}, {8*18432}, v{vL16}
        s_cmp_eq_u32 s{sV2}, 0
        s_cselect_b32 s{sT2}, 0x40000000, 0
        s_add_u32 s{sA}, s{sA}, s{sT2}
        s_add_u32 s{sA+1}, s{sA+1}, s{sT2}
        """)
        pk=o("pk",1); T=[]; tp=T.extend
        if s.ty==0:
            tp(s.gelu(ACC+32,aU+32,16,4,True,pk)+s.gelu(ACC+48,aU+48,16,6,True,pk))
        else:
            PQ=[216,vP]
            for hh in range(2):
                Q=ACC+16*hh
                for h in range(4):
                    r=[4*h+k for k in range(4)]
                    tp([I(f"v_pk_mul_f32 {v(vT+2*k,2)}, {v(Q+r[2*k],2)}, {v(vS,2)} op_sel:[0,1] op_sel_hi:[1,1]") for k in range(2)])
                    tp([I(f"v_min_f32 v{vT+k}, 0, v{vT+k}") for k in range(4)])
                    tp([I(f"v_exp_f32 v{vT+k}, v{vT+k}") for k in range(4)])
                    tp([I(f"v_max_f32 v{Q+x}, 0, v{Q+x}") for x in r])
                    tp([I(f"v_pk_fma_f32 {v(Q+r[2*k],2)}, {v(Q+r[2*k],2)}, {v(vS,2)}, {v(vT+2*k,2)} op_sel_hi:[1,0,1]") for k in range(2)])
                    tp([I(f"v_add_f32 v{Q+x}, {fb(1e-6)}, v{Q+x}") for x in r])
                    tp([I(f"v_cvt_pk_bf16_f32 v{PQ[hh]+2*h+k}, v{Q+r[2*k]}, v{Q+r[2*k+1]}") for k in range(2)])
                tp([I(f"v_cndmask_b32 v{PQ[hh]+6+k}, v{PQ[hh]+6+k}, 0, s[{MHI}:{MHI+1}]") for k in range(2)])
                if hh==0:
                    c=s.stamp("pre_kf",1)+[W(vm=kf[-1])]+s.retry(s.chk(list(range(200,216))),kft)+s.stamp("kf_ok",1)
                    for x in c: x.tag=x.tag or "atom"
                    tp(c)
                N=ACC+32+16*hh
                tp(lines(f"""
                v_mfma_f32_32x32x16_bf16 {v(N,16)}, {v(200+8*hh,4)}, {v(PQ[hh],4)}, 0
                v_mfma_f32_32x32x16_bf16 {v(N,16)}, {v(204+8*hh,4)}, {v(PQ[hh]+4,4)}, {v(N,16)}
                """))
            for hh in range(2):
                N=ACC+32+16*hh; PO=ACC+8*hh
                tp(lines(f"""
                v_mov_b32 v230, v{N+12}
                v_mov_b32 v231, v{N+12}
                v_permlane32_swap_b32 v230, v231
                v_add_f32 v230, {fb(1e-6)}, v231
                v_rcp_f32 v230, v230
                """))
                tp([I(f"v_pk_mul_f32 {v(N+2*k,2)}, {v(N+2*k,2)}, v[230:231] op_sel_hi:[1,0]") for k in range(8)])
                tp([I(f"v_cvt_pk_bf16_f32 v{PO+k}, v{N+2*k}, v{N+2*k+1}") for k in range(8)])
                tp([I(f"v_cndmask_b32 v{PO+6+k}, v{PO+6+k}, 0, s[{MHI}:{MHI+1}]") for k in range(2)])
                tp([s.hstore(PO+4*f,6+2*hh+f) for f in range(2)])
        plB,pcB=s.poll(2)
        M=[s.stamp("pre_flagA",1)+list(pcA)+s.stamp("flagA",1)]
        npb=o("npb",3)
        for n in range(8):
            M.append(s.aload(n))
            if n==npb: M.append([plB])
        M+=[L for _,L in late]
        M.append(s.stamp("pre_flagB",1)+list(pcB)+s.stamp("flagB",1))
        for n in range(8,14): M.append(s.aload(n))
        tot=sum(x.cost for x in T); step=o("tstep",26); acc=0; nxt=o("tfirst",0)
        for x in T:
            if M and acc>=nxt and x.tag!="atom" and x.kind!="vmem": p(M.pop(0)); nxt+=step
            p(x); acc+=x.cost
        s.rest=M
        if s.fl:
            last=s.tok_h[7 if s.ty==0 else 9]; k=min(len(M),o("fdpos",3))
            M.insert(k,s.flagst(3,last))
        p(s.stamp("tail_done"))
        if s.fl:
            p(f"s_cmp_eq_u32 s{sV2}, 0"); p("s_cbranch_scc1 L_pub")
            s.ool+=[I("L_spin999:"),I("L_pub:"),I("s_waitcnt vmcnt(0)"),I(f"v_mov_b32 v{vONE}, 3"),I(f"buffer_store_dword v{vONE}, v{vZ}, {srd(SWS)}, s{sFHst} offen sc1",count=False),I("s_branch L_fin")]
            p("L_ok999:")
        else: p(f"s_cmp_eq_u32 s{sV2}, 0"); p("s_cbranch_scc1 L_fin")
    def phase2(s):
        p=s.p; o=s.o; NR=s.NR
        vXR=204
        adr=[]
        vEW,vER,vO=216,220,222
        adr=lines(f"""
        v_lshrrev_b32 v230, 7, v{vL16}
        s_lshl_b32 s{sT3}, s{sW}, 3
        v_add_u32 v231, s{sT3}, v230
        v_mul_u32_u24 v231, 896, v231
        v_and_b32 v{vO}, 0x70, v{vL16}
        v_add_u32 v{vO}, v{vO}, v231
        v_add_u32 v{vO+1}, {32*896}, v{vO}
        v_bfe_u32 v231, v{vL16}, 4, 2
        v_lshlrev_b32 v231, 1, v231
        v_xor_b32 v231, v231, v230
        v_lshlrev_b32 v231, 4, v231
        v_lshl_add_u32 v231, v230, 8, v231
        v_bfe_u32 v230, v{vL16}, 6, 1
        v_lshl_add_u32 v231, v230, 7, v231
        s_lshl_b32 s{sT3}, s{sW}, 13
        v_add_u32 v{vER}, s{sT3}, v231
        v_xor_b32 v{vER+1}, 16, v{vER}
        v_bfe_u32 v230, v{vL16}, 4, 3
        v_lshrrev_b32 v231, 9, v{vL16}
        v_xor_b32 v231, v231, v230
        v_lshlrev_b32 v231, 4, v231
        v_lshl_add_u32 v231, v230, 8, v231
        v_bfe_u32 v230, v{vL16}, 7, 2
        v_lshl_add_u32 v231, v230, 13, v231
        v_add_u32 v{vEW}, s{sWB2}, v231
        v_xor_b32 v{vEW+1}, 32, v{vEW}
        v_xor_b32 v{vEW+2}, 64, v{vEW}
        v_xor_b32 v{vEW+3}, 0x60, v{vEW}
        """)
        while s.rest:
            p(s.rest.pop(0)); p(adr[:6]); adr=adr[6:]
        p(adr)
        groups=[(16,20),(20,24),(24,28),(28,32),(32,36)]
        if s.fl: groups=[]
        n_s=groups[0][0] if groups else 36
        def gchk(n0,n1):
            return [W(vm=s.tok_a[n1-1])]+s.retry(s.chk([r for n in range(n0,n1) for r in s.areg(n)]),[t for n in range(n0,n1) for t in s.aload_txt(n)])
        breg=lambda n: aB+8*n if n<NR else (n%4)*8
        rb={}
        p(W(lg=0)); p(s.stamp("p2_start"))
        pend=[]; nxt=14; nC=o("nC",6); al=[]; bl=[]
        for n in range(33):
            p(pend); pend=[]
            if n in (8,16,24): p(s.stamp(f"p2_n{n}"))
            if n<n_s and n>=NR: p(W(vm=s.tok_a[n], lg=rb[n]))
            elif n<n_s: p(W(vm=s.tok_a[n]))
            elif n>=NR: p(W(lg=rb[n]))
            for q in range(4):
                nbk,mb=q>>1,q&1; D=ACC+16*q
                p(f"v_mfma_f32_32x32x16_bf16 {v(D,16)}, {a(breg(n)+nbk*4,4)}, {s.areg(n,mb)}, {v(D,16) if n else 0}")
                if NR<=n+1<36:
                    if q==0:
                        p(W(vm=s.tok_b[n+1])); p(s.btr(n+1,0,breg(n+1))); p(s.btr(n+1,1,breg(n+1)))
                    if q==1:
                        p(s.btr(n+1,2,breg(n+1))); rb[n+1]=p(s.btr(n+1,3,breg(n+1)))
                if n==32 and q>=2:
                    m=32+q; p(W(vm=s.tok_b[m]))
                    for k in range(4): rb[m]=p(s.btr(m,k,breg(m)))
                post=[]
                if s.fl:
                    if n==o("nP",1) and q==1: plD,pcD=s.poll(3); p(plD)
                    if n==nC and q==0: p(pcD); p(s.stamp("flagD",1))
                    if q in (1,3): p(al); al=[]
                    if q in (0,2) and nxt<36 and nxt<n+14+(q>>1) and (nxt<16 or n>=nC):
                        al=s.aload(nxt); nxt+=1; post=[x for x in al if x.kind=="salu"]; al=[x for x in al if x.kind!="salu"]
                else:
                    if q==2 and nxt<36:
                        al=s.aload(nxt); nxt+=1; post=[x for x in al if x.kind=="salu"]; al=[x for x in al if x.kind!="salu"]
                    if q==3: p(al); al=[]
                if q==1: p(bl); bl=[]
                if q==0 and s.p2b and n>=o("p2b0",0):
                    bl=s.p2b.pop(0); post=[x for x in bl if x.kind!="vmem"]; bl=[x for x in bl if x.kind=="vmem"]
                if q==3:
                    if s.i_sent==6 and n==nC: p(pcC); p(s.stamp("flagC",1))
                    k=0
                    while s.i_sent==6 and nxt<36 and nxt<=n+14 and k<2 and (nxt<16 or n>=nC):
                        p(s.aload(nxt)); nxt+=1; k+=1
                    if n==24:
                        xr0=p(f"buffer_load_dwordx4 {v(vXR,4)}, v{vO}, {srd(SX)}, s{sOUT} offen")
                        xr1=p(f"buffer_load_dwordx4 {v(vXR+4,4)}, v{vO+1}, {srd(SX)}, s{sOUT} offen")
                ng=[g for g in groups if g[0]==n+1]
                if ng:
                    if q==0: pend=gchk(*ng[0])
                    k=(len(pend)+3-q)//(4-q) if q<3 else 0
                    if q<3: p(pend[:k]); pend=pend[k:]
                p(post)
        p(pend); p(W(lg=0, vm=s.tok_a[35]) if s.fl else W(lg=0))
        def wr(q): return [I(f"ds_write_b128 v{vEW+i}, {v(ACC+16*q+4*i,4)} offset:{(q&1)*32768+(q>>1)*128}") for i in range(4)]
        un=[I(f"v_lshlrev_b32 v{80+2*k}, 16, v{vXR+k}") for k in range(8)]+[I(f"v_and_b32 v{81+2*k}, 0xffff0000, v{vXR+k}") for k in range(8)]
        for q in range(4):
            nbk,mb=q>>1,q&1; D=ACC+16*q
            for n in range(33,36):
                p(f"v_mfma_f32_32x32x16_bf16 {v(D,16)}, {a(breg(n)+nbk*4,4)}, {s.areg(n,mb)}, {v(D,16)}")
                if q>=2 and n<35: p(wr(q-2)[2*(n-33):2*(n-33)+2])
                if q==0 and n==33: p(W(vm=xr1))
                if q<2: p(un[:3]); un=un[3:]
        p(s.stamp("p2_mfma_done"))
        p(un); p(wr(2)); p(wr(3))
        p(W(lg=0)); p("s_barrier")
        rr=[]
        for w in range(4):
            for c in range(4): rr.append(p(f"ds_read_b128 {v(16+16*w+4*c,4)}, v{vER+(c&1)} offset:{w*2048+(c>>1)*32768}"))
        p(W(lg=rr[7]))
        for k in range(8): p(f"v_pk_add_f32 {v(16+2*k,2)}, {v(16+2*k,2)}, {v(32+2*k,2)}")
        for k in range(8): p(f"v_pk_add_f32 {v(16+2*k,2)}, {v(16+2*k,2)}, {v(80+2*k,2)}")
        p(W(lg=rr[15]))
        for k in range(8): p(f"v_pk_add_f32 {v(48+2*k,2)}, {v(48+2*k,2)}, {v(64+2*k,2)}")
        of=o("outflag","sc1")
        for h in range(2):
            for k in range(4*h,4*h+4): p(f"v_pk_add_f32 {v(16+2*k,2)}, {v(16+2*k,2)}, {v(48+2*k,2)}")
            for k in range(4*h,4*h+4): p(f"v_cvt_pk_bf16_f32 v{96+k}, v{16+2*k}, v{17+2*k}")
            p(f"buffer_store_dwordx4 {v(96+4*h,4)}, v{vO+h}, {srd(SOUT)}, s{sOUT} offen {of}")
        p("L_fin:")
        if s.stamps:
            p(W(vm=0)); p(s.stamp("end")); p(f"s_memrealtime s[{sSTMP}:{sSTMP+1}]\ns_waitcnt lgkmcnt(0)\nv_writelane_b32 v0, s{sSTMP}, 62")
            p(f"s_lshl_b32 s{sT}, s{sMI}, 4\ns_add_u32 s{sT}, s{sT}, s{sJ}\ns_lshl_b32 s{sT}, s{sT}, 2\ns_add_u32 s{sT}, s{sT}, s{sW}\ns_lshl_b32 s{sT}, s{sT}, 8\ns_add_u32 s{sT}, s{sT}, {WS_ST}")
            p(f"v_lshrrev_b32 v{vL4}, 2, v{vL16}")
            p(f"buffer_store_dword v0, v{vL4}, {srd(SWS)}, s{sT} offen")
            if s.o("dbgwg",None) is not None:
                p(f"s_memrealtime s[{sSTMP}:{sSTMP+1}]\ns_waitcnt lgkmcnt(0)\nv_readlane_b32 s{sSPIN}, v0, 63\ns_nop 3\ns_sub_u32 s{sSTMP}, s{sSTMP}, s{sSPIN}\nv_readlane_b32 s{sSPIN}, v0, 0\ns_nop 3\nv_subrev_u32 v0, s{sSPIN}, v0\nv_writelane_b32 v0, s{sSTMP}, 0")
                p(f"s_cmp_lg_u32 s{sT}, {WS_ST+s.o('dbgwg',0)*256}\ns_cbranch_scc1 L_end\ns_mov_b64 exec, 0xffff")
                if s.o("warm",1): p(f"s_mov_b32 s{SD}, s{sP}\ns_mov_b32 s{SD+1}, s{sHc}\ns_mov_b32 s{SD+2}, 256")
                p(f"buffer_store_dword v0, v{vL4}, {srd(SD)}, 0 offen")
        if s.o("probe",None):
            k=s.stnames.index(s.o("probe",None))
            p(f"v_readlane_b32 s{sT}, v0, 0\nv_readlane_b32 s{sT2}, v0, {k}\ns_nop 3\ns_sub_u32 s{sT2}, s{sT2}, s{sT}\ns_mul_i32 s{sT2}, s{sT2}, 4\ns_add_u32 s{sT2}, s{sT2}, 3000")
            if s.o("probewg",None) is not None: p(f"s_cmp_eq_u32 s{sWG}, {s.o('probewg',0)}\ns_cselect_b32 s{sT2}, s{sT2}, 0")
            p(f"L_prb:\ns_memrealtime s[{sSTMP}:{sSTMP+1}]\ns_waitcnt lgkmcnt(0)\ns_sub_u32 s{sSTMP}, s{sSTMP}, s{sT}\ns_cmp_lt_u32 s{sSTMP}, s{sT2}\ns_cbranch_scc1 L_prb")
        if s.o("fixspan",0):
            p(W(vm=0)); p(f"v_readfirstlane_b32 s{sT}, v0\nL_fix:\ns_memrealtime s[{sSTMP}:{sSTMP+1}]\ns_waitcnt lgkmcnt(0)\ns_sub_u32 s{sSTMP}, s{sSTMP}, s{sT}\ns_cmp_lt_u32 s{sSTMP}, {s.opt['fixspan']}\ns_cbranch_scc1 L_fix")
        p("L_end:"); p("s_endpgm")
    def build(s):
        A,eA=s.one()
        g=Gen(stamps=s.stamps, ty=1, **s.opt); g.stnames=s.stnames; B,eB=g.one()
        ia=[i for i,x in enumerate(A) if x.text=="; SPLIT"][0]; ib=[i for i,x in enumerate(B) if x.text=="; SPLIT"][0]
        assert [x.text for x in A[:ia]]==[x.text for x in B[:ib]], "prefix differs"
        import re
        e=[i for i,x in enumerate(B) if x.op=="s_endpgm"][0]
        suf=B[ib+1:e+1]; defd={x.op[:-1] for x in suf if x.kind=="label"}
        blk=[];
        for x in B[e+1:]:
            if x.kind=="label" and re.fullmatch(r"L_spin\d+:",x.op): blk.append([])
            if x.op!="L_codeend:": blk[-1].append(x)
        for b in blk:
            if "L_ok"+b[0].op[6:-1] in defd: suf+=b; defd|={x.op[:-1] for x in b if x.kind=="label"}
        ren=lambda t: re.sub(r"\bL_\w+", lambda m: m.group(0)+"_B" if m.group(0) in defd else m.group(0), t)
        body=[x.text for x in A[:ia]]+[f"s_cmp_lg_u32 s{sTY}, 0","s_cbranch_scc1 L_typeB"]+[x.text for x in A[ia+1:-1]]+[".p2align 6","L_typeB:"]+[ren(x.text) for x in suf]+["L_codeend:"]
        s.ninstr=len(body); s.pads+=g.pads
        return s.wrap("\n".join(body)+"\n"), eA+eB
    def one(s):
        s.prologue(); s.phase1(); s.phase2()
        s.p.add(s.ool); s.p("L_codeend:")
        for pat in s.o("drop",[]):
            for x in s.p.L:
                if pat in x.text: x.text="; dropped"; x.kind="dir"; x.R=[]; x.W=[]; x.op=""; x.lds=False
        import re
        for a_,b_ in s.o("subst",[]):
            for x in s.p.L:
                if x.kind in("vmem","valu"): x.text=re.sub(a_,b_,x.text)
        for x in s.p.L:
            if x.waitfor and x.tag in s.o("dropw",[]): x.waitfor=(None,0 if x.waitfor[1]==0 else None); x.text="s_nop 0"
            if x.waitfor==(None,None): x.waitfor=None; x.kind="nop"; x.cost=1
        s.p.resolve()
        if s.o("nocomp",0):
            fl=("v_mul_f32","v_fma_f32","v_add_f32","v_min_f32","v_max_f32","v_cvt_pk","v_pk_","v_accvgpr","v_max3","v_max_u32","v_permlane")
            keep=[]
            for i,x in enumerate(s.p.L):
                if x.kind in("mfma","ds","dot","trans") or x.op.startswith(fl): continue
                if x.op=="s_cbranch_vccnz" and (s.p.L[i-1].op.startswith(("v_cmp_u","v_cmp_eq"))): continue
                keep.append(x)
            s.p.L=keep
        if s.o("purestream",0):
            e=[i for i,x in enumerate(s.p.L) if x.op=="L_fin:"][0]
            s.p.L=[x for i,x in enumerate(s.p.L) if i>=e or not ((x.kind=="wait" and "vmcnt" in x.text) or x.kind=="barrier" or x.op=="s_cbranch_vccnz")]
        if s.o("nomem",0):
            s.p.L=[x for x in s.p.L if not ((x.kind=="vmem" and "v0, v" not in x.text) or x.op=="s_cbranch_vccnz")]
        s.p.check(fix=True); s.pads=s.p.pads
        errs=s.p.check()
        return s.p.L, errs
    def wrap(s, body):
        hdr=f"""; Fused LayerNorm + linear attention + GEGLU FFN + residual, one persistent launch (generated by dev/gen.py)
; @launch grid=(256,1,1) block=(256,1,1) lds={LDS}
.amdgcn_target "amdgcn-amd-amdhsa--gfx950"
.text
.globl {KN}
.p2align 8
.type {KN},@function
{KN}:
"""
        ftr=f""".section .rodata,"a"
.p2align 6
.amdhsa_kernel {KN}
  .amdhsa_next_free_vgpr 512
  .amdhsa_next_free_sgpr 102
  .amdhsa_accum_offset 256
  .amdhsa_group_segment_fixed_size 0
  .amdhsa_kernarg_size 80
  .amdhsa_user_sgpr_count 2
  .amdhsa_user_sgpr_kernarg_segment_ptr 1
  .amdhsa_system_sgpr_workgroup_id_x 1
.end_amdhsa_kernel
"""
        return hdr+body+ftr
if __name__=="__main__":
    import argparse
    ap=argparse.ArgumentParser(); ap.add_argument("-o",default="k.s"); ap.add_argument("--stamps",action="store_true"); ap.add_argument("-v",action="store_true"); ap.add_argument("--opt",default="{}")
    ar=ap.parse_args()
    g=Gen(stamps=ar.stamps, **eval(ar.opt)); txt,errs=g.build()
    for e in errs: print("ERR",e)
    if ar.v:
        for x in g.pads: print("pad",x)
    open(ar.o,"w").write(txt)
    print("instrs",g.ninstr,"errors",len(errs))
    from build import build
    build(ar.o)
```
